```python
import torch

def _softmax(x, axis=-1):
    return torch.softmax(x, dim=axis)
def _gelu(x):
    return torch.nn.functional.gelu(x, approximate="tanh")
def _silu(x):
    return torch.nn.functional.silu(x)
def _sigmoid(x):
    return torch.sigmoid(x)
def _layernorm(x, axis=-1, eps=1e-5):
    m = x.mean(dim=axis, keepdim=True)
    v = x.var(dim=axis, keepdim=True, unbiased=False)
    return (x - m) / torch.sqrt(v + eps)
def _scatter_add(tgt, idx, src, axis=0):
    return tgt.clone().index_add_(axis, idx, src)
def _segment_sum(src, seg, n):
    out = torch.zeros((n,) + src.shape[1:], dtype=src.dtype)
    return out.index_add_(0, seg, src)
def _pad(x, pw):
    flat = tuple(v for pair in reversed(pw) for v in pair)
    return torch.nn.functional.pad(x, flat)

kernel_name = 'concat_heads__softmax_full_mha__linear_kernel_hedgehog__prompt'

def setup_inputs():

    _w = (lambda a: (lambda t: t.to(torch.bfloat16) if t.is_floating_point() else t)(torch.as_tensor(a)))
    def _A_setup():
        B, S, D = 1, 2048, 448
        return {
            "x": _w((lambda *s: torch.randn(*s, dtype=torch.bfloat16) * 0.4)(B, S, D)),
            "wqkv": _w((lambda *s: torch.randn(*s, dtype=torch.bfloat16) * 0.4)(D, 3 * D)),
            "wo": _w((lambda *s: torch.randn(*s, dtype=torch.bfloat16) * 0.05)(D, D)),
        }
    _A_in = _A_setup()

    def _B_setup():
        B, S, D, H = 1, 2048, 448, 16
        Dh = D // H
        return {
            "x": _w((lambda *s: torch.randn(*s, dtype=torch.bfloat16) * 0.8)(B, S, D)),
            "wqkv": _w((lambda *s: torch.randn(*s, dtype=torch.bfloat16) * 1.6)(D, 3 * D)),
            "w_phi": _w((lambda *s: torch.randn(*s, dtype=torch.bfloat16) * 1.6)(H, Dh, Dh) * (Dh ** -0.5)),
            "wo": _w((lambda *s: torch.randn(*s, dtype=torch.bfloat16) * 0.1)(D, D)),
        }
    _B_in = _B_setup()

    return {
        "A_x": _A_in["x"],
        "A_wqkv": _A_in["wqkv"],
        "A_wo": _A_in["wo"],
        "B_x": _B_in["x"],
        "B_wqkv": _B_in["wqkv"],
        "B_w_phi": _B_in["w_phi"],
        "B_wo": _B_in["wo"],
    }

def reference(A_x, A_wqkv, A_wo, B_x, B_wqkv, B_w_phi, B_wo):
    def _A_ref(x, wqkv, wo):
        B, S, D = x.shape
        H = 16; Dh = D // H
        qkv = (lambda x, *d: x.permute(*d))((x @ wqkv).reshape(B, S, 3, H, Dh), 2, 0, 3, 1, 4)
        q, k, v = qkv[0], qkv[1], qkv[2]
        scale = Dh ** -0.5
        scores = torch.einsum("bhqd,bhkd->bhqk", q, k) * scale
        p = _softmax(scores, axis=-1)
        o = torch.einsum("bhqk,bhkd->bhqd", p, v)
        return (lambda x, *d: x.permute(*d))(o, 0, 2, 1, 3).reshape(B, S, D) @ wo

    def _B_ref(x, wqkv, w_phi, wo):
        B, S, D = x.shape
        H = 16; Dh = D // H
        qkv = (lambda x, *d: x.permute(*d))((x @ wqkv).reshape(B, S, 3, H, Dh), 2, 0, 3, 1, 4)
        q, k, v = qkv[0], qkv[1], qkv[2]
        pq = torch.einsum("bhsd,hdf->bhsf", q, w_phi)
        pk = torch.einsum("bhsd,hdf->bhsf", k, w_phi)
        phi_q = torch.concatenate([_softmax(pq, axis=-1), _softmax(-pq, axis=-1)], axis=-1)
        phi_k = torch.concatenate([_softmax(pk, axis=-1), _softmax(-pk, axis=-1)], axis=-1)
        kv = torch.einsum("bhsf,bhsd->bhfd", phi_k, v)
        z  = torch.einsum("bhsf->bhf", phi_k)
        num = torch.einsum("bhqf,bhfd->bhqd", phi_q, kv)
        den = torch.einsum("bhqf,bhf->bhq", phi_q, z)[..., None] + 1e-6
        o = num / den
        return (lambda x, *d: x.permute(*d))(o, 0, 2, 1, 3).reshape(B, S, D) @ wo

    a = _A_ref(A_x, A_wqkv, A_wo)
    b = _B_ref(B_x, B_wqkv, B_w_phi, B_wo)
    return torch.concatenate([a, b], axis=-1)
```

```python
import re

TRANS = ('v_exp_f32', 'v_log_f32', 'v_rcp_f32', 'v_rsq_f32', 'v_sqrt_f32', 'v_sin_f32', 'v_cos_f32')


def regs_of(tok):
    tok = tok.strip()
    tok = tok.lstrip('-')
    m = re.fullmatch(r'abs\((.*)\)', tok)
    if m:
        tok = m.group(1)
    m = re.fullmatch(r'\|(.*)\|', tok)
    if m:
        tok = m.group(1)
    m = re.fullmatch(r'([vsa])(\d+)', tok)
    if m:
        return {(m.group(1), int(m.group(2)))}
    m = re.fullmatch(r'([vsa])\[(\d+):(\d+)\]', tok)
    if m:
        return {(m.group(1), i) for i in range(int(m.group(2)), int(m.group(3)) + 1)}
    if tok in ('vcc', 'vcc_lo', 'vcc_hi'):
        return {('x', 'vcc')}
    if tok in ('exec', 'exec_lo', 'exec_hi'):
        return {('x', 'exec')}
    if tok == 'm0':
        return {('x', 'm0')}
    return set()


class Ins:
    def __init__(self, text):
        self.text = text
        t = text.split(';')[0].strip()
        self.label = None
        self.op = None
        self.directive = False
        self.w = set()
        self.r = set()
        self.ab = set()
        self.c = set()
        self.stdata = set()
        self.target = None
        if not t:
            self.directive = True
            return
        if t.endswith(':'):
            self.label = t[:-1]
            return
        if t.startswith('.'):
            self.directive = True
            return
        p = t.split(None, 1)
        op = self.op = p[0]
        rest = p[1] if len(p) > 1 else ''
        toks = [x.strip() for x in re.split(r',(?![^\[]*\])', rest)] if rest else []
        mods = ''
        if toks:
            q = toks[-1].split(None, 1)
            toks[-1] = q[0]
            mods = q[1] if len(q) > 1 else ''
        self.mods = mods
        R = [regs_of(x) for x in toks]
        U = lambda l: set().union(*l) if l else set()
        self.valu = op.startswith('v_') and not op.startswith(('v_mfma', 'v_smfmac'))
        self.mfma = op.startswith(('v_mfma', 'v_smfmac'))
        self.trans = op.startswith(TRANS)
        self.vmem = op.startswith(('buffer_', 'global_'))
        self.ds = op.startswith('ds_')
        self.salu = op.startswith('s_')
        if op.startswith('v_mfma'):
            self.w = R[0]; self.ab = R[1] | R[2]; self.c = R[3]; self.r = self.ab | self.c
        elif op.startswith('v_smfmac'):
            self.w = R[0]; self.ab = R[1] | R[2] | R[3]; self.c = set(R[0]); self.r = self.ab | self.c
        elif op.startswith('v_permlane') and 'swap' in op:
            self.w = R[0] | R[1]; self.r = R[0] | R[1]
        elif op.startswith(('v_fmac', 'v_pk_fmac', 'v_writelane')):
            self.w = R[0]; self.r = U(R)
        elif op.startswith(('v_add_co', 'v_addc_co', 'v_sub_co')):
            self.w = R[0] | R[1]; self.r = U(R[2:])
        elif op.startswith('v_cmpx'):
            self.w = R[0] | {('x', 'exec')}; self.r = U(R[1:])
        elif op == 'v_nop':
            pass
        elif op.startswith('v_'):
            self.w = R[0]; self.r = U(R[1:])
        elif op.startswith('ds_read'):
            self.w = R[0]; self.r = U(R[1:])
        elif op.startswith('ds_'):
            self.r = U(R)
        elif op.startswith(('buffer_load', 'global_load')):
            if ' lds' in ' ' + mods or op.startswith('global_load_lds'):
                self.r = U(R) | {('x', 'm0')}
                self.ldsdma = True
            else:
                self.w = R[0]; self.r = U(R[1:])
        elif op.startswith('buffer_store'):
            self.r = U(R)
            if op.endswith(('x3', 'x4')):
                self.stdata = R[0]
        elif op.startswith('global_store'):
            self.r = U(R)
            if op.endswith(('x3', 'x4')):
                self.stdata = R[1]
        elif op.startswith(('buffer_atomic', 'global_atomic')):
            self.r = U(R)
            if 'sc0' in mods:
                self.w = R[0]
        elif op.startswith(('s_cbranch', 's_branch')):
            self.target = toks[0]
            if 'vcc' in op:
                self.r = {('x', 'vcc')}
            if 'exec' in op:
                self.r = {('x', 'exec')}
        elif op.startswith(('s_cmp', 's_waitcnt', 's_nop', 's_barrier', 's_setprio', 's_sleep', 's_endpgm', 's_bitcmp')):
            self.r = U(R)
        elif op.startswith('s_'):
            self.w = R[0] if R else set(); self.r = U(R[1:])
            if 'saveexec' in op:
                self.w = self.w | {('x', 'exec')}
        self.toks = toks

    def states(self):
        if self.op is None:
            return 0
        if self.op == 's_nop':
            return int(self.toks[0], 0) + 1
        return 1

    def passes(self):
        if '32x32' in self.op:
            return 8
        return 4


def need(prod, cons):
    n = 0
    vw = {x for x in prod.w if x[0] in 'va'}
    sw = {x for x in prod.w if x[0] == 's' or x == ('x', 'vcc')}
    if prod.valu:
        if cons.mfma and (vw & cons.r):
            n = max(n, 2)
        if cons.op.startswith('v_permlane') and (vw & cons.r):
            n = max(n, 2)
        if cons.op.startswith(('v_readlane', 'v_readfirstlane')) and (vw & cons.r):
            n = max(n, 1)
        if prod.trans and cons.valu and not cons.trans and (vw & cons.r):
            n = max(n, 1)
        if 'dpp' in cons.op or 'row_' in cons.mods or 'quad_perm' in cons.mods:
            if vw & cons.r:
                n = max(n, 2)
        if cons.vmem and (sw & cons.r):
            n = max(n, 5)
        if cons.valu and (sw & cons.r):
            n = max(n, 4 if cons.op.startswith(('v_readlane', 'v_writelane')) else 2)
        if ('x', 'exec') in prod.w and (cons.mfma or cons.op.startswith(('v_permlane', 'v_readlane', 'v_readfirstlane'))):
            n = max(n, 4)
        if ('sdwa' in prod.op or 'op_sel' in prod.mods) and cons.valu and (vw & (cons.r | cons.w)):
            n = max(n, 1)
        if cons.salu and (sw & cons.r):
            n = max(n, 1)
    if prod.mfma:
        p8 = prod.passes() == 8
        if cons.mfma:
            if prod.w & cons.ab:
                n = max(n, 12 if p8 else 8)
            if prod.w & cons.c:
                if not (prod.w == cons.c and prod.passes() == cons.passes()):
                    n = max(n, 10 if p8 else 6)
            elif prod.w & cons.w:
                n = max(n, 0)
        elif (cons.valu or cons.vmem or cons.ds) and (prod.w & (cons.r | cons.w)):
            n = max(n, 12 if p8 else 8)
        if cons.valu and (prod.c & cons.w):
            n = max(n, 7 if p8 else 3)
    if prod.salu and ('x', 'm0') in prod.w and getattr(cons, 'ldsdma', False):
        n = max(n, 1)
    if prod.stdata and (prod.stdata & cons.w):
        n = max(n, 2 if cons.valu else 1)
    return n


class Asm:
    def __init__(self):
        self.lines = []

    def __call__(self, text):
        for ln in text.split('\n'):
            ln = ln.strip()
            if ln:
                self.lines.append(ln)

    def fix_hazards(self, verbose=False):
        total = 0
        while True:
            ins = [Ins(x) for x in self.lines]
            labels = {i.label: k for k, i in enumerate(ins) if i.label}
            preds = [[] for _ in ins]
            for k, i in enumerate(ins):
                if k + 1 < len(ins) and i.op not in ('s_branch', 's_endpgm'):
                    preds[k + 1].append(k)
                if i.target is not None:
                    preds[labels[i.target]].append(k)
            fix = None
            for k, c in enumerate(ins):
                if c.op is None or c.op in ('s_nop',):
                    continue
                worst = 0
                stack = [(p, 0) for p in preds[k]]
                seen = {}
                while stack:
                    p, d = stack.pop()
                    if d >= 12 or seen.get(p, 99) <= d:
                        continue
                    seen[p] = d
                    pi = ins[p]
                    if pi.op is not None:
                        n = need(pi, c)
                        if n - d > worst:
                            worst = n - d; why = pi.text
                    for q in preds[p]:
                        stack.append((q, d + pi.states()))
                if worst > 0:
                    fix = (k, worst, why)
                    break
            if fix is None:
                break
            k, worst, why = fix
            if verbose:
                print(f'  nop {worst} before [{self.lines[k]}] after [{why}]')
            self.lines.insert(k, f's_nop {worst - 1}')
            total += 1
        return total

    def text(self):
        out = []
        for ln in self.lines:
            if ln.endswith(':') or ln.startswith('.'):
                out.append(ln)
            else:
                out.append('    ' + ln)
        return '\n'.join(out) + '\n'


def vr(a, n=1):
    return f'v{a}' if n == 1 else f'v[{a}:{a + n - 1}]'


def sr(a, n=1):
    return f's{a}' if n == 1 else f's[{a}:{a + n - 1}]'
```

```python
import sys, math, struct
from asmlib import Asm, vr, sr

NAME = 'concat_heads__softmax_full_mha__linear_kernel_hedgehog__prompt'
OPT = dict(rot=0, stamps=0, force_fb=0, spin=1 << 16)
for a in sys.argv[2:]:
    k, v = a.split('=')
    OPT[k] = int(v, 0)


def f32(x):
    return '0x%08x' % struct.unpack('<I', struct.pack('<f', x))[0]


LOG2E = 1.4426950408889634
QSCALE = LOG2E / math.sqrt(28.0)

WS_QA, WS_KV, WS_QB, WS_KVP, WS_O, WS_FL, WS_ST, WS_END = 0, 0x200000, 0x600000, 0x800000, 0xA00000, 0xE00000, 0xF00000, 0x1000000
FLINE = 256
sX, sW, sWS, sDBG, sPHI, sWO, sOUT = 24, 28, 32, 36, 40, 44, 48
sWv, sXc, sJ, sB, sRB1, sCG, sH, sRB = 52, 53, 54, 55, 56, 57, 58, 59
sT = 60
sC, sSlotRd, sSlotWr, sKC, sXbase, sWbase, sXo, sWo = 70, 71, 72, 73, 74, 75, 76, 77
sL = 78
sRT, sHH = 80, 81
sSpin = 82
sFB = 83
sKVo = 84
sBr = 85
sHi = 86
sOnesM = 88
sStamp = 90
sM0 = 92
vL, vLin, vH = 1, 2, 3
vT = 4

A = Asm()
stamp_n = [0]


def stamp(name):
    if not OPT['stamps']:
        return
    i = stamp_n[0]
    stamp_n[0] += 1
    STAMPS.append(name)
    A(f'''
    s_memrealtime s[{sStamp}:{sStamp + 1}]
    s_waitcnt lgkmcnt(0)
    v_writelane_b32 v255, s{sStamp}, {i}
    ''')


STAMPS = []


def poll(tag, addr_s, execlo, exechi, vaddr):
    A(f'''
    s_mov_b32 exec_lo, {execlo}
    s_mov_b32 exec_hi, {exechi}
    s_mov_b32 s{sSpin}, {OPT['spin']}
    L_poll_{tag}:
    buffer_load_dword v{vT}, v{vaddr}, {sr(sWS, 4)}, s{addr_s} offen sc1
    s_sub_u32 s{sSpin}, s{sSpin}, 1
    s_cmp_eq_u32 s{sSpin}, 0
    s_cbranch_scc1 L_pollx_{tag}
    s_waitcnt vmcnt(0)
    v_cmp_ne_u32 vcc, 1, v{vT}
    s_cbranch_vccnz L_poll_{tag}
    L_pollx_{tag}:
    s_waitcnt vmcnt(0)
    s_mov_b64 exec, -1
    ''')


def srd(d, base, nbytes):
    A(f'''
    s_mov_b32 s{d}, s{base}
    s_mov_b32 s{d + 1}, s{base + 1}
    s_mov_b32 s{d + 2}, {nbytes}
    s_mov_b32 s{d + 3}, 0x20000
    ''')


def cvt8(dst, src):
    for i in range(8):
        A(f'v_cvt_pk_bf16_f32 v{dst + i}, v{src + 2 * i}, v{src + 2 * i + 1}')


def features(X, Ep, En, t):
    mx, nm = t, t + 2
    A(f's_mov_b64 exec, {sr(sHi, 2)}')
    for r in range(12, 16):
        A(f'v_mov_b32 v{X + r}, v{X + 11}')
    A('s_mov_b64 exec, -1')
    A(f'v_max3_f32 v{mx}, v{X}, v{X + 1}, v{X + 2}')
    A(f'v_max3_f32 v{nm}, -v{X}, -v{X + 1}, -v{X + 2}')
    for r in range(3, 15, 2):
        A(f'v_max3_f32 v{mx}, v{mx}, v{X + r}, v{X + r + 1}')
        A(f'v_max3_f32 v{nm}, v{nm}, -v{X + r}, -v{X + r + 1}')
    A(f'v_max_f32 v{mx}, v{mx}, v{X + 15}')
    A(f'v_max_f32_e64 v{nm}, v{nm}, -v{X + 15}')
    A(f'v_permlane32_swap_b32 v{mx}, v{nm}')
    A(f'v_max_f32 v{mx}, v{mx}, v{nm}')
    A(f'v_mul_f32_e64 v{mx}, -v{mx}, s{sL}')
    A(f'v_mov_b32 v{nm}, v{mx}')
    A(f'v_permlane32_swap_b32 v{mx}, v{nm}')
    for r in range(0, 16, 2):
        A(f'v_pk_fma_f32 {vr(Ep + r, 2)}, {vr(X + r, 2)}, {sr(sL, 2)}, {vr(mx, 2)} op_sel_hi:[1,1,0]')
        A(f'v_pk_fma_f32 {vr(En + r, 2)}, {vr(X + r, 2)}, {sr(sL, 2)}, {vr(nm, 2)} op_sel_hi:[1,1,0] neg_lo:[1,0,0] neg_hi:[1,0,0]')
    for r in range(16):
        A(f'v_exp_f32 v{Ep + r}, v{Ep + r}')
    for r in range(16):
        A(f'v_exp_f32 v{En + r}, v{En + r}')
    A(f's_mov_b64 exec, {sr(sHi, 2)}')
    for r in range(12, 16):
        A(f'v_mov_b32 v{Ep + r}, 0')
        A(f'v_mov_b32 v{En + r}, 0')
    A('s_mov_b64 exec, -1')


A(f'''
s_cmp_ge_u32 s2, 256
s_cbranch_scc1 L_end
s_load_dwordx16 s[4:19], s[0:1], 0
s_load_dwordx4 s[20:23], s[0:1], 64
''')
if OPT['stamps']:
    A('v_mov_b32 v255, 0')
stamp('start')
vXg0, vXg1, vWg = 16, 17, 18
vXl, vWl = 21, 25
vXb, vWb = 28, 32
vFA, vFB = 36, 52
vAcc = 68
SLOT = 40960
MISC1 = 3 * SLOT
A(f'''
v_lshrrev_b32 v{vT}, 6, v0
v_and_b32 v{vL}, 63, v0
v_readfirstlane_b32 s{sWv}, v{vT}
v_lshlrev_b32 v{vLin}, 4, v{vL}
v_lshrrev_b32 v{vH}, 5, v{vL}
s_and_b32 s{sXc}, s2, 7
s_lshr_b32 s{sJ}, s2, 3
s_lshr_b32 s{sB}, s{sXc}, 2
s_and_b32 s{sT}, s{sXc}, 2
s_lshl_b32 s{sT}, s{sT}, 2
s_and_b32 s{sRB1}, s{sJ}, 7
s_add_u32 s{sRB1}, s{sRB1}, s{sT}
s_and_b32 s{sT}, s{sXc}, 1
s_lshl_b32 s{sT}, s{sT}, 2
s_lshr_b32 s{sCG}, s{sJ}, 3
s_add_u32 s{sCG}, s{sCG}, s{sT}
s_and_b32 s{sRT}, s{sWv}, 3
s_lshr_b32 s{sHH}, s{sWv}, 2
s_mul_i32 s{sXbase}, s{sRB1}, {128 * 896}
s_cmp_eq_u32 s{sB}, 0
s_cselect_b32 s{sT}, 3, 1
s_cselect_b32 s{sT + 1}, 1, 8
s_mul_i32 s{sT}, s{sT}, 112
s_mul_i32 s{sT + 1}, s{sT + 1}, 112
s_mul_i32 s{sWbase}, s{sCG}, s{sT}
v_lshrrev_b32 v{vT}, 3, v{vL}
s_lshl_b32 s{sT + 2}, s{sWv}, 4
v_add_u32 v{vT + 1}, s{sT + 2}, v{vT}
v_mul_u32_u24 v{vT + 1}, 896, v{vT + 1}
v_lshrrev_b32 v{vT + 2}, 4, v{vL}
v_and_b32 v{vT + 3}, 7, v{vL}
v_xor_b32 v{vT + 2}, v{vT + 2}, v{vT + 3}
v_lshl_add_u32 v{vXg0}, v{vT + 2}, 4, v{vT + 1}
v_xor_b32 v{vT + 2}, 4, v{vT + 2}
v_lshl_add_u32 v{vXg1}, v{vT + 2}, 4, v{vT + 1}
v_add_u32 v{vXg1}, {8 * 896 - 1024}, v{vXg1}
s_lshl_b32 s{sT + 2}, s{sWv}, 3
v_bfe_u32 v{vT + 4}, v{vL}, 2, 1
v_and_b32 v{vT + 5}, 3, v{vL}
''')
for i in range(3):
    A(f'''
    v_add_u32 v{vT + 1}, {8 * i}, v{vT}
    v_mul_u32_u24 v{vT + 2}, 11, v{vT + 1}
    v_lshrrev_b32 v{vT + 2}, 5, v{vT + 2}
    v_mul_u32_u24 v{vT + 3}, 3, v{vT + 2}
    v_sub_u32 v{vT + 1}, v{vT + 1}, v{vT + 3}
    v_mul_u32_u24 v{vT + 1}, s{sT + 1}, v{vT + 1}
    v_bfe_u32 v{vT + 3}, v{vT + 2}, 1, 1
    v_xor_b32 v{vT + 3}, v{vT + 3}, v{vT + 4}
    v_mad_u32_u24 v{vT + 3}, v{vT + 3}, 3, v{vT + 5}
    v_lshl_add_u32 v{vT + 1}, v{vT + 3}, 4, v{vT + 1}
    v_add_u32 v{vT + 2}, s{sT + 2}, v{vT + 2}
    v_mul_u32_u24 v{vT + 2}, 2688, v{vT + 2}
    v_add_u32 v{vT + 2}, v{vT + 2}, v{vT + 1}
    v_subrev_u32 v{vWg + i}, {1024 * i}, v{vT + 2}
    ''')
if OPT['rot']:
    A(f'''
    s_add_u32 s{sKC}, s{sRB1}, s{sCG}
    s_mul_i32 s{sT + 2}, s{sKC}, 37
    s_lshr_b32 s{sT + 2}, s{sT + 2}, 8
    s_mul_i32 s{sT + 2}, s{sT + 2}, 7
    s_sub_u32 s{sKC}, s{sKC}, s{sT + 2}
    ''')
else:
    A(f's_mov_b32 s{sKC}, 0')
A(f'''
s_mov_b32 s{sSlotWr}, 0
s_waitcnt lgkmcnt(0)
s_cmp_eq_u32 s{sB}, 0
s_cselect_b32 s{sX}, s4, s10
s_cselect_b32 s{sX + 1}, s5, s11
s_cselect_b32 s{sW}, s6, s12
s_cselect_b32 s{sW + 1}, s7, s13
s_mov_b32 s{sX + 2}, {2048 * 896}
s_mov_b32 s{sX + 3}, 0x20000
s_mov_b32 s{sW + 2}, {448 * 2688}
s_mov_b32 s{sW + 3}, 0x20000
''')


def p1_issue():
    A(f'''
    s_lshl_b32 s{sXo}, s{sKC}, 7
    s_add_u32 s{sXo}, s{sXo}, s{sXbase}
    s_mul_i32 s{sWo}, s{sKC}, {64 * 2688}
    s_add_u32 s{sWo}, s{sWo}, s{sWbase}
    s_lshl_b32 s{sM0}, s{sWv}, 11
    s_add_u32 m0, s{sM0}, s{sSlotWr}
    s_mul_i32 s{sM0}, s{sWv}, 3072
    buffer_load_dwordx4 v{vXg0}, {sr(sX, 4)}, s{sXo} offen lds
    buffer_load_dwordx4 v{vXg1}, {sr(sX, 4)}, s{sXo} offen offset:1024 lds
    s_add_u32 s{sM0}, s{sM0}, s{sSlotWr}
    s_add_u32 m0, s{sM0}, 16384
    s_add_u32 s{sKC}, s{sKC}, 1
    buffer_load_dwordx4 v{vWg}, {sr(sW, 4)}, s{sWo} offen lds
    buffer_load_dwordx4 v{vWg + 1}, {sr(sW, 4)}, s{sWo} offen offset:1024 lds
    buffer_load_dwordx4 v{vWg + 2}, {sr(sW, 4)}, s{sWo} offen offset:2048 lds
    s_cmp_eq_u32 s{sKC}, 7
    s_cselect_b32 s{sKC}, 0, s{sKC}
    s_add_u32 s{sSlotWr}, s{sSlotWr}, {SLOT}
    s_cmp_eq_u32 s{sSlotWr}, {3 * SLOT}
    s_cselect_b32 s{sSlotWr}, 0, s{sSlotWr}
    ''')


A(f's_mov_b32 s{sC}, 0')
A('L_pro:')
p1_issue()
A(f'''
s_add_u32 s{sC}, s{sC}, 1
s_cmp_lt_u32 s{sC}, 3
s_cbranch_scc1 L_pro
''')
srd(sWS, 22, WS_END)
srd(sDBG, 20, 256)
srd(sPHI, 14, 16 * 1568)
srd(sOUT, 18, 2048 * 1792)
A(f'''
s_mov_b32 s{sL}, {f32(LOG2E)}
s_mov_b32 s{sL + 1}, {f32(LOG2E)}
s_mov_b32 s{sHi}, 0
s_mov_b32 s{sHi + 1}, -1
s_mov_b32 s{sOnesM}, 0x10000000
s_mov_b32 s{sOnesM + 1}, 0x10000000
s_lshr_b32 s{sH}, s{sJ}, 4
s_lshl_b32 s{sT}, s{sXc}, 1
s_add_u32 s{sH}, s{sH}, s{sT}
s_and_b32 s{sRB}, s{sJ}, 15
s_mov_b32 s{sFB}, 0
''')
A(f'''
s_cmp_eq_u32 s{sWv}, 7
s_cbranch_scc0 L_nopf
s_getpc_b64 s[{sT}:{sT + 1}]
L_pc:
s_lshl_b32 s{sT + 2}, s{sJ}, 10
s_cmp_lt_u32 s{sT + 2}, L_end-L_pc
s_cbranch_scc0 L_nopf
s_add_u32 s{sT}, s{sT}, s{sT + 2}
s_addc_u32 s{sT + 1}, s{sT + 1}, 0
global_load_dword v{vT + 6}, v{vLin}, s[{sT}:{sT + 1}]
L_nopf:
s_cmp_eq_u32 s{sWv}, 6
s_cbranch_scc0 L_noinit
s_cmp_eq_u32 s{sJ}, 0
s_cbranch_scc0 L_noinit
v_mov_b32 v{vT + 4}, 0
v_mov_b32 v{vT + 5}, 0
v_mov_b32 v{vT + 6}, 0
v_mov_b32 v{vT + 7}, 0
s_mul_i32 s{sT}, s{sXc}, {8 * FLINE}
s_add_u32 s{sT}, s{sT}, {WS_FL}
buffer_store_dwordx4 {vr(vT + 4, 4)}, v{vLin}, {sr(sWS, 4)}, s{sT} offen sc1
buffer_store_dwordx4 {vr(vT + 4, 4)}, v{vLin}, {sr(sWS, 4)}, s{sT} offen offset:1024 sc1
s_waitcnt vmcnt(0)
v_mov_b32 v{vT + 5}, 1
s_lshl_b32 s{sT}, s{sXc}, 2
s_mov_b64 exec, 1
buffer_store_dword v{vT + 5}, v{vT + 4}, {sr(sDBG, 4)}, s{sT} offen sc1
s_mov_b64 exec, -1
L_noinit:
''')
assert 8 * FLINE == 2048
A(f'''
s_cmp_eq_u32 s{sB}, 0
s_cbranch_scc1 L_nophi
s_cmp_ge_u32 s{sWv}, 4
s_cbranch_scc1 L_nophi
s_lshl_b32 s{sT}, s{sWv}, 10
s_add_u32 m0, s{sT}, {MISC1}
s_mul_i32 s{sT + 1}, s{sCG}, 3136
s_add_u32 s{sT}, s{sT}, s{sT + 1}
buffer_load_dwordx4 v{vLin}, {sr(sPHI, 4)}, s{sT} offen lds
L_nophi:
''')
A(f'''
v_and_b32 v{vT}, 31, v{vL}
v_bfe_u32 v{vT + 1}, v{vL}, 1, 3
v_xor_b32 v{vT + 1}, v{vT + 1}, v{vH}
v_lshlrev_b32 v{vT + 1}, 4, v{vT + 1}
s_lshl_b32 s{sT}, s{sRT}, 5
v_add_u32 v{vT}, s{sT}, v{vT}
v_lshl_add_u32 v{vXb}, v{vT}, 7, v{vT + 1}
v_xor_b32 v{vXb + 1}, 32, v{vXb}
v_xor_b32 v{vXb + 2}, 64, v{vXb}
v_xor_b32 v{vXb + 3}, 0x60, v{vXb}
v_bfe_u32 v{vT}, v{vL}, 2, 2
v_lshl_add_u32 v{vT + 1}, v{vH}, 3, v{vT}
v_mul_u32_u24 v{vT + 1}, 384, v{vT + 1}
v_lshrrev_b32 v{vT}, 1, v{vT}
v_bfe_u32 v{vT + 2}, v{vL}, 4, 1
v_and_b32 v{vT + 3}, 3, v{vL}
v_lshl_add_u32 v{vT + 2}, v{vT + 2}, 2, v{vT + 3}
''')
for i in range(3):
    A(f'''
    s_mul_i32 s{sT}, s{sHH}, 3
    s_add_u32 s{sT}, s{sT}, {i}
    s_add_u32 s{sT + 1}, s{sHH}, {2 * i}
    s_cmp_eq_u32 s{sB}, 0
    s_cselect_b32 s{sT}, s{sT}, s{sT + 1}
    s_and_b32 s{sT + 1}, s{sT}, 1
    s_lshr_b32 s{sT}, s{sT}, 1
    s_lshl_b32 s{sT}, s{sT}, 7
    s_add_u32 s{sT}, s{sT}, 16384
    v_add_u32 v{vT + 3}, s{sT + 1}, v{vT + 2}
    v_and_b32 v{vT + 3}, 7, v{vT + 3}
    v_xor_b32 v{vT + 4}, s{sT + 1}, v{vT}
    v_lshl_add_u32 v{vT + 3}, v{vT + 4}, 3, v{vT + 3}
    v_lshl_add_u32 v{vT + 3}, v{vT + 3}, 3, v{vT + 1}
    v_add_u32 v{vWb + i}, s{sT}, v{vT + 3}
    ''')
for i in range(48):
    A(f'v_mov_b32 v{vAcc + i}, 0')
A(f'''
s_mov_b32 s{sC}, 0
s_mov_b32 s{sSlotRd}, 0
s_lshl_b32 s{sT}, s{sCG}, 1
s_add_u32 s{sT}, s{sT}, s{sHH}
s_cmp_eq_u32 s{sB}, 0
s_cselect_b32 s{sT}, s{sT}, 10
s_waitcnt vmcnt(10)
''')
stamp('p1_first')
A(f'''
s_cmp_eq_u32 s{sT}, 10
s_cbranch_scc1 L_p1_TTN
s_cmp_gt_u32 s{sT}, 10
s_cbranch_scc1 L_p1_NNN
''')


def p1_reads(s, F):
    A(f'ds_read_b128 {vr(F, 4)}, v{vXl + s}')
    for i in range(3):
        for u in range(2):
            A(f'ds_read_b64_tr_b16 {vr(F + 4 + 4 * i + 2 * u, 2)}, v{vWl + i} offset:{(16 * s + 4 * u) * 384}')


def p1_mfma(F, var):
    for i in range(3):
        w, x, acc = vr(F + 4 + 4 * i, 4), vr(F, 4), vr(vAcc + 16 * i, 16)
        a, b = (w, x) if var[i] == 'T' else (x, w)
        A(f'v_mfma_f32_32x32x16_bf16 {acc}, {a}, {b}, {acc}')


for var in ('TTT', 'TTN', 'NNN'):
    A(f'L_p1_{var}:')
    for i in range(4):
        A(f'v_add_u32 v{vXl + i}, s{sSlotRd}, v{vXb + i}')
    for i in range(3):
        A(f'v_add_u32 v{vWl + i}, s{sSlotRd}, v{vWb + i}')
    A('s_barrier')
    p1_reads(0, vFA)
    p1_reads(1, vFB)
    A(f'''
    s_sub_u32 s{sT}, s{sC}, 1
    s_cmp_lt_u32 s{sT}, 4
    s_cbranch_scc0 L_p1_ni_{var}
    ''')
    p1_issue()
    A(f'L_p1_ni_{var}:')
    A('s_waitcnt lgkmcnt(7)')
    p1_mfma(vFA, var)
    p1_reads(2, vFA)
    A('s_waitcnt lgkmcnt(7)')
    p1_mfma(vFB, var)
    p1_reads(3, vFB)
    A('s_waitcnt lgkmcnt(7)')
    p1_mfma(vFA, var)
    A('s_waitcnt lgkmcnt(0)')
    p1_mfma(vFB, var)
    A(f'''
    s_add_u32 s{sSlotRd}, s{sSlotRd}, {SLOT}
    s_cmp_eq_u32 s{sSlotRd}, {3 * SLOT}
    s_cselect_b32 s{sSlotRd}, 0, s{sSlotRd}
    s_add_u32 s{sC}, s{sC}, 1
    s_cmp_eq_u32 s{sC}, 7
    s_cbranch_scc1 L_p1_done
    s_waitcnt vmcnt(5)
    s_cmp_eq_u32 s{sC}, 6
    s_cbranch_scc0 L_p1_{var}
    s_waitcnt vmcnt(0)
    s_branch L_p1_{var}
    ''')
A('L_p1_done:')
stamp('p1_done')
vP = 36
A(f'''
s_lshl_b32 s{sT + 4}, s{sRB1}, 2
s_add_u32 s{sT + 4}, s{sT + 4}, s{sRT}
s_cmp_eq_u32 s{sB}, 0
s_cbranch_scc0 L_epiB
''')
A(f'''
v_and_b32 v{vT}, 0x33, v{vL}
v_bfe_u32 v{vT + 1}, v{vL}, 2, 1
v_bfe_u32 v{vT + 2}, v{vL}, 3, 1
v_lshl_add_u32 v{vT}, v{vT + 1}, 3, v{vT}
v_lshl_add_u32 v{vT}, v{vT + 2}, 2, v{vT}
v_lshlrev_b32 v{vT}, 4, v{vT}
s_mov_b32 s{sT + 6}, {f32(QSCALE)}
s_mov_b32 s{sT + 7}, {f32(QSCALE)}
''')
for i in range(3):
    acc, P = vAcc + 16 * i, vP + 8 * i
    A(f'''
    s_lshl_b32 s{sT}, s{sCG}, 1
    s_add_u32 s{sT}, s{sT}, s{sHH}
    s_mul_i32 s{sT}, s{sT}, 3
    s_add_u32 s{sT}, s{sT}, {i}
    s_and_b32 s{sT + 1}, s{sT}, 15
    s_lshl_b32 s{sT + 1}, s{sT + 1}, 6
    s_add_u32 s{sT + 1}, s{sT + 1}, s{sT + 4}
    s_cmp_ge_u32 s{sT}, 16
    s_cbranch_scc1 L_eA_kv{i}
    ''')
    for r in range(0, 16, 2):
        A(f'v_pk_mul_f32 {vr(acc + r, 2)}, {vr(acc + r, 2)}, {sr(sT + 6, 2)}')
    cvt8(P, acc)
    A(f'''
    s_lshl_b32 s{sT + 1}, s{sT + 1}, 11
    s_mov_b64 exec, {sr(sHi, 2)}
    v_mov_b32 v{P + 6}, 0
    v_mov_b32 v{P + 7}, 0
    s_mov_b64 exec, -1
    buffer_store_dwordx4 {vr(P, 4)}, v{vLin}, {sr(sWS, 4)}, s{sT + 1} offen sc1
    buffer_store_dwordx4 {vr(P + 4, 4)}, v{vLin}, {sr(sWS, 4)}, s{sT + 1} offen offset:1024 sc1
    s_branch L_eA_n{i}
    L_eA_kv{i}:
    ''')
    cvt8(P, acc)
    A(f'''
    s_lshl_b32 s{sT + 1}, s{sT + 1}, 12
    s_add_u32 s{sT + 1}, s{sT + 1}, {WS_KV}
    s_cmp_ge_u32 s{sT}, 32
    s_cbranch_scc1 L_eA_v{i}
    s_mov_b64 exec, {sr(sHi, 2)}
    v_mov_b32 v{P + 6}, 0x3f803f80
    v_mov_b32 v{P + 7}, 0x3f80
    s_mov_b64 exec, -1
    buffer_store_dwordx4 {vr(P, 4)}, v{vT}, {sr(sWS, 4)}, s{sT + 1} offen sc1
    buffer_store_dwordx4 {vr(P + 4, 4)}, v{vT}, {sr(sWS, 4)}, s{sT + 1} offen offset:1024 sc1
    s_branch L_eA_n{i}
    L_eA_v{i}:
    s_mov_b64 exec, {sr(sOnesM, 2)}
    ''')
    for r in range(8):
        A(f'v_mov_b32 v{P + r}, 0x3f803f80')
    A(f'''
    s_mov_b64 exec, -1
    buffer_store_dwordx4 {vr(P, 4)}, v{vLin}, {sr(sWS, 4)}, s{sT + 1} offen offset:2048 sc1
    buffer_store_dwordx4 {vr(P + 4, 4)}, v{vLin}, {sr(sWS, 4)}, s{sT + 1} offen offset:3072 sc1
    L_eA_n{i}:
    ''')
A(f'''
s_mul_i32 s{sT}, s{sCG}, 3
v_add_u32 v{vT}, s{sT}, v{vL}
v_and_b32 v{vT + 1}, 7, v{vT}
v_lshrrev_b32 v{vT}, 3, v{vT}
v_lshl_add_u32 v{vT}, v{vT + 1}, 3, v{vT}
v_lshlrev_b32 v{vT + 2}, 8, v{vT}
s_mov_b32 s{sT + 5}, 7
s_branch L_sig1
''')
PHI_IMG, V_IMG = SLOT, 2 * SLOT
vWF, vX, vEp, vEn = 60, 116, 132, 148
A('L_epiB:')
A(f'''
v_bfe_u32 v{vT}, v{vL}, 2, 2
v_lshl_add_u32 v{vT}, v{vH}, 2, v{vT}
v_mul_u32_u24 v{vT + 1}, 56, v{vT}
v_bfe_u32 v{vT + 2}, v{vL}, 4, 1
v_and_b32 v{vT + 3}, 3, v{vL}
v_lshl_add_u32 v{vT + 2}, v{vT + 2}, 2, v{vT + 3}
v_lshl_add_u32 v{vT + 1}, v{vT + 2}, 3, v{vT + 1}
s_mul_i32 s{sT}, s{sHH}, 1568
s_add_u32 s{sT}, s{sT}, {MISC1}
v_add_u32 v{vT + 1}, s{sT}, v{vT + 1}
''')
for q in range(4):
    A(f'ds_read_b64_tr_b16 {vr(vWF + 2 * q, 2)}, v{vT + 1} offset:{8 * q * 56}')
cvt8(vP + 8, vAcc + 16)
cvt8(vP, vAcc)
A(f'''
s_mov_b64 exec, {sr(sHi, 2)}
v_mov_b32 v{vP + 14}, 0
v_mov_b32 v{vP + 15}, 0
v_mov_b32 v{vP + 6}, 0
v_mov_b32 v{vP + 7}, 0
s_mov_b64 exec, -1
s_lshl_b32 s{sT + 3}, s{sCG}, 1
s_add_u32 s{sT + 3}, s{sT + 3}, s{sHH}
s_lshl_b32 s{sT + 1}, s{sT + 3}, 6
s_add_u32 s{sT + 1}, s{sT + 1}, s{sT + 4}
s_lshl_b32 s{sT + 1}, s{sT + 1}, 11
s_add_u32 s{sT + 1}, s{sT + 1}, {WS_QB}
s_waitcnt lgkmcnt(0)
v_mfma_f32_32x32x16_bf16 {vr(vX, 16)}, {vr(vWF, 4)}, {vr(vP + 8, 4)}, 0
v_mfma_f32_32x32x16_bf16 {vr(vX, 16)}, {vr(vWF + 4, 4)}, {vr(vP + 12, 4)}, {vr(vX, 16)}
buffer_store_dwordx4 {vr(vP, 4)}, v{vLin}, {sr(sWS, 4)}, s{sT + 1} offen sc1
buffer_store_dwordx4 {vr(vP + 4, 4)}, v{vLin}, {sr(sWS, 4)}, s{sT + 1} offen offset:1024 sc1
''')
cvt8(vP + 16, vAcc + 32)
A(f's_mov_b64 exec, {sr(sOnesM, 2)}')
for r in range(8):
    A(f'v_mov_b32 v{vP + 16 + r}, 0x3f803f80')
A(f'''
s_mov_b64 exec, -1
s_lshl_b32 s{sT}, s{sWv}, 11
s_add_u32 s{sT}, s{sT}, {V_IMG}
v_add_u32 v{vT + 1}, s{sT}, v{vLin}
ds_write_b128 v{vT + 1}, {vr(vP + 16, 4)}
ds_write_b128 v{vT + 1}, {vr(vP + 20, 4)} offset:1024
''')
features(vX, vEp, vEn, vT + 4)
sp, sn = vT + 4, vT + 6
A(f'v_pk_add_f32 {vr(sp, 2)}, {vr(vEp, 2)}, {vr(vEp + 2, 2)}')
A(f'v_pk_add_f32 {vr(sn, 2)}, {vr(vEn, 2)}, {vr(vEn + 2, 2)}')
for r in range(4, 16, 2):
    A(f'v_pk_add_f32 {vr(sp, 2)}, {vr(sp, 2)}, {vr(vEp + r, 2)}')
    A(f'v_pk_add_f32 {vr(sn, 2)}, {vr(sn, 2)}, {vr(vEn + r, 2)}')
A(f'''
v_add_f32 v{sp}, v{sp}, v{sp + 1}
v_add_f32 v{sn}, v{sn}, v{sn + 1}
v_permlane32_swap_b32 v{sp}, v{sn}
v_add_f32 v{sp}, v{sp}, v{sn}
v_rcp_f32 v{sp}, v{sp}
v_and_b32 v{vT}, 31, v{vL}
v_bfe_u32 v{vT + 1}, v{vL}, 1, 2
v_lshlrev_b32 v{vT + 2}, 1, v{vH}
v_xor_b32 v{vT + 1}, v{vT + 1}, v{vT + 2}
v_mov_b32 v{sn}, v{sp}
v_lshlrev_b32 v{vT + 1}, 4, v{vT + 1}
v_lshl_add_u32 v{vT}, v{vT}, 6, v{vT + 1}
v_permlane32_swap_b32 v{sp}, v{sn}
s_lshl_b32 s{sT}, s{sHH}, 14
s_lshl_b32 s{sT + 1}, s{sRT}, 11
s_add_u32 s{sT}, s{sT}, s{sT + 1}
s_add_u32 s{sT}, s{sT}, {PHI_IMG}
v_add_u32 v{vT}, s{sT}, v{vT}
v_xor_b32 v{vT + 1}, 16, v{vT}
''')
for E, s_, off in ((vEp, sp, 0), (vEn, sn, 8192)):
    for r in range(0, 16, 2):
        A(f'v_pk_mul_f32 {vr(E + r, 2)}, {vr(E + r, 2)}, {vr(s_, 2)} op_sel_hi:[1,0]')
    P = vX if off == 0 else vX + 8
    cvt8(P, E)
    A(f'ds_write_b128 v{vT}, {vr(P, 4)} offset:{off}')
    A(f'ds_write_b128 v{vT + 1}, {vr(P + 4, 4)} offset:{off}')
A(f'''
s_waitcnt lgkmcnt(0)
s_barrier
s_cmp_ge_u32 s{sWv}, 4
s_cbranch_scc1 L_eB_skip
v_bfe_u32 v{vT}, v{vL}, 2, 2
v_lshl_add_u32 v{vT + 1}, v{vH}, 2, v{vT}      ; 4h + r
v_lshrrev_b32 v{vT + 2}, 1, v{vT + 1}          ; 2h + (r>>1)
v_bfe_u32 v{vT + 3}, v{vL}, 4, 1
v_and_b32 v{vT}, 2, v{vL}
v_or_b32 v{vT + 3}, v{vT + 3}, v{vT}           ; 2*a1 + a2
v_xor_b32 v{vT + 2}, v{vT + 2}, v{vT + 3}
v_lshlrev_b32 v{vT + 2}, 4, v{vT + 2}
v_lshl_add_u32 v{vT + 1}, v{vT + 1}, 6, v{vT + 2}
v_and_b32 v{vT}, 1, v{vL}
v_lshl_add_u32 v{vT + 1}, v{vT}, 3, v{vT + 1}
s_lshl_b32 s{sT}, s{sWv}, 13
s_add_u32 s{sT}, s{sT}, {PHI_IMG}
v_add_u32 v{vT + 1}, s{sT}, v{vT + 1}
s_lshr_b32 s{sT + 2}, s{sWv}, 1
s_lshl_b32 s{sT}, s{sT + 2}, 13
s_add_u32 s{sT}, s{sT}, {V_IMG}
v_add_u32 v{vT + 2}, s{sT}, v{vLin}
''')
vKa, vKb = 36, 68


def kv_reads(st):
    A(f'ds_read_b64_tr_b16 {vr(vKa + 4 * st, 2)}, v{vT + 1} offset:{(16 * st) * 64}')
    A(f'ds_read_b64_tr_b16 {vr(vKa + 4 * st + 2, 2)}, v{vT + 1} offset:{(16 * st + 8) * 64}')
    A(f'ds_read_b128 {vr(vKb + 4 * st, 4)}, v{vT + 2} offset:{st * 1024}')


for st in range(4):
    kv_reads(st)
for st in range(8):
    A(f's_waitcnt lgkmcnt({min(9, 3 * (7 - st))})')
    A(f'v_mfma_f32_32x32x16_bf16 {vr(vX, 16)}, {vr(vKa + 4 * st, 4)}, {vr(vKb + 4 * st, 4)}, {vr(vX, 16) if st else 0}')
    if st + 4 < 8:
        kv_reads(st + 4)
A(f'''
s_lshl_b32 s{sT}, s{sCG}, 1
s_add_u32 s{sT}, s{sT}, s{sT + 2}
s_lshl_b32 s{sT}, s{sT}, 4
s_add_u32 s{sT}, s{sT}, s{sRB1}
s_lshl_b32 s{sT}, s{sT}, 1
s_and_b32 s{sT + 1}, s{sWv}, 1
s_add_u32 s{sT}, s{sT}, s{sT + 1}
s_lshl_b32 s{sT}, s{sT}, 12
s_add_u32 s{sT}, s{sT}, {WS_KVP}
''')
for q in range(4):
    A(f'buffer_store_dwordx4 {vr(vX + 4 * q, 4)}, v{vLin}, {sr(sWS, 4)}, s{sT} offen offset:{1024 * q} sc1')
A(f'''
L_eB_skip:
s_lshl_b32 s{sT}, s{sCG}, 3
s_add_u32 s{sT}, s{sT}, 3
s_lshl_b32 s{sT}, s{sT}, 8
v_mov_b32 v{vT + 2}, s{sT}
s_mov_b32 s{sT + 5}, 1
''')
A('L_sig1:')
stamp('epi_done')
A(f'''
v_lshlrev_b32 v{vT + 3}, 2, v{vL}
s_cmp_eq_u32 s{sWv}, 0
s_cbranch_scc0 L_s1a
s_mov_b64 exec, 0xff
s_mov_b32 s{sSpin}, {OPT['spin']}
L_initpoll:
buffer_load_dword v{vT}, v{vT + 3}, {sr(sDBG, 4)}, 0 offen sc1
s_sub_u32 s{sSpin}, s{sSpin}, 1
s_cmp_eq_u32 s{sSpin}, 0
s_cbranch_scc1 L_initx
s_waitcnt vmcnt(0)
v_cmp_ne_u32 vcc, 1, v{vT}
s_cbranch_vccnz L_initpoll
L_initx:
s_mov_b64 exec, -1
L_s1a:
s_waitcnt vmcnt(0)
s_barrier
''')
stamp('drained')
vFl = vT + 8
vOne = vT + 9
A(f'''
v_lshrrev_b32 v{vT}, 4, v{vL}
v_and_b32 v{vT + 1}, 15, v{vL}
v_lshlrev_b32 v{vT + 1}, 2, v{vT + 1}
v_lshl_add_u32 v{vFl}, v{vT}, 8, v{vT + 1}
v_mov_b32 v{vOne}, 1
s_cmp_eq_u32 s{sWv}, 0
s_cbranch_scc0 L_s1b
s_lshl_b32 s{sT}, s{sRB1}, 2
s_add_u32 s{sT}, s{sT}, {WS_FL}
s_mov_b32 exec_lo, s{sT + 5}
s_mov_b32 exec_hi, 0
buffer_store_dword v{vOne}, v{vT + 2}, {sr(sWS, 4)}, s{sT} offen sc1
s_mul_i32 s{sT}, s{sXc}, {8 * FLINE}
s_add_u32 s{sT}, s{sT}, {WS_FL}
s_lshl_b32 s{sT + 1}, 1, s{sRB}
s_or_b32 s{sT + 1}, s{sT + 1}, 0xffff0000
''')
poll('s1', sT, f's{sT + 1}', '0xffff', vFl)
A('''
L_s1b:
s_barrier
''')
stamp('s1_done')
vQ, vO, vS, vPp, vF, vIdx, vRd = 16, 24, 40, 72, 88, 120, 122
MISC2 = 131072
A(f'''
s_lshl_b32 s{sT}, s{sH}, 6
s_lshl_b32 s{sT + 1}, s{sHH}, 5
s_add_u32 s{sT + 1}, s{sT + 1}, s{sRT}
s_add_u32 s{sT + 1}, s{sT + 1}, s{sT}
s_lshl_b32 s{sKVo}, s{sT + 1}, 12
s_add_u32 s{sKVo}, s{sKVo}, {WS_KV}
s_lshl_b32 s{sM0}, s{sWv}, 12
s_lshl_b32 s{sT + 1}, s{sRB}, 2
s_add_u32 s{sT + 1}, s{sT + 1}, s{sRT}
s_add_u32 s{sT + 1}, s{sT + 1}, s{sT}
s_lshl_b32 s{sT + 1}, s{sT + 1}, 11
''')


def kv_issue(c):
    A(f's_add_u32 m0, s{sM0}, {(c % 4) * 32768}')
    A(f's_add_u32 s{sT + 2}, s{sKVo}, {c * 16384}')
    for q in range(4):
        A(f'buffer_load_dwordx4 v{vLin}, {sr(sWS, 4)}, s{sT + 2} offen offset:{1024 * q} sc1 lds')


A(f'buffer_load_dwordx4 {vr(vQ, 4)}, v{vLin}, {sr(sWS, 4)}, s{sT + 1} offen sc1')
A(f'buffer_load_dwordx4 {vr(vQ + 4, 4)}, v{vLin}, {sr(sWS, 4)}, s{sT + 1} offen offset:1024 sc1')
for c in range(4):
    kv_issue(c)
A(f'''
s_lshl_b32 s{sT}, s{sHH}, 14
v_add_u32 v{vRd}, s{sT}, v{vLin}
v_add_u32 v{vRd + 1}, 0x10000, v{vRd}
v_mov_b32 v{vIdx}, 0xdddddddd
''')
for r in range(16):
    A(f'v_mov_b32 v{vO + r}, 0')


def lds_frag(dst, t, piece):
    off = ((t >> 2) % 4) * 32768 + (t & 3) * 4096 + piece * 1024
    A(f'ds_read_b128 {vr(dst, 4)}, v{vRd + (off >> 16)} offset:{off & 0xffff}')


def set_qpad(m, t):
    A(f'''
    v_and_b32 v{t}, 0xffff0000, v{m}
    v_sub_f32 v{t + 1}, v{m}, v{t}
    v_and_b32 v{t + 2}, 0xffff0000, v{t + 1}
    v_sub_f32 v{t + 1}, v{t + 1}, v{t + 2}
    v_lshrrev_b32 v{t}, 16, v{t}
    s_mov_b64 exec, {sr(sHi, 2)}
    v_or_b32 v{vQ + 6}, v{t}, v{t + 2}
    v_lshrrev_b32 v{vQ + 7}, 16, v{t + 1}
    s_mov_b64 exec, -1
    ''')


def max16(m, S, first):
    if first:
        A(f'v_max3_f32 v{m}, v{S}, v{S + 1}, v{S + 2}')
        for r in range(3, 15, 2):
            A(f'v_max3_f32 v{m}, v{m}, v{S + r}, v{S + r + 1}')
        A(f'v_max_f32 v{m}, v{m}, v{S + 15}')
    else:
        for r in range(0, 16, 2):
            A(f'v_max3_f32 v{m}, v{m}, v{S + r}, v{S + r + 1}')


def qk(S, K, half):
    c = vr(S, 16) if half else '0'
    A(f'v_mfma_f32_32x32x16_bf16 {vr(S, 16)}, {vr(K, 4)}, {vr(vQ + 4 * half, 4)}, {c}')


def pv(V, half):
    A(f'v_smfmac_f32_32x32x32_bf16 {vr(vO, 16)}, {vr(V, 4)}, {vr(vPp + 8 * half, 8)}, v{vIdx}')


A(f'''
s_waitcnt vmcnt(12)
s_barrier
''')
stamp('kv0')
A(f'ds_read_b128 {vr(vPp, 4)}, v{vLin}')
A(f'ds_read_b128 {vr(vPp + 4, 4)}, v{vLin} offset:1024')
lds_frag(vF + 16, 0, 0)
lds_frag(vF + 20, 0, 1)
lds_frag(vF, 1, 0)
lds_frag(vF + 4, 1, 1)
lds_frag(vF + 12, 0, 2)
A('s_waitcnt lgkmcnt(5)')
qk(vS + 16, vPp, 0)
qk(vS + 16, vPp + 4, 1)
max16(vT, vS + 16, True)
A(f'''
v_mov_b32 v{vT + 1}, v{vT}
v_permlane32_swap_b32 v{vT}, v{vT + 1}
v_max_f32 v{vT}, v{vT}, v{vT + 1}
v_sub_f32 v{vT}, {f32(-24.0 if not OPT['force_fb'] else 200.0)}, v{vT}
''')
set_qpad(vT, vT + 1)
A('s_waitcnt lgkmcnt(3)')
qk(vS, vF + 16, 0)
qk(vS, vF + 20, 1)
A('s_nop 7')
A('.p2align 3')
for t in range(32):
    S, Sn = vS + 16 * (t & 1), vS + 16 * ((t + 1) & 1)
    F, Fn = vF + 16 * (t & 1), vF + 16 * ((t + 1) & 1)
    ex = lambda r: A(f'v_exp_f32 v{vPp + r}, v{S + r}')
    c = t >> 2
    if (t & 3) == 2 and c < 7:
        allowed = min(7, max(3, c + 2)) - (c + 1)
        A(f's_waitcnt vmcnt({4 * allowed}) lgkmcnt(0)')
        A('s_barrier')
    else:
        A('s_waitcnt lgkmcnt(0)')
        A('s_nop 0')
    if t < 31:
        qk(Sn, F, 0)
    if t < 30:
        lds_frag(Fn, t + 2, 0)
    for r in range(0, 4):
        ex(r)
    if t < 31:
        qk(Sn, F + 4, 1)
    if t < 30:
        lds_frag(Fn + 4, t + 2, 1)
    for r in range(4, 8):
        ex(r)
    if t > 0:
        pv(F + 8, 1)
    lds_frag(Fn + 8, t, 3)
    for r in range(8, 12):
        ex(r)
    pv(F + 12, 0)
    if t < 31:
        lds_frag(Fn + 12, t + 1, 2)
    if (t & 3) == 2 and 1 <= c <= 4:
        kv_issue(c + 3)
        A('.p2align 3')
    for r in range(12, 16):
        ex(r)
A('s_waitcnt lgkmcnt(0)')
pv(vF + 8, 1)
stamp('att_done')
A('L_merge:')
XCH, XL, XF = MISC2, MISC2 + 16384, MISC2 + 16384 + 2048
A(f'''
s_lshl_b32 s{sT}, s{sWv}, 11
s_add_u32 s{sT}, s{sT}, {XCH}
v_add_u32 v{vT + 1}, s{sT}, v{vLin}
s_xor_b32 s{sT}, s{sT}, 0x2000
v_add_u32 v{vT + 2}, s{sT}, v{vLin}
s_lshl_b32 s{sT}, s{sWv}, 8
s_add_u32 s{sT}, s{sT}, {XL}
v_lshl_add_u32 v{vT + 3}, v{vL}, 2, s{sT}
v_or_b32 v{vT + 4}, 0x80, v{vT + 3}
v_and_b32 v{vT + 4}, 0xfffffbff, v{vT + 4}
s_lshl_b32 s{sT}, s{sWv}, 2
s_add_u32 s{sT}, s{sT}, {XF}
v_mov_b32 v{vT + 5}, s{sT}
v_add_f32_e64 v{vT}, abs(v{vO}), abs(v{vO + 1})
''')
assert XL % 2048 == 0
for r in range(2, 16):
    A(f'v_add_f32_e64 v{vT}, v{vT}, abs(v{vO + r})')
A(f'''
ds_write_b32 v{vT + 3}, v{vO + 12}
s_mov_b32 s{sT}, 0x7b800000
v_cmp_ngt_f32 vcc, s{sT}, v{vT}
s_cmp_eq_u32 s{sHH}, 0
s_cbranch_scc0 L_m1
ds_write_b128 v{vT + 1}, {vr(vO + 8, 4)}
ds_write_b128 v{vT + 1}, {vr(vO + 12, 4)} offset:1024
s_branch L_m2
L_m1:
ds_write_b128 v{vT + 1}, {vr(vO, 4)}
ds_write_b128 v{vT + 1}, {vr(vO + 4, 4)} offset:1024
s_nop 1
''')
for r in range(8):
    A(f'v_mov_b32 v{vO + r}, v{vO + 8 + r}')
A(f'''
L_m2:
s_cmp_lg_u64 vcc, 0
s_cselect_b32 s{sT}, 1, 0
v_mov_b32 v{vT}, s{sT}
ds_write_b32 v{vT + 5}, v{vT}
v_and_b32 v{vT + 5}, 7, v{vL}
v_lshlrev_b32 v{vT + 5}, 2, v{vT + 5}
v_add_u32 v{vT + 5}, {XF}, v{vT + 5}
s_waitcnt lgkmcnt(0)
s_barrier
ds_read_b32 v{vT}, v{vT + 5}
ds_read_b32 v{vT + 6}, v{vT + 4}
ds_read_b32 v{vT + 7}, v{vT + 4} offset:1024
ds_read_b128 {vr(vS, 4)}, v{vT + 2}
ds_read_b128 {vr(vS + 4, 4)}, v{vT + 2} offset:1024
s_lshl_b32 s{sT + 1}, s{sRB}, 2
s_add_u32 s{sT + 1}, s{sT + 1}, s{sRT}
s_lshl_b32 s{sT + 1}, s{sT + 1}, 4
s_add_u32 s{sT + 1}, s{sT + 1}, s{sH}
s_lshl_b32 s{sT + 1}, s{sT + 1}, 1
s_add_u32 s{sT + 1}, s{sT + 1}, s{sHH}
s_lshl_b32 s{sT + 1}, s{sT + 1}, 10
s_add_u32 s{sT + 1}, s{sT + 1}, {WS_O}
s_waitcnt lgkmcnt(2)
v_cmp_ne_u32 vcc, 0, v{vT}
v_add_f32 v{vT + 6}, v{vT + 6}, v{vT + 7}
v_rcp_f32 v{vT + 6}, v{vT + 6}
s_cmp_lg_u64 vcc, 0
s_cselect_b32 s{sT}, 1, 0
s_cmp_gt_u32 s{sT}, s{sFB}
s_cbranch_scc1 L_fallback
s_waitcnt lgkmcnt(0)
''')
for r in range(0, 8, 2):
    A(f'v_pk_add_f32 {vr(vO + r, 2)}, {vr(vO + r, 2)}, {vr(vS + r, 2)}')
for r in range(0, 8, 2):
    A(f'v_pk_mul_f32 {vr(vO + r, 2)}, {vr(vO + r, 2)}, {vr(vT + 6, 2)} op_sel_hi:[1,0]')
for r in range(4):
    A(f'v_cvt_pk_bf16_f32 v{vS + 8 + r}, v{vO + 2 * r}, v{vO + 2 * r + 1}')
A(f'''
s_cmp_eq_u32 s{sHH}, 0
s_cselect_b64 exec, 0, {sr(sHi, 2)}
v_mov_b32 v{vS + 10}, 0
v_mov_b32 v{vS + 11}, 0
s_mov_b64 exec, -1
buffer_store_dwordx4 {vr(vS + 8, 4)}, v{vLin}, {sr(sWS, 4)}, s{sT + 1} offen sc1
s_waitcnt vmcnt(0)
s_barrier
''')
stamp('oA_drained')


def o_signal(br):
    A(f'''
    s_lshr_b32 s{sT}, s{sRB}, 1
    s_lshl_b32 s{sT}, s{sT}, 3
    s_and_b32 s{sT + 1}, s{sRB}, 1
    s_add_u32 s{sT}, s{sT}, s{sT + 1}
    s_lshl_b32 s{sT}, s{sT}, 8
    s_lshl_b32 s{sT + 1}, s{sH}, 2
    s_add_u32 s{sT}, s{sT}, s{sT + 1}
    s_add_u32 s{sT}, s{sT}, {WS_FL + (4 + 2 * br) * FLINE}
    s_mov_b64 exec, 1
    buffer_store_dword v{vOne}, v{vL}, {sr(sWS, 4)}, s{sT} offen sc1
    s_mov_b64 exec, -1
    ''')


A(f'''
s_cmp_eq_u32 s{sWv}, 0
s_cbranch_scc0 L_s2a
''')
o_signal(0)
A(f'''
s_mul_i32 s{sT}, s{sXc}, {8 * FLINE}
s_add_u32 s{sT}, s{sT}, {WS_FL + 3 * FLINE}
''')
poll('sB', sT, '0xffff', '0', vFl)
A('''
L_s2a:
s_barrier
''')
vPart, vQB, vKVF, vNp, vNn = 16, 80, 88, 164, 180
KVL, PHI2 = 0, 4096
A(f'''
s_lshl_b32 s{sT}, s{sH}, 17
s_lshl_b32 s{sT + 1}, s{sWv}, 10
s_add_u32 s{sT}, s{sT}, s{sT + 1}
s_add_u32 s{sT}, s{sT}, {WS_KVP}
s_cmp_ge_u32 s{sWv}, 4
s_cbranch_scc1 L_b2a
s_lshl_b32 s{sT + 2}, s{sH}, 6
s_lshl_b32 s{sT + 3}, s{sRB}, 2
s_add_u32 s{sT + 2}, s{sT + 2}, s{sT + 3}
s_add_u32 s{sT + 2}, s{sT + 2}, s{sRT}
s_lshl_b32 s{sT + 2}, s{sT + 2}, 11
s_add_u32 s{sT + 2}, s{sT + 2}, {WS_QB}
buffer_load_dwordx4 {vr(vQB, 4)}, v{vLin}, {sr(sWS, 4)}, s{sT + 2} offen sc1
buffer_load_dwordx4 {vr(vQB + 4, 4)}, v{vLin}, {sr(sWS, 4)}, s{sT + 2} offen offset:1024 sc1
s_cmp_ge_u32 s{sWv}, 2
s_cbranch_scc1 L_b2a
s_add_u32 m0, s{sT + 1}, {PHI2}
s_mul_i32 s{sT + 2}, s{sH}, 1568
s_add_u32 s{sT + 2}, s{sT + 2}, s{sT + 1}
buffer_load_dwordx4 v{vLin}, {sr(sPHI, 4)}, s{sT + 2} offen lds
L_b2a:
''')
for p in range(16):
    A(f'buffer_load_dwordx4 {vr(vPart + 4 * p, 4)}, v{vLin}, {sr(sWS, 4)}, s{sT} offen sc1')
    if p < 15:
        A(f's_add_u32 s{sT}, s{sT}, 8192')
for p in range(1, 16):
    A(f's_waitcnt vmcnt({15 - p})')
    A(f'v_pk_add_f32 {vr(vPart, 2)}, {vr(vPart, 2)}, {vr(vPart + 4 * p, 2)}')
    A(f'v_pk_add_f32 {vr(vPart + 2, 2)}, {vr(vPart + 2, 2)}, {vr(vPart + 4 * p + 2, 2)}')
A(f'''
v_cvt_pk_bf16_f32 v{vPart + 4}, v{vPart}, v{vPart + 1}
v_cvt_pk_bf16_f32 v{vPart + 5}, v{vPart + 2}, v{vPart + 3}
s_mov_b32 exec_lo, 0x20000000
s_mov_b32 exec_hi, 0x20000000
v_mov_b32 v{vPart + 4}, 0x3f803f80
v_mov_b32 v{vPart + 5}, 0x3f803f80
s_mov_b64 exec, -1
s_lshr_b32 s{sT}, s{sWv}, 1
s_lshl_b32 s{sT}, s{sT}, 10
s_and_b32 s{sT + 1}, s{sWv}, 1
s_lshl_b32 s{sT + 1}, s{sT + 1}, 3
s_add_u32 s{sT}, s{sT}, s{sT + 1}
v_add_u32 v{vT}, s{sT}, v{vLin}
ds_write_b64 v{vT}, {vr(vPart + 4, 2)} offset:{KVL}
s_waitcnt lgkmcnt(0)
s_barrier
s_cmp_ge_u32 s{sWv}, 4
s_cbranch_scc1 L_b2b
v_bfe_u32 v{vT}, v{vL}, 2, 2
v_lshl_add_u32 v{vT}, v{vH}, 2, v{vT}
v_mul_u32_u24 v{vT + 1}, 56, v{vT}
v_bfe_u32 v{vT + 2}, v{vL}, 4, 1
v_and_b32 v{vT + 3}, 3, v{vL}
v_lshl_add_u32 v{vT + 2}, v{vT + 2}, 2, v{vT + 3}
v_lshl_add_u32 v{vT + 1}, v{vT + 2}, 3, v{vT + 1}
''')
for q in range(4):
    A(f'ds_read_b64_tr_b16 {vr(vWF + 2 * q, 2)}, v{vT + 1} offset:{PHI2 + 8 * q * 56}')
for q in range(4):
    A(f'ds_read_b128 {vr(vKVF + 4 * q, 4)}, v{vLin} offset:{KVL + 1024 * q}')
A(f'''
s_waitcnt lgkmcnt(4)
v_mfma_f32_32x32x16_bf16 {vr(vX, 16)}, {vr(vWF, 4)}, {vr(vQB, 4)}, 0
v_mfma_f32_32x32x16_bf16 {vr(vX, 16)}, {vr(vWF + 4, 4)}, {vr(vQB + 4, 4)}, {vr(vX, 16)}
''')
vIdx2 = vT + 10
A(f'v_mov_b32 v{vIdx2}, 0xdddddddd')
for r in range(32):
    A(f'v_mov_b32 v{vNp + r}, 0')
features(vX, vEp, vEn, vT + 4)
A('s_waitcnt lgkmcnt(0)')
for m in range(2):
    A(f'v_smfmac_f32_32x32x32_bf16 {vr(vNp, 16)}, {vr(vKVF + 4 * m, 4)}, {vr(vEp + 8 * m, 8)}, v{vIdx2}')
for m in range(2):
    A(f'v_smfmac_f32_32x32x32_bf16 {vr(vNn, 16)}, {vr(vKVF + 8 + 4 * m, 4)}, {vr(vEn + 8 * m, 8)}, v{vIdx2}')
ap, an = vT + 4, vT + 6
A(f'''
s_lshl_b32 s{sT + 1}, s{sRB}, 2
s_add_u32 s{sT + 1}, s{sT + 1}, s{sRT}
s_lshl_b32 s{sT + 1}, s{sT + 1}, 4
s_add_u32 s{sT + 1}, s{sT + 1}, s{sH}
s_lshl_b32 s{sT + 1}, s{sT + 1}, 11
s_add_u32 s{sT + 1}, s{sT + 1}, {WS_O + 0x200000}
v_mov_b32 v{vT}, {f32(1e-6)}
v_rcp_f32 v{ap}, v{vNp + 13}
v_rcp_f32 v{an}, v{vNn + 13}
v_fmac_f32 v{vT}, v{vNp + 12}, v{ap}
v_fmac_f32 v{vT}, v{vNn + 12}, v{an}
v_rcp_f32 v{vT}, v{vT}
v_mul_f32 v{ap}, v{ap}, v{vT}
v_mul_f32 v{an}, v{an}, v{vT}
v_mov_b32 v{vT}, v{ap}
v_mov_b32 v{vT + 1}, v{an}
v_permlane32_swap_b32 v{vT}, v{ap}
v_permlane32_swap_b32 v{vT + 1}, v{an}
''')
for r in range(0, 16, 2):
    A(f'v_pk_mul_f32 {vr(vNp + r, 2)}, {vr(vNp + r, 2)}, {vr(ap, 2)} op_sel_hi:[1,0]')
for r in range(0, 16, 2):
    A(f'v_pk_fma_f32 {vr(vNp + r, 2)}, {vr(vNn + r, 2)}, {vr(an, 2)}, {vr(vNp + r, 2)} op_sel_hi:[1,0,1]')
cvt8(vX, vNp)
A(f'''
s_mov_b64 exec, {sr(sHi, 2)}
v_mov_b32 v{vX + 6}, 0
v_mov_b32 v{vX + 7}, 0
s_mov_b64 exec, -1
buffer_store_dwordx4 {vr(vX, 4)}, v{vLin}, {sr(sWS, 4)}, s{sT + 1} offen sc1
buffer_store_dwordx4 {vr(vX + 4, 4)}, v{vLin}, {sr(sWS, 4)}, s{sT + 1} offen offset:1024 sc1
L_b2b:
s_waitcnt vmcnt(0)
s_barrier
s_cmp_eq_u32 s{sWv}, 0
s_cbranch_scc0 L_s3a
''')
o_signal(1)
A('L_s3a:')
stamp('oB_done')
sRB64, sCB = sC, sSlotRd
vWoG, vWoA, vWoB, vOr, vOutA = 16, 17, 18, 19, 20
vC, vG = 24, 40
OL = 65536
A(f'''
s_cmp_ge_u32 s{sJ}, 28
s_cbranch_scc1 L_fin
s_mul_i32 s{sT}, s{sJ}, 37
s_lshr_b32 s{sT}, s{sT}, 8
s_mul_i32 s{sT + 1}, s{sT}, 7
s_sub_u32 s{sCB}, s{sJ}, s{sT + 1}
s_lshl_b32 s{sRB64}, s{sXc}, 2
s_add_u32 s{sRB64}, s{sRB64}, s{sT}
v_lshrrev_b32 v{vT}, 3, v{vL}
s_mul_i32 s{sT}, s{sWv}, 56
v_add_u32 v{vT}, s{sT}, v{vT}
v_mul_u32_u24 v{vT}, 896, v{vT}
v_bfe_u32 v{vT + 1}, v{vL}, 4, 1
v_lshlrev_b32 v{vT + 1}, 2, v{vT + 1}
v_and_b32 v{vT + 2}, 7, v{vL}
v_xor_b32 v{vT + 1}, v{vT + 1}, v{vT + 2}
v_lshl_add_u32 v{vWoG}, v{vT + 1}, 4, v{vT}
s_and_b32 s{sT}, s{sWv}, 1
v_bfe_u32 v{vT}, v{vL}, 2, 2
v_lshrrev_b32 v{vT + 1}, 1, v{vT}
v_xor_b32 v{vT + 1}, s{sT}, v{vT + 1}
v_lshlrev_b32 v{vT + 1}, 6, v{vT + 1}
v_lshl_add_u32 v{vT + 1}, v{vT}, 7, v{vT + 1}
v_and_b32 v{vT}, 1, v{vL}
v_lshl_add_u32 v{vT + 1}, v{vT}, 5, v{vT + 1}
v_bfe_u32 v{vT}, v{vL}, 4, 1
v_lshl_add_u32 v{vT + 1}, v{vT}, 4, v{vT + 1}
v_bfe_u32 v{vT}, v{vL}, 1, 1
v_lshl_add_u32 v{vWoB}, v{vT}, 3, v{vT + 1}
v_lshl_add_u32 v{vWoA}, v{vH}, 9, v{vWoB}
s_lshr_b32 s{sT + 1}, s{sWv}, 1
s_and_b32 s{sT + 1}, s{sT + 1}, 1
s_lshl_b32 s{sT + 2}, s{sT + 1}, 15
s_add_u32 s{sT + 2}, s{sT + 2}, {OL}
v_add_u32 v{vOr}, s{sT + 2}, v{vLin}
s_lshl_b32 s{sT + 2}, s{sRB64}, 1
s_add_u32 s{sT + 2}, s{sT + 2}, s{sT + 1}
s_lshl_b32 s{sT + 2}, s{sT + 2}, 5
v_and_b32 v{vT}, 31, v{vL}
v_add_u32 v{vT}, s{sT + 2}, v{vT}
v_mul_u32_u24 v{vT}, 1792, v{vT}
v_lshl_add_u32 v{vT}, v{vH}, 5, v{vT}
s_lshl_b32 s{sT + 2}, s{sCB}, 1
s_add_u32 s{sT + 2}, s{sT + 2}, s{sT}
s_lshl_b32 s{sT + 2}, s{sT + 2}, 6
v_add_u32 v{vOutA}, s{sT + 2}, v{vT}
s_mov_b32 s{sBr}, 0
s_mov_b32 s{sWO}, s8
s_mov_b32 s{sWO + 1}, s9
s_mov_b32 s{sWO + 2}, {448 * 896}
s_mov_b32 s{sWO + 3}, 0x20000
L_p3:
s_mul_i32 s{sM0}, s{sWv}, 7168
s_lshl_b32 s{sT}, s{sCB}, 7
''')
for i in range(7):
    A(f's_add_u32 m0, s{sM0}, {1024 * i}')
    A(f's_add_u32 s{sT + 1}, s{sT}, {7168 * i}')
    A(f'buffer_load_dwordx4 v{vWoG}, {sr(sWO, 4)}, s{sT + 1} offen lds')
A(f'''
s_cmp_eq_u32 s{sWv}, 0
s_cbranch_scc0 L_p3a
s_lshl_b32 s{sT}, s{sXc}, 3
s_lshl_b32 s{sT + 1}, s{sBr}, 1
s_add_u32 s{sT}, s{sT}, s{sT + 1}
s_bfe_u32 s{sT + 1}, s{sRB64}, 0x10001
s_add_u32 s{sT}, s{sT}, s{sT + 1}
s_lshl_b32 s{sT}, s{sT}, 8
s_add_u32 s{sT}, s{sT}, {WS_FL + 4 * FLINE}
''')
poll('s3', sT, '0xffff', '0', vFl)
A(f'''
L_p3a:
s_barrier
''')
stamp('p3_flag')
A(f'''
s_lshl_b32 s{sT}, s{sHH}, 15
s_lshl_b32 s{sT + 1}, s{sRT}, 11
s_add_u32 s{sT}, s{sT}, s{sT + 1}
s_add_u32 s{sM0}, s{sT}, {OL}
s_lshl_b32 s{sT + 1}, s{sBr}, 21
s_add_u32 s{sT}, s{sT}, s{sT + 1}
s_lshl_b32 s{sT + 1}, s{sRB64}, 16
s_add_u32 s{sT}, s{sT}, s{sT + 1}
''')
for st in range(4):
    A(f's_add_u32 m0, s{sM0}, {8192 * st}')
    A(f's_add_u32 s{sT + 1}, s{sT}, {WS_O + 8192 * st}')
    A(f'buffer_load_dwordx4 v{vLin}, {sr(sWS, 4)}, s{sT + 1} offen sc1 lds')
    A(f'buffer_load_dwordx4 v{vLin}, {sr(sWS, 4)}, s{sT + 1} offen offset:1024 sc1 lds')


def p3_reads(hd, G):
    for m in range(2):
        A(f'ds_read_b128 {vr(G + 8 * m, 4)}, v{vOr} offset:{hd * 2048 + m * 1024}')
        for u in range(2):
            a = vWoB if (m, u) == (1, 1) else vWoA
            A(f'ds_read_b64_tr_b16 {vr(G + 8 * m + 4 + 2 * u, 2)}, v{a} offset:{(28 * hd + 16 * m + 8 * u) * 128}')


for st in range(4):
    A(f's_waitcnt vmcnt({6 - 2 * st})')
    A('s_barrier')
    A(f's_cmp_ge_u32 s{sWv}, 4')
    A(f's_cbranch_scc1 L_p3s{st}')
    p3_reads(4 * st, vG)
    p3_reads(4 * st + 1, vG + 16)
    for q in range(4):
        G = vG + 16 * (q & 1)
        A(f's_waitcnt lgkmcnt({6 if q < 3 else 0})')
        for m in range(2):
            c = '0' if (st, q, m) == (0, 0, 0) else vr(vC, 16)
            A(f'v_mfma_f32_32x32x16_bf16 {vr(vC, 16)}, {vr(G + 8 * m + 4, 4)}, {vr(G + 8 * m, 4)}, {c}')
        if q < 2:
            p3_reads(4 * st + q + 2, G)
    if st == 3:
        cvt8(vG, vC)
        A(f's_mul_i32 s{sT}, s{sBr}, 896')
        A(f'buffer_store_dwordx4 {vr(vG, 4)}, v{vOutA}, {sr(sOUT, 4)}, s{sT} offen')
        A(f'buffer_store_dwordx4 {vr(vG + 4, 4)}, v{vOutA}, {sr(sOUT, 4)}, s{sT} offen offset:16')
    A(f'L_p3s{st}:')
stamp('p3_done')
A(f'''
s_cmp_eq_u32 s{sBr}, 1
s_cbranch_scc1 L_fin
s_mov_b32 s{sBr}, 1
s_mov_b32 s{sWO}, s16
s_mov_b32 s{sWO + 1}, s17
s_barrier
s_branch L_p3
L_fin:
''')
if OPT['stamps']:
    A('s_waitcnt vmcnt(0)')
    stamp('end')
    A(f'''
    s_lshl_b32 s{sT}, s2, 3
    s_add_u32 s{sT}, s{sT}, s{sWv}
    s_lshl_b32 s{sT}, s{sT}, 8
    s_add_u32 s{sT}, s{sT}, {WS_ST}
    v_lshlrev_b32 v{vT}, 2, v{vL}
    buffer_store_dword v255, v{vT}, {sr(sWS, 4)}, s{sT} offen
    ''')
A('s_endpgm')
A(f'''
L_fallback:
s_waitcnt lgkmcnt(0)
s_mov_b32 s{sFB}, 1
s_mov_b64 exec, {sr(sHi, 2)}
v_mov_b32 v{vQ + 6}, 0
v_mov_b32 v{vQ + 7}, 0
s_mov_b64 exec, -1
v_mov_b32 v{vT}, 0xff800000
s_lshl_b32 s{sT}, s{sH}, 18
s_add_u32 s{sT}, s{sT}, {WS_KV}
s_mov_b32 s{sT + 1}, 0
L_fb1:
buffer_load_dwordx4 {vr(vF, 4)}, v{vLin}, {sr(sWS, 4)}, s{sT} offen sc1
buffer_load_dwordx4 {vr(vF + 4, 4)}, v{vLin}, {sr(sWS, 4)}, s{sT} offen offset:1024 sc1
s_waitcnt vmcnt(0)
''')
qk(vS, vF, 0)
qk(vS, vF + 4, 1)
max16(vT, vS, False)
A(f'''
s_add_u32 s{sT}, s{sT}, 4096
s_add_u32 s{sT + 1}, s{sT + 1}, 1
s_cmp_lt_u32 s{sT + 1}, 64
s_cbranch_scc1 L_fb1
v_mov_b32 v{vT + 1}, v{vT}
v_permlane32_swap_b32 v{vT}, v{vT + 1}
v_max_f32 v{vT}, v{vT}, v{vT + 1}
v_sub_f32 v{vT}, 0, v{vT}
''')
set_qpad(vT, vT + 1)
for r in range(16):
    A(f'v_mov_b32 v{vO + r}, 0')
A(f'''
s_lshl_b32 s{sT}, s{sH}, 18
s_lshl_b32 s{sT + 1}, s{sHH}, 17
s_add_u32 s{sT}, s{sT}, s{sT + 1}
s_add_u32 s{sT}, s{sT}, {WS_KV}
s_mov_b32 s{sT + 1}, 0
L_fb2:
''')
for q in range(4):
    A(f'buffer_load_dwordx4 {vr(vF + 4 * q, 4)}, v{vLin}, {sr(sWS, 4)}, s{sT} offen offset:{1024 * q} sc1')
A('s_waitcnt vmcnt(0)')
qk(vS, vF, 0)
qk(vS, vF + 4, 1)
for r in range(16):
    A(f'v_exp_f32 v{vPp + r}, v{vS + r}')
pv(vF + 8, 0)
pv(vF + 12, 1)
A(f'''
s_add_u32 s{sT}, s{sT}, 4096
s_add_u32 s{sT + 1}, s{sT + 1}, 1
s_cmp_lt_u32 s{sT + 1}, 32
s_cbranch_scc1 L_fb2
s_barrier
s_branch L_merge
L_end:
s_endpgm
''')

n = A.fix_hazards(verbose=bool(OPT.get('v')))
hdr = open('cdna_kernels/' + NAME + '.s.ref').read().split('; Override launch')[0]
out = hdr + f'''; One persistent launch, 256 workgroups (one per CU); generated by the author's own script.
; @launch grid=(256,1,1) block=(512,1,1) lds=163840
.amdgcn_target "amdgcn-amd-amdhsa--gfx950"
.text
.globl {NAME}_kernel
.p2align 8
.type {NAME}_kernel,@function
{NAME}_kernel:
''' + A.text() + f'''.fill 256, 4, 0xbf800000
.section .rodata,"a"
.p2align 6
.amdhsa_kernel {NAME}_kernel
  .amdhsa_next_free_vgpr 256
  .amdhsa_next_free_sgpr 96
  .amdhsa_accum_offset 256
  .amdhsa_group_segment_fixed_size 0
  .amdhsa_kernarg_size 80
  .amdhsa_user_sgpr_count 2
  .amdhsa_user_sgpr_kernarg_segment_ptr 1
  .amdhsa_system_sgpr_workgroup_id_x 1
.end_amdhsa_kernel
'''
open(sys.argv[1], 'w').write(out)
if OPT['stamps']:
    open(sys.argv[1] + '.stamps', 'w').write('\n'.join(STAMPS))
print('lines', len(A.lines), 'nops inserted', n)
```

```python
import sys, math, struct
from asmlib import Asm, vr, sr

NAME = 'concat_heads__softmax_full_mha__linear_kernel_hedgehog__prompt'
OPT = dict(rot=0, stamps=0, force_fb=0, spin=1 << 16)
for a in sys.argv[2:]:
    k, v = a.split('=')
    OPT[k] = int(v, 0)


def f32(x):
    return '0x%08x' % struct.unpack('<I', struct.pack('<f', x))[0]


LOG2E = 1.4426950408889634
QSCALE = LOG2E / math.sqrt(28.0)

WS_QA, WS_KV, WS_QB, WS_KVP, WS_O, WS_FL, WS_ST, WS_END = 0, 0x200000, 0x600000, 0x800000, 0xA00000, 0xE00000, 0xF00000, 0x1000000
FLINE = 256
sX, sW, sWS, sDBG, sPHI, sWO, sOUT = 24, 28, 32, 36, 40, 44, 48
sWv, sXc, sJ, sB, sRB1, sCG, sH, sRB = 52, 53, 54, 55, 56, 57, 58, 59
sT = 60
sC, sSlotRd, sSlotWr, sKC, sXbase, sWbase, sXo, sWo = 70, 71, 72, 73, 74, 75, 76, 77
sL = 78
sRT, sHH = 80, 81
sSpin = 82
sFB = 83
sKVo = 84
sBr = 85
sHi = 86
sOnesM = 88
sStamp = 90
sM0 = 92
vL, vLin, vH = 1, 2, 3
vT = 4

A = Asm()
stamp_n = [0]


def stamp(name):
    if not OPT['stamps']:
        return
    i = stamp_n[0]
    stamp_n[0] += 1
    STAMPS.append(name)
    A(f'''
    s_memrealtime s[{sStamp}:{sStamp + 1}]
    s_memtime s[94:95]
    s_waitcnt lgkmcnt(0)
    v_writelane_b32 v255, s{sStamp}, {i}
    v_writelane_b32 v255, s94, {i + 32}
    ''')


STAMPS = []


def poll(tag, addr_s, execlo, exechi, vaddr):
    A(f'''
    s_mov_b32 exec_lo, {execlo}
    s_mov_b32 exec_hi, {exechi}
    s_mov_b32 s{sSpin}, {OPT['spin']}
    L_poll_{tag}:
    buffer_load_dword v{vT}, v{vaddr}, {sr(sWS, 4)}, s{addr_s} offen sc1
    s_sub_u32 s{sSpin}, s{sSpin}, 1
    s_cmp_eq_u32 s{sSpin}, 0
    s_cbranch_scc1 L_pollx_{tag}
    s_waitcnt vmcnt(0)
    v_cmp_ne_u32 vcc, 1, v{vT}
    s_cbranch_vccnz L_poll_{tag}
    L_pollx_{tag}:
    s_waitcnt vmcnt(0)
    s_mov_b64 exec, -1
    ''')


def srd(d, base, nbytes):
    A(f'''
    s_mov_b32 s{d}, s{base}
    s_mov_b32 s{d + 1}, s{base + 1}
    s_mov_b32 s{d + 2}, {nbytes}
    s_mov_b32 s{d + 3}, 0x20000
    ''')


def cvt8(dst, src):
    for i in range(8):
        A(f'v_cvt_pk_bf16_f32 v{dst + i}, v{src + 2 * i}, v{src + 2 * i + 1}')


def features(X, Ep, En, t):
    mx, nm = t, t + 2
    A(f's_mov_b64 exec, {sr(sHi, 2)}')
    for r in range(12, 16):
        A(f'v_mov_b32 v{X + r}, v{X + 11}')
    A('s_mov_b64 exec, -1')
    A(f'v_max3_f32 v{mx}, v{X}, v{X + 1}, v{X + 2}')
    A(f'v_max3_f32 v{nm}, -v{X}, -v{X + 1}, -v{X + 2}')
    for r in range(3, 15, 2):
        A(f'v_max3_f32 v{mx}, v{mx}, v{X + r}, v{X + r + 1}')
        A(f'v_max3_f32 v{nm}, v{nm}, -v{X + r}, -v{X + r + 1}')
    A(f'v_max_f32 v{mx}, v{mx}, v{X + 15}')
    A(f'v_max_f32_e64 v{nm}, v{nm}, -v{X + 15}')
    A(f'v_permlane32_swap_b32 v{mx}, v{nm}')
    A(f'v_max_f32 v{mx}, v{mx}, v{nm}')
    A(f'v_mul_f32_e64 v{mx}, -v{mx}, s{sL}')
    A(f'v_mov_b32 v{nm}, v{mx}')
    A(f'v_permlane32_swap_b32 v{mx}, v{nm}')
    for r in range(0, 16, 2):
        A(f'v_pk_fma_f32 {vr(Ep + r, 2)}, {vr(X + r, 2)}, {sr(sL, 2)}, {vr(mx, 2)} op_sel_hi:[1,1,0]')
        A(f'v_pk_fma_f32 {vr(En + r, 2)}, {vr(X + r, 2)}, {sr(sL, 2)}, {vr(nm, 2)} op_sel_hi:[1,1,0] neg_lo:[1,0,0] neg_hi:[1,0,0]')
    for r in range(16):
        A(f'v_exp_f32 v{Ep + r}, v{Ep + r}')
    for r in range(16):
        A(f'v_exp_f32 v{En + r}, v{En + r}')
    A(f's_mov_b64 exec, {sr(sHi, 2)}')
    for r in range(12, 16):
        A(f'v_mov_b32 v{Ep + r}, 0')
        A(f'v_mov_b32 v{En + r}, 0')
    A('s_mov_b64 exec, -1')


A(f'''
s_cmp_ge_u32 s2, 256
s_cbranch_scc1 L_end
s_load_dwordx16 s[4:19], s[0:1], 0
s_load_dwordx4 s[20:23], s[0:1], 64
''')
if OPT.get('padto'):
    A('s_memrealtime s[96:97]')
if OPT['stamps']:
    A('v_mov_b32 v255, 0')
stamp('start')
vXg0, vXg1, vWg = 16, 17, 18
vXl, vWl = 21, 25
vXb, vWb = 28, 32
vFA, vFB = 36, 52
vAcc = 68
SLOT = 40960
MISC1 = 3 * SLOT
A(f'''
v_lshrrev_b32 v{vT}, 6, v0
v_and_b32 v{vL}, 63, v0
v_readfirstlane_b32 s{sWv}, v{vT}
v_lshlrev_b32 v{vLin}, 4, v{vL}
v_lshrrev_b32 v{vH}, 5, v{vL}
s_and_b32 s{sXc}, s2, 7
s_lshr_b32 s{sJ}, s2, 3
s_lshr_b32 s{sB}, s{sXc}, 2
s_and_b32 s{sT}, s{sXc}, 2
s_lshl_b32 s{sT}, s{sT}, 2
s_and_b32 s{sRB1}, s{sJ}, 7
s_add_u32 s{sRB1}, s{sRB1}, s{sT}
s_and_b32 s{sT}, s{sXc}, 1
s_lshl_b32 s{sT}, s{sT}, 2
s_lshr_b32 s{sCG}, s{sJ}, 3
s_add_u32 s{sCG}, s{sCG}, s{sT}
s_and_b32 s{sRT}, s{sWv}, 3
s_lshr_b32 s{sHH}, s{sWv}, 2
s_mul_i32 s{sXbase}, s{sRB1}, {128 * 896}
s_cmp_eq_u32 s{sB}, 0
s_cselect_b32 s{sT}, 3, 1
s_cselect_b32 s{sT + 1}, 1, 8
s_mul_i32 s{sT}, s{sT}, 112
s_mul_i32 s{sT + 1}, s{sT + 1}, 112
s_mul_i32 s{sWbase}, s{sCG}, s{sT}
v_lshrrev_b32 v{vT}, 3, v{vL}
s_lshl_b32 s{sT + 2}, s{sWv}, 4
v_add_u32 v{vT + 1}, s{sT + 2}, v{vT}
v_mul_u32_u24 v{vT + 1}, 896, v{vT + 1}
v_lshrrev_b32 v{vT + 2}, 4, v{vL}
v_and_b32 v{vT + 3}, 7, v{vL}
v_xor_b32 v{vT + 2}, v{vT + 2}, v{vT + 3}
v_lshl_add_u32 v{vXg0}, v{vT + 2}, 4, v{vT + 1}
v_xor_b32 v{vT + 2}, 4, v{vT + 2}
v_lshl_add_u32 v{vXg1}, v{vT + 2}, 4, v{vT + 1}
v_add_u32 v{vXg1}, {8 * 896 - 1024}, v{vXg1}
s_lshl_b32 s{sT + 2}, s{sWv}, 3
v_bfe_u32 v{vT + 4}, v{vL}, 2, 1
v_and_b32 v{vT + 5}, 3, v{vL}
''')
for i in range(3):
    A(f'''
    v_add_u32 v{vT + 1}, {8 * i}, v{vT}
    v_mul_u32_u24 v{vT + 2}, 11, v{vT + 1}
    v_lshrrev_b32 v{vT + 2}, 5, v{vT + 2}
    v_mul_u32_u24 v{vT + 3}, 3, v{vT + 2}
    v_sub_u32 v{vT + 1}, v{vT + 1}, v{vT + 3}
    v_mul_u32_u24 v{vT + 1}, s{sT + 1}, v{vT + 1}
    v_bfe_u32 v{vT + 3}, v{vT + 2}, 1, 1
    v_xor_b32 v{vT + 3}, v{vT + 3}, v{vT + 4}
    v_mad_u32_u24 v{vT + 3}, v{vT + 3}, 3, v{vT + 5}
    v_lshl_add_u32 v{vT + 1}, v{vT + 3}, 4, v{vT + 1}
    v_add_u32 v{vT + 2}, s{sT + 2}, v{vT + 2}
    v_mul_u32_u24 v{vT + 2}, 2688, v{vT + 2}
    v_add_u32 v{vT + 2}, v{vT + 2}, v{vT + 1}
    v_subrev_u32 v{vWg + i}, {1024 * i}, v{vT + 2}
    ''')
if OPT['rot']:
    A(f'''
    s_add_u32 s{sKC}, s{sRB1}, s{sCG}
    s_mul_i32 s{sT + 2}, s{sKC}, 37
    s_lshr_b32 s{sT + 2}, s{sT + 2}, 8
    s_mul_i32 s{sT + 2}, s{sT + 2}, 7
    s_sub_u32 s{sKC}, s{sKC}, s{sT + 2}
    ''')
else:
    A(f's_mov_b32 s{sKC}, 0')
A(f'''
s_mov_b32 s{sSlotWr}, 0
s_waitcnt lgkmcnt(0)
s_cmp_eq_u32 s{sB}, 0
s_cselect_b32 s{sX}, s4, s10
s_cselect_b32 s{sX + 1}, s5, s11
s_cselect_b32 s{sW}, s6, s12
s_cselect_b32 s{sW + 1}, s7, s13
s_mov_b32 s{sX + 2}, {2048 * 896}
s_mov_b32 s{sX + 3}, 0x20000
s_mov_b32 s{sW + 2}, {448 * 2688}
s_mov_b32 s{sW + 3}, 0x20000
''')


def p1_issue():
    A(f'''
    s_lshl_b32 s{sXo}, s{sKC}, 7
    s_add_u32 s{sXo}, s{sXo}, s{sXbase}
    s_mul_i32 s{sWo}, s{sKC}, {64 * 2688}
    s_add_u32 s{sWo}, s{sWo}, s{sWbase}
    s_lshl_b32 s{sM0}, s{sWv}, 11
    s_add_u32 m0, s{sM0}, s{sSlotWr}
    s_mul_i32 s{sM0}, s{sWv}, 3072
    buffer_load_dwordx4 v{vXg0}, {sr(sX, 4)}, s{sXo} offen lds
    buffer_load_dwordx4 v{vXg1}, {sr(sX, 4)}, s{sXo} offen offset:1024 lds
    s_add_u32 s{sM0}, s{sM0}, s{sSlotWr}
    s_add_u32 m0, s{sM0}, 16384
    s_add_u32 s{sKC}, s{sKC}, 1
    buffer_load_dwordx4 v{vWg}, {sr(sW, 4)}, s{sWo} offen lds
    buffer_load_dwordx4 v{vWg + 1}, {sr(sW, 4)}, s{sWo} offen offset:1024 lds
    buffer_load_dwordx4 v{vWg + 2}, {sr(sW, 4)}, s{sWo} offen offset:2048 lds
    s_cmp_eq_u32 s{sKC}, 7
    s_cselect_b32 s{sKC}, 0, s{sKC}
    s_add_u32 s{sSlotWr}, s{sSlotWr}, {SLOT}
    s_cmp_eq_u32 s{sSlotWr}, {3 * SLOT}
    s_cselect_b32 s{sSlotWr}, 0, s{sSlotWr}
    ''')


A(f's_mov_b32 s{sC}, 0')
A('L_pro:')
p1_issue()
A(f'''
s_add_u32 s{sC}, s{sC}, 1
s_cmp_lt_u32 s{sC}, 3
s_cbranch_scc1 L_pro
''')
srd(sWS, 22, WS_END)
srd(sDBG, 20, 256)
srd(sPHI, 14, 16 * 1568)
srd(sOUT, 18, 2048 * 1792)
A(f'''
s_mov_b32 s{sL}, {f32(LOG2E)}
s_mov_b32 s{sL + 1}, {f32(LOG2E)}
s_mov_b32 s{sHi}, 0
s_mov_b32 s{sHi + 1}, -1
s_mov_b32 s{sOnesM}, 0x10000000
s_mov_b32 s{sOnesM + 1}, 0x10000000
s_lshr_b32 s{sH}, s{sJ}, 4
s_lshl_b32 s{sT}, s{sXc}, 1
s_add_u32 s{sH}, s{sH}, s{sT}
s_and_b32 s{sRB}, s{sJ}, 15
s_mov_b32 s{sFB}, 0
''')
A(f'''
s_cmp_eq_u32 s{sWv}, 7
s_cbranch_scc0 L_nopf
s_getpc_b64 s[{sT}:{sT + 1}]
L_pc:
s_lshl_b32 s{sT + 2}, s{sJ}, 10
s_cmp_lt_u32 s{sT + 2}, L_end-L_pc
s_cbranch_scc0 L_nopf
s_add_u32 s{sT}, s{sT}, s{sT + 2}
s_addc_u32 s{sT + 1}, s{sT + 1}, 0
global_load_dword v{vT + 6}, v{vLin}, s[{sT}:{sT + 1}]
L_nopf:
s_cmp_eq_u32 s{sWv}, 6
s_cbranch_scc0 L_noinit
s_cmp_eq_u32 s{sJ}, 0
s_cbranch_scc0 L_noinit
v_mov_b32 v{vT + 4}, 0
v_mov_b32 v{vT + 5}, 0
v_mov_b32 v{vT + 6}, 0
v_mov_b32 v{vT + 7}, 0
s_mul_i32 s{sT}, s{sXc}, {8 * FLINE}
s_add_u32 s{sT}, s{sT}, {WS_FL}
buffer_store_dwordx4 {vr(vT + 4, 4)}, v{vLin}, {sr(sWS, 4)}, s{sT} offen sc1
buffer_store_dwordx4 {vr(vT + 4, 4)}, v{vLin}, {sr(sWS, 4)}, s{sT} offen offset:1024 sc1
s_waitcnt vmcnt(0)
v_mov_b32 v{vT + 5}, 1
s_lshl_b32 s{sT}, s{sXc}, 2
s_mov_b64 exec, 1
buffer_store_dword v{vT + 5}, v{vT + 4}, {sr(sDBG, 4)}, s{sT} offen sc1
s_mov_b64 exec, -1
L_noinit:
''')
assert 8 * FLINE == 2048
A(f'''
s_cmp_eq_u32 s{sB}, 0
s_cbranch_scc1 L_nophi
s_cmp_ge_u32 s{sWv}, 4
s_cbranch_scc1 L_nophi
s_lshl_b32 s{sT}, s{sWv}, 10
s_add_u32 m0, s{sT}, {MISC1}
s_mul_i32 s{sT + 1}, s{sCG}, 3136
s_add_u32 s{sT}, s{sT}, s{sT + 1}
buffer_load_dwordx4 v{vLin}, {sr(sPHI, 4)}, s{sT} offen lds
L_nophi:
''')
A(f'''
v_and_b32 v{vT}, 31, v{vL}
v_bfe_u32 v{vT + 1}, v{vL}, 1, 3
v_xor_b32 v{vT + 1}, v{vT + 1}, v{vH}
v_lshlrev_b32 v{vT + 1}, 4, v{vT + 1}
s_lshl_b32 s{sT}, s{sRT}, 5
v_add_u32 v{vT}, s{sT}, v{vT}
v_lshl_add_u32 v{vXb}, v{vT}, 7, v{vT + 1}
v_xor_b32 v{vXb + 1}, 32, v{vXb}
v_xor_b32 v{vXb + 2}, 64, v{vXb}
v_xor_b32 v{vXb + 3}, 0x60, v{vXb}
v_bfe_u32 v{vT}, v{vL}, 2, 2
v_lshl_add_u32 v{vT + 1}, v{vH}, 3, v{vT}
v_mul_u32_u24 v{vT + 1}, 384, v{vT + 1}
v_lshrrev_b32 v{vT}, 1, v{vT}
v_bfe_u32 v{vT + 2}, v{vL}, 4, 1
v_and_b32 v{vT + 3}, 3, v{vL}
v_lshl_add_u32 v{vT + 2}, v{vT + 2}, 2, v{vT + 3}
''')
for i in range(3):
    A(f'''
    s_mul_i32 s{sT}, s{sHH}, 3
    s_add_u32 s{sT}, s{sT}, {i}
    s_add_u32 s{sT + 1}, s{sHH}, {2 * i}
    s_cmp_eq_u32 s{sB}, 0
    s_cselect_b32 s{sT}, s{sT}, s{sT + 1}
    s_and_b32 s{sT + 1}, s{sT}, 1
    s_lshr_b32 s{sT}, s{sT}, 1
    s_lshl_b32 s{sT}, s{sT}, 7
    s_add_u32 s{sT}, s{sT}, 16384
    v_add_u32 v{vT + 3}, s{sT + 1}, v{vT + 2}
    v_and_b32 v{vT + 3}, 7, v{vT + 3}
    v_xor_b32 v{vT + 4}, s{sT + 1}, v{vT}
    v_lshl_add_u32 v{vT + 3}, v{vT + 4}, 3, v{vT + 3}
    v_lshl_add_u32 v{vT + 3}, v{vT + 3}, 3, v{vT + 1}
    v_add_u32 v{vWb + i}, s{sT}, v{vT + 3}
    ''')
for i in range(48):
    A(f'v_mov_b32 v{vAcc + i}, 0')
A(f'''
s_mov_b32 s{sC}, 0
s_mov_b32 s{sSlotRd}, 0
s_lshl_b32 s{sT}, s{sCG}, 1
s_add_u32 s{sT}, s{sT}, s{sHH}
s_cmp_eq_u32 s{sB}, 0
s_cselect_b32 s{sT}, s{sT}, 10
s_waitcnt vmcnt(10)
''')
stamp('p1_first')
A(f'''
s_cmp_eq_u32 s{sT}, 10
s_cbranch_scc1 L_p1_TTN
s_cmp_gt_u32 s{sT}, 10
s_cbranch_scc1 L_p1_NNN
''')


def p1_reads(s, F):
    A(f'ds_read_b128 {vr(F, 4)}, v{vXl + s}')
    for i in range(3):
        for u in range(2):
            A(f'ds_read_b64_tr_b16 {vr(F + 4 + 4 * i + 2 * u, 2)}, v{vWl + i} offset:{(16 * s + 4 * u) * 384}')


def p1_mfma(F, var):
    for i in range(3):
        w, x, acc = vr(F + 4 + 4 * i, 4), vr(F, 4), vr(vAcc + 16 * i, 16)
        a, b = (w, x) if var[i] == 'T' else (x, w)
        A(f'v_mfma_f32_32x32x16_bf16 {acc}, {a}, {b}, {acc}')


for var in ('TTT', 'TTN', 'NNN'):
    A(f'L_p1_{var}:')
    for i in range(4):
        A(f'v_add_u32 v{vXl + i}, s{sSlotRd}, v{vXb + i}')
    for i in range(3):
        A(f'v_add_u32 v{vWl + i}, s{sSlotRd}, v{vWb + i}')
    A('s_barrier')
    p1_reads(0, vFA)
    p1_reads(1, vFB)
    A(f'''
    s_sub_u32 s{sT}, s{sC}, 1
    s_cmp_lt_u32 s{sT}, 4
    s_cbranch_scc0 L_p1_ni_{var}
    ''')
    p1_issue()
    A(f'L_p1_ni_{var}:')
    A('s_waitcnt lgkmcnt(7)')
    p1_mfma(vFA, var)
    p1_reads(2, vFA)
    A('s_waitcnt lgkmcnt(7)')
    p1_mfma(vFB, var)
    p1_reads(3, vFB)
    A('s_waitcnt lgkmcnt(7)')
    p1_mfma(vFA, var)
    A('s_waitcnt lgkmcnt(0)')
    p1_mfma(vFB, var)
    A(f'''
    s_add_u32 s{sSlotRd}, s{sSlotRd}, {SLOT}
    s_cmp_eq_u32 s{sSlotRd}, {3 * SLOT}
    s_cselect_b32 s{sSlotRd}, 0, s{sSlotRd}
    s_add_u32 s{sC}, s{sC}, 1
    s_cmp_eq_u32 s{sC}, 7
    s_cbranch_scc1 L_p1_done
    s_waitcnt vmcnt(5)
    s_cmp_eq_u32 s{sC}, 6
    s_cbranch_scc0 L_p1_{var}
    s_waitcnt vmcnt(0)
    s_branch L_p1_{var}
    ''')
A('L_p1_done:')
stamp('p1_done')
vP = 36
A(f'''
s_lshl_b32 s{sT + 4}, s{sRB1}, 2
s_add_u32 s{sT + 4}, s{sT + 4}, s{sRT}
s_cmp_eq_u32 s{sB}, 0
s_cbranch_scc0 L_epiB
''')
A(f'''
v_and_b32 v{vT}, 0x33, v{vL}
v_bfe_u32 v{vT + 1}, v{vL}, 2, 1
v_bfe_u32 v{vT + 2}, v{vL}, 3, 1
v_lshl_add_u32 v{vT}, v{vT + 1}, 3, v{vT}
v_lshl_add_u32 v{vT}, v{vT + 2}, 2, v{vT}
v_lshlrev_b32 v{vT}, 4, v{vT}
s_mov_b32 s{sT + 6}, {f32(QSCALE)}
s_mov_b32 s{sT + 7}, {f32(QSCALE)}
''')
for i in range(3):
    acc, P = vAcc + 16 * i, vP + 8 * i
    A(f'''
    s_lshl_b32 s{sT}, s{sCG}, 1
    s_add_u32 s{sT}, s{sT}, s{sHH}
    s_mul_i32 s{sT}, s{sT}, 3
    s_add_u32 s{sT}, s{sT}, {i}
    s_and_b32 s{sT + 1}, s{sT}, 15
    s_lshl_b32 s{sT + 1}, s{sT + 1}, 6
    s_add_u32 s{sT + 1}, s{sT + 1}, s{sT + 4}
    s_cmp_ge_u32 s{sT}, 16
    s_cbranch_scc1 L_eA_kv{i}
    ''')
    for r in range(0, 16, 2):
        A(f'v_pk_mul_f32 {vr(acc + r, 2)}, {vr(acc + r, 2)}, {sr(sT + 6, 2)}')
    cvt8(P, acc)
    A(f'''
    s_lshl_b32 s{sT + 1}, s{sT + 1}, 11
    s_mov_b64 exec, {sr(sHi, 2)}
    v_mov_b32 v{P + 6}, 0
    v_mov_b32 v{P + 7}, 0
    s_mov_b64 exec, -1
    buffer_store_dwordx4 {vr(P, 4)}, v{vLin}, {sr(sWS, 4)}, s{sT + 1} offen sc1
    buffer_store_dwordx4 {vr(P + 4, 4)}, v{vLin}, {sr(sWS, 4)}, s{sT + 1} offen offset:1024 sc1
    s_branch L_eA_n{i}
    L_eA_kv{i}:
    ''')
    cvt8(P, acc)
    A(f'''
    s_lshl_b32 s{sT + 1}, s{sT + 1}, 12
    s_add_u32 s{sT + 1}, s{sT + 1}, {WS_KV}
    s_cmp_ge_u32 s{sT}, 32
    s_cbranch_scc1 L_eA_v{i}
    s_mov_b64 exec, {sr(sHi, 2)}
    v_mov_b32 v{P + 6}, 0x3f803f80
    v_mov_b32 v{P + 7}, 0x3f80
    s_mov_b64 exec, -1
    buffer_store_dwordx4 {vr(P, 4)}, v{vT}, {sr(sWS, 4)}, s{sT + 1} offen sc1
    buffer_store_dwordx4 {vr(P + 4, 4)}, v{vT}, {sr(sWS, 4)}, s{sT + 1} offen offset:1024 sc1
    s_branch L_eA_n{i}
    L_eA_v{i}:
    s_mov_b64 exec, {sr(sOnesM, 2)}
    ''')
    for r in range(8):
        A(f'v_mov_b32 v{P + r}, 0x3f803f80')
    A(f'''
    s_mov_b64 exec, -1
    buffer_store_dwordx4 {vr(P, 4)}, v{vLin}, {sr(sWS, 4)}, s{sT + 1} offen offset:2048 sc1
    buffer_store_dwordx4 {vr(P + 4, 4)}, v{vLin}, {sr(sWS, 4)}, s{sT + 1} offen offset:3072 sc1
    L_eA_n{i}:
    ''')
A(f'''
s_mul_i32 s{sT}, s{sCG}, 3
v_add_u32 v{vT}, s{sT}, v{vL}
v_and_b32 v{vT + 1}, 7, v{vT}
v_lshrrev_b32 v{vT}, 3, v{vT}
v_lshl_add_u32 v{vT}, v{vT + 1}, 3, v{vT}
v_lshlrev_b32 v{vT + 2}, 8, v{vT}
s_mov_b32 s{sT + 5}, 7
s_branch L_sig1
''')
PHI_IMG, V_IMG = SLOT, 2 * SLOT
vWF, vX, vEp, vEn = 60, 116, 132, 148
A('L_epiB:')
A(f'''
v_bfe_u32 v{vT}, v{vL}, 2, 2
v_lshl_add_u32 v{vT}, v{vH}, 2, v{vT}
v_mul_u32_u24 v{vT + 1}, 56, v{vT}
v_bfe_u32 v{vT + 2}, v{vL}, 4, 1
v_and_b32 v{vT + 3}, 3, v{vL}
v_lshl_add_u32 v{vT + 2}, v{vT + 2}, 2, v{vT + 3}
v_lshl_add_u32 v{vT + 1}, v{vT + 2}, 3, v{vT + 1}
s_mul_i32 s{sT}, s{sHH}, 1568
s_add_u32 s{sT}, s{sT}, {MISC1}
v_add_u32 v{vT + 1}, s{sT}, v{vT + 1}
''')
for q in range(4):
    A(f'ds_read_b64_tr_b16 {vr(vWF + 2 * q, 2)}, v{vT + 1} offset:{8 * q * 56}')
cvt8(vP + 8, vAcc + 16)
cvt8(vP, vAcc)
A(f'''
s_mov_b64 exec, {sr(sHi, 2)}
v_mov_b32 v{vP + 14}, 0
v_mov_b32 v{vP + 15}, 0
v_mov_b32 v{vP + 6}, 0
v_mov_b32 v{vP + 7}, 0
s_mov_b64 exec, -1
s_lshl_b32 s{sT + 3}, s{sCG}, 1
s_add_u32 s{sT + 3}, s{sT + 3}, s{sHH}
s_lshl_b32 s{sT + 1}, s{sT + 3}, 6
s_add_u32 s{sT + 1}, s{sT + 1}, s{sT + 4}
s_lshl_b32 s{sT + 1}, s{sT + 1}, 11
s_add_u32 s{sT + 1}, s{sT + 1}, {WS_QB}
s_waitcnt lgkmcnt(0)
v_mfma_f32_32x32x16_bf16 {vr(vX, 16)}, {vr(vWF, 4)}, {vr(vP + 8, 4)}, 0
v_mfma_f32_32x32x16_bf16 {vr(vX, 16)}, {vr(vWF + 4, 4)}, {vr(vP + 12, 4)}, {vr(vX, 16)}
buffer_store_dwordx4 {vr(vP, 4)}, v{vLin}, {sr(sWS, 4)}, s{sT + 1} offen sc1
buffer_store_dwordx4 {vr(vP + 4, 4)}, v{vLin}, {sr(sWS, 4)}, s{sT + 1} offen offset:1024 sc1
''')
cvt8(vP + 16, vAcc + 32)
A(f's_mov_b64 exec, {sr(sOnesM, 2)}')
for r in range(8):
    A(f'v_mov_b32 v{vP + 16 + r}, 0x3f803f80')
A(f'''
s_mov_b64 exec, -1
s_lshl_b32 s{sT}, s{sWv}, 11
s_add_u32 s{sT}, s{sT}, {V_IMG}
v_add_u32 v{vT + 1}, s{sT}, v{vLin}
ds_write_b128 v{vT + 1}, {vr(vP + 16, 4)}
ds_write_b128 v{vT + 1}, {vr(vP + 20, 4)} offset:1024
''')
features(vX, vEp, vEn, vT + 4)
sp, sn = vT + 4, vT + 6
A(f'v_pk_add_f32 {vr(sp, 2)}, {vr(vEp, 2)}, {vr(vEp + 2, 2)}')
A(f'v_pk_add_f32 {vr(sn, 2)}, {vr(vEn, 2)}, {vr(vEn + 2, 2)}')
for r in range(4, 16, 2):
    A(f'v_pk_add_f32 {vr(sp, 2)}, {vr(sp, 2)}, {vr(vEp + r, 2)}')
    A(f'v_pk_add_f32 {vr(sn, 2)}, {vr(sn, 2)}, {vr(vEn + r, 2)}')
A(f'''
v_add_f32 v{sp}, v{sp}, v{sp + 1}
v_add_f32 v{sn}, v{sn}, v{sn + 1}
v_permlane32_swap_b32 v{sp}, v{sn}
v_add_f32 v{sp}, v{sp}, v{sn}
v_rcp_f32 v{sp}, v{sp}
v_and_b32 v{vT}, 31, v{vL}
v_bfe_u32 v{vT + 1}, v{vL}, 1, 2
v_lshlrev_b32 v{vT + 2}, 1, v{vH}
v_xor_b32 v{vT + 1}, v{vT + 1}, v{vT + 2}
v_mov_b32 v{sn}, v{sp}
v_lshlrev_b32 v{vT + 1}, 4, v{vT + 1}
v_lshl_add_u32 v{vT}, v{vT}, 6, v{vT + 1}
v_permlane32_swap_b32 v{sp}, v{sn}
s_lshl_b32 s{sT}, s{sHH}, 14
s_lshl_b32 s{sT + 1}, s{sRT}, 11
s_add_u32 s{sT}, s{sT}, s{sT + 1}
s_add_u32 s{sT}, s{sT}, {PHI_IMG}
v_add_u32 v{vT}, s{sT}, v{vT}
v_xor_b32 v{vT + 1}, 16, v{vT}
''')
for E, s_, off in ((vEp, sp, 0), (vEn, sn, 8192)):
    for r in range(0, 16, 2):
        A(f'v_pk_mul_f32 {vr(E + r, 2)}, {vr(E + r, 2)}, {vr(s_, 2)} op_sel_hi:[1,0]')
    P = vX if off == 0 else vX + 8
    cvt8(P, E)
    A(f'ds_write_b128 v{vT}, {vr(P, 4)} offset:{off}')
    A(f'ds_write_b128 v{vT + 1}, {vr(P + 4, 4)} offset:{off}')
A(f'''
s_waitcnt lgkmcnt(0)
s_barrier
s_cmp_ge_u32 s{sWv}, 4
s_cbranch_scc1 L_eB_skip
v_bfe_u32 v{vT}, v{vL}, 2, 2
v_lshl_add_u32 v{vT + 1}, v{vH}, 2, v{vT}      ; 4h + r
v_lshrrev_b32 v{vT + 2}, 1, v{vT + 1}          ; 2h + (r>>1)
v_bfe_u32 v{vT + 3}, v{vL}, 4, 1
v_and_b32 v{vT}, 2, v{vL}
v_or_b32 v{vT + 3}, v{vT + 3}, v{vT}           ; 2*a1 + a2
v_xor_b32 v{vT + 2}, v{vT + 2}, v{vT + 3}
v_lshlrev_b32 v{vT + 2}, 4, v{vT + 2}
v_lshl_add_u32 v{vT + 1}, v{vT + 1}, 6, v{vT + 2}
v_and_b32 v{vT}, 1, v{vL}
v_lshl_add_u32 v{vT + 1}, v{vT}, 3, v{vT + 1}
s_lshl_b32 s{sT}, s{sWv}, 13
s_add_u32 s{sT}, s{sT}, {PHI_IMG}
v_add_u32 v{vT + 1}, s{sT}, v{vT + 1}
s_lshr_b32 s{sT + 2}, s{sWv}, 1
s_lshl_b32 s{sT}, s{sT + 2}, 13
s_add_u32 s{sT}, s{sT}, {V_IMG}
v_add_u32 v{vT + 2}, s{sT}, v{vLin}
''')
vKa, vKb = 36, 68


def kv_reads(st):
    A(f'ds_read_b64_tr_b16 {vr(vKa + 4 * st, 2)}, v{vT + 1} offset:{(16 * st) * 64}')
    A(f'ds_read_b64_tr_b16 {vr(vKa + 4 * st + 2, 2)}, v{vT + 1} offset:{(16 * st + 8) * 64}')
    A(f'ds_read_b128 {vr(vKb + 4 * st, 4)}, v{vT + 2} offset:{st * 1024}')


for st in range(4):
    kv_reads(st)
for st in range(8):
    A(f's_waitcnt lgkmcnt({min(9, 3 * (7 - st))})')
    A(f'v_mfma_f32_32x32x16_bf16 {vr(vX, 16)}, {vr(vKa + 4 * st, 4)}, {vr(vKb + 4 * st, 4)}, {vr(vX, 16) if st else 0}')
    if st + 4 < 8:
        kv_reads(st + 4)
A(f'''
s_lshl_b32 s{sT}, s{sCG}, 1
s_add_u32 s{sT}, s{sT}, s{sT + 2}
s_lshl_b32 s{sT}, s{sT}, 4
s_add_u32 s{sT}, s{sT}, s{sRB1}
s_lshl_b32 s{sT}, s{sT}, 1
s_and_b32 s{sT + 1}, s{sWv}, 1
s_add_u32 s{sT}, s{sT}, s{sT + 1}
s_lshl_b32 s{sT}, s{sT}, 12
s_add_u32 s{sT}, s{sT}, {WS_KVP}
''')
for q in range(4):
    A(f'buffer_store_dwordx4 {vr(vX + 4 * q, 4)}, v{vLin}, {sr(sWS, 4)}, s{sT} offen offset:{1024 * q} sc1')
A(f'''
L_eB_skip:
s_lshl_b32 s{sT}, s{sCG}, 3
s_add_u32 s{sT}, s{sT}, 3
s_lshl_b32 s{sT}, s{sT}, 8
v_mov_b32 v{vT + 2}, s{sT}
s_mov_b32 s{sT + 5}, 1
''')
A('L_sig1:')
stamp('epi_done')
A(f'''
v_lshlrev_b32 v{vT + 3}, 2, v{vL}
s_cmp_eq_u32 s{sWv}, 0
s_cbranch_scc0 L_s1a
s_mov_b64 exec, 0xff
s_mov_b32 s{sSpin}, {OPT['spin']}
L_initpoll:
buffer_load_dword v{vT}, v{vT + 3}, {sr(sDBG, 4)}, 0 offen sc1
s_sub_u32 s{sSpin}, s{sSpin}, 1
s_cmp_eq_u32 s{sSpin}, 0
s_cbranch_scc1 L_initx
s_waitcnt vmcnt(0)
v_cmp_ne_u32 vcc, 1, v{vT}
s_cbranch_vccnz L_initpoll
L_initx:
s_mov_b64 exec, -1
L_s1a:
s_waitcnt vmcnt(0)
s_barrier
''')
stamp('drained')
vFl = vT + 8
vOne = vT + 9
A(f'''
v_lshrrev_b32 v{vT}, 4, v{vL}
v_and_b32 v{vT + 1}, 15, v{vL}
v_lshlrev_b32 v{vT + 1}, 2, v{vT + 1}
v_lshl_add_u32 v{vFl}, v{vT}, 8, v{vT + 1}
v_mov_b32 v{vOne}, 1
s_cmp_eq_u32 s{sWv}, 0
s_cbranch_scc0 L_s1b
s_lshl_b32 s{sT}, s{sRB1}, 2
s_add_u32 s{sT}, s{sT}, {WS_FL}
s_mov_b32 exec_lo, s{sT + 5}
s_mov_b32 exec_hi, 0
buffer_store_dword v{vOne}, v{vT + 2}, {sr(sWS, 4)}, s{sT} offen sc1
s_mul_i32 s{sT}, s{sXc}, {8 * FLINE}
s_add_u32 s{sT}, s{sT}, {WS_FL}
s_lshl_b32 s{sT + 1}, 1, s{sRB}
s_or_b32 s{sT + 1}, s{sT + 1}, 0xffff0000
''')
poll('s1', sT, f's{sT + 1}', '0xffff', vFl)
A('''
L_s1b:
s_barrier
''')
stamp('s1_done')
vQ, vO, vS, vPp, vF, vIdx, vRd = 16, 24, 40, 72, 88, 120, 122
MISC2 = 131072
A(f'''
s_lshl_b32 s{sT}, s{sH}, 6
s_lshl_b32 s{sT + 1}, s{sHH}, 5
s_add_u32 s{sT + 1}, s{sT + 1}, s{sRT}
s_add_u32 s{sT + 1}, s{sT + 1}, s{sT}
s_lshl_b32 s{sKVo}, s{sT + 1}, 12
s_add_u32 s{sKVo}, s{sKVo}, {WS_KV}
s_lshl_b32 s{sM0}, s{sWv}, 12
s_lshl_b32 s{sT + 1}, s{sRB}, 2
s_add_u32 s{sT + 1}, s{sT + 1}, s{sRT}
s_add_u32 s{sT + 1}, s{sT + 1}, s{sT}
s_lshl_b32 s{sT + 1}, s{sT + 1}, 11
''')


def kv_issue(c):
    A(f's_add_u32 m0, s{sM0}, {(c % 4) * 32768}')
    A(f's_add_u32 s{sT + 2}, s{sKVo}, {c * 16384}')
    for q in range(4):
        A(f'buffer_load_dwordx4 v{vLin}, {sr(sWS, 4)}, s{sT + 2} offen offset:{1024 * q} sc1 lds')


A(f'buffer_load_dwordx4 {vr(vQ, 4)}, v{vLin}, {sr(sWS, 4)}, s{sT + 1} offen sc1')
A(f'buffer_load_dwordx4 {vr(vQ + 4, 4)}, v{vLin}, {sr(sWS, 4)}, s{sT + 1} offen offset:1024 sc1')
for c in range(4):
    kv_issue(c)
A(f'''
s_lshl_b32 s{sT}, s{sHH}, 14
v_add_u32 v{vRd}, s{sT}, v{vLin}
v_add_u32 v{vRd + 1}, 0x10000, v{vRd}
v_mov_b32 v{vIdx}, 0xdddddddd
''')
for r in range(16):
    A(f'v_mov_b32 v{vO + r}, 0')


def lds_frag(dst, t, piece):
    off = ((t >> 2) % 4) * 32768 + (t & 3) * 4096 + piece * 1024
    A(f'ds_read_b128 {vr(dst, 4)}, v{vRd + (off >> 16)} offset:{off & 0xffff}')


def set_qpad(m, t):
    A(f'''
    v_and_b32 v{t}, 0xffff0000, v{m}
    v_sub_f32 v{t + 1}, v{m}, v{t}
    v_and_b32 v{t + 2}, 0xffff0000, v{t + 1}
    v_sub_f32 v{t + 1}, v{t + 1}, v{t + 2}
    v_lshrrev_b32 v{t}, 16, v{t}
    s_mov_b64 exec, {sr(sHi, 2)}
    v_or_b32 v{vQ + 6}, v{t}, v{t + 2}
    v_lshrrev_b32 v{vQ + 7}, 16, v{t + 1}
    s_mov_b64 exec, -1
    ''')


def max16(m, S, first):
    if first:
        A(f'v_max3_f32 v{m}, v{S}, v{S + 1}, v{S + 2}')
        for r in range(3, 15, 2):
            A(f'v_max3_f32 v{m}, v{m}, v{S + r}, v{S + r + 1}')
        A(f'v_max_f32 v{m}, v{m}, v{S + 15}')
    else:
        for r in range(0, 16, 2):
            A(f'v_max3_f32 v{m}, v{m}, v{S + r}, v{S + r + 1}')


def qk(S, K, half):
    c = vr(S, 16) if half else '0'
    A(f'v_mfma_f32_32x32x16_bf16 {vr(S, 16)}, {vr(K, 4)}, {vr(vQ + 4 * half, 4)}, {c}')


def pv(V, half):
    A(f'v_smfmac_f32_32x32x32_bf16 {vr(vO, 16)}, {vr(V, 4)}, {vr(vPp + 8 * half, 8)}, v{vIdx}')


A(f'''
s_waitcnt vmcnt(12)
s_barrier
''')
stamp('kv0')
A(f'ds_read_b128 {vr(vPp, 4)}, v{vLin}')
A(f'ds_read_b128 {vr(vPp + 4, 4)}, v{vLin} offset:1024')
lds_frag(vF + 16, 0, 0)
lds_frag(vF + 20, 0, 1)
lds_frag(vF, 1, 0)
lds_frag(vF + 4, 1, 1)
lds_frag(vF + 12, 0, 2)
A('s_waitcnt lgkmcnt(5)')
qk(vS + 16, vPp, 0)
qk(vS + 16, vPp + 4, 1)
max16(vT, vS + 16, True)
A(f'''
v_mov_b32 v{vT + 1}, v{vT}
v_permlane32_swap_b32 v{vT}, v{vT + 1}
v_max_f32 v{vT}, v{vT}, v{vT + 1}
v_sub_f32 v{vT}, {f32(-24.0 if not OPT['force_fb'] else 200.0)}, v{vT}
''')
set_qpad(vT, vT + 1)
A('s_waitcnt lgkmcnt(3)')
qk(vS, vF + 16, 0)
qk(vS, vF + 20, 1)
A('s_nop 7')
A('.p2align 3')
for t in range(32):
    S, Sn = vS + 16 * (t & 1), vS + 16 * ((t + 1) & 1)
    F, Fn = vF + 16 * (t & 1), vF + 16 * ((t + 1) & 1)
    ex = lambda r: A(f'v_exp_f32 v{vPp + r}, v{S + r}')
    c = t >> 2
    if (t & 3) == 2 and c < 7:
        allowed = min(7, max(3, c + 2)) - (c + 1)
        A(f's_waitcnt vmcnt({4 * allowed}) lgkmcnt(0)')
        A('s_barrier')
    else:
        A('s_waitcnt lgkmcnt(0)')
        A('s_nop 0')
    if t < 31:
        qk(Sn, F, 0)
    if t < 30:
        lds_frag(Fn, t + 2, 0)
    for r in range(0, 4):
        ex(r)
    if t < 31:
        qk(Sn, F + 4, 1)
    if t < 30:
        lds_frag(Fn + 4, t + 2, 1)
    for r in range(4, 8):
        ex(r)
    if t > 0:
        pv(F + 8, 1)
    lds_frag(Fn + 8, t, 3)
    for r in range(8, 12):
        ex(r)
    pv(F + 12, 0)
    if t < 31:
        lds_frag(Fn + 12, t + 1, 2)
    if (t & 3) == 2 and 1 <= c <= 4:
        kv_issue(c + 3)
        A('.p2align 3')
    for r in range(12, 16):
        ex(r)
A('s_waitcnt lgkmcnt(0)')
pv(vF + 8, 1)
stamp('att_done')
A('L_merge:')
XCH, XL, XF = MISC2, MISC2 + 16384, MISC2 + 16384 + 2048
A(f'''
s_lshl_b32 s{sT}, s{sWv}, 11
s_add_u32 s{sT}, s{sT}, {XCH}
v_add_u32 v{vT + 1}, s{sT}, v{vLin}
s_xor_b32 s{sT}, s{sT}, 0x2000
v_add_u32 v{vT + 2}, s{sT}, v{vLin}
s_lshl_b32 s{sT}, s{sWv}, 8
s_add_u32 s{sT}, s{sT}, {XL}
v_lshl_add_u32 v{vT + 3}, v{vL}, 2, s{sT}
v_or_b32 v{vT + 4}, 0x80, v{vT + 3}
v_and_b32 v{vT + 4}, 0xfffffbff, v{vT + 4}
s_lshl_b32 s{sT}, s{sWv}, 2
s_add_u32 s{sT}, s{sT}, {XF}
v_mov_b32 v{vT + 5}, s{sT}
v_add_f32_e64 v{vT}, abs(v{vO}), abs(v{vO + 1})
''')
assert XL % 2048 == 0
for r in range(2, 16):
    A(f'v_add_f32_e64 v{vT}, v{vT}, abs(v{vO + r})')
A(f'''
ds_write_b32 v{vT + 3}, v{vO + 12}
s_mov_b32 s{sT}, 0x7b800000
v_cmp_ngt_f32 vcc, s{sT}, v{vT}
s_cmp_eq_u32 s{sHH}, 0
s_cbranch_scc0 L_m1
ds_write_b128 v{vT + 1}, {vr(vO + 8, 4)}
ds_write_b128 v{vT + 1}, {vr(vO + 12, 4)} offset:1024
s_branch L_m2
L_m1:
ds_write_b128 v{vT + 1}, {vr(vO, 4)}
ds_write_b128 v{vT + 1}, {vr(vO + 4, 4)} offset:1024
s_nop 1
''')
for r in range(8):
    A(f'v_mov_b32 v{vO + r}, v{vO + 8 + r}')
A(f'''
L_m2:
s_cmp_lg_u64 vcc, 0
s_cselect_b32 s{sT}, 1, 0
v_mov_b32 v{vT}, s{sT}
ds_write_b32 v{vT + 5}, v{vT}
v_and_b32 v{vT + 5}, 7, v{vL}
v_lshlrev_b32 v{vT + 5}, 2, v{vT + 5}
v_add_u32 v{vT + 5}, {XF}, v{vT + 5}
s_waitcnt lgkmcnt(0)
s_barrier
ds_read_b32 v{vT}, v{vT + 5}
ds_read_b32 v{vT + 6}, v{vT + 4}
ds_read_b32 v{vT + 7}, v{vT + 4} offset:1024
ds_read_b128 {vr(vS, 4)}, v{vT + 2}
ds_read_b128 {vr(vS + 4, 4)}, v{vT + 2} offset:1024
s_lshl_b32 s{sT + 1}, s{sRB}, 2
s_add_u32 s{sT + 1}, s{sT + 1}, s{sRT}
s_lshl_b32 s{sT + 1}, s{sT + 1}, 4
s_add_u32 s{sT + 1}, s{sT + 1}, s{sH}
s_lshl_b32 s{sT + 1}, s{sT + 1}, 1
s_add_u32 s{sT + 1}, s{sT + 1}, s{sHH}
s_lshl_b32 s{sT + 1}, s{sT + 1}, 10
s_add_u32 s{sT + 1}, s{sT + 1}, {WS_O}
s_waitcnt lgkmcnt(2)
v_cmp_ne_u32 vcc, 0, v{vT}
v_add_f32 v{vT + 6}, v{vT + 6}, v{vT + 7}
v_rcp_f32 v{vT + 6}, v{vT + 6}
s_cmp_lg_u64 vcc, 0
s_cselect_b32 s{sT}, 1, 0
s_cmp_gt_u32 s{sT}, s{sFB}
s_cbranch_scc1 L_fallback
s_waitcnt lgkmcnt(0)
''')
for r in range(0, 8, 2):
    A(f'v_pk_add_f32 {vr(vO + r, 2)}, {vr(vO + r, 2)}, {vr(vS + r, 2)}')
for r in range(0, 8, 2):
    A(f'v_pk_mul_f32 {vr(vO + r, 2)}, {vr(vO + r, 2)}, {vr(vT + 6, 2)} op_sel_hi:[1,0]')
for r in range(4):
    A(f'v_cvt_pk_bf16_f32 v{vS + 8 + r}, v{vO + 2 * r}, v{vO + 2 * r + 1}')
A(f'''
s_cmp_eq_u32 s{sHH}, 0
s_cselect_b64 exec, 0, {sr(sHi, 2)}
v_mov_b32 v{vS + 10}, 0
v_mov_b32 v{vS + 11}, 0
s_mov_b64 exec, -1
buffer_store_dwordx4 {vr(vS + 8, 4)}, v{vLin}, {sr(sWS, 4)}, s{sT + 1} offen sc1
s_waitcnt vmcnt(0)
s_barrier
''')
stamp('oA_drained')


def o_signal(br):
    A(f'''
    s_lshr_b32 s{sT}, s{sRB}, 1
    s_lshl_b32 s{sT}, s{sT}, 3
    s_and_b32 s{sT + 1}, s{sRB}, 1
    s_add_u32 s{sT}, s{sT}, s{sT + 1}
    s_lshl_b32 s{sT}, s{sT}, 8
    s_lshl_b32 s{sT + 1}, s{sH}, 2
    s_add_u32 s{sT}, s{sT}, s{sT + 1}
    s_add_u32 s{sT}, s{sT}, {WS_FL + (4 + 2 * br) * FLINE}
    s_mov_b64 exec, 1
    buffer_store_dword v{vOne}, v{vL}, {sr(sWS, 4)}, s{sT} offen sc1
    s_mov_b64 exec, -1
    ''')


A(f'''
s_cmp_eq_u32 s{sWv}, 0
s_cbranch_scc0 L_s2a
''')
o_signal(0)
A(f'''
s_mul_i32 s{sT}, s{sXc}, {8 * FLINE}
s_add_u32 s{sT}, s{sT}, {WS_FL + 3 * FLINE}
''')
poll('sB', sT, '0xffff', '0', vFl)
A('''
L_s2a:
s_barrier
''')
vPart, vQB, vKVF, vNp, vNn = 16, 80, 88, 164, 180
KVL, PHI2 = 0, 4096
A(f'''
s_lshl_b32 s{sT}, s{sH}, 17
s_lshl_b32 s{sT + 1}, s{sWv}, 10
s_add_u32 s{sT}, s{sT}, s{sT + 1}
s_add_u32 s{sT}, s{sT}, {WS_KVP}
s_cmp_ge_u32 s{sWv}, 4
s_cbranch_scc1 L_b2a
s_lshl_b32 s{sT + 2}, s{sH}, 6
s_lshl_b32 s{sT + 3}, s{sRB}, 2
s_add_u32 s{sT + 2}, s{sT + 2}, s{sT + 3}
s_add_u32 s{sT + 2}, s{sT + 2}, s{sRT}
s_lshl_b32 s{sT + 2}, s{sT + 2}, 11
s_add_u32 s{sT + 2}, s{sT + 2}, {WS_QB}
buffer_load_dwordx4 {vr(vQB, 4)}, v{vLin}, {sr(sWS, 4)}, s{sT + 2} offen sc1
buffer_load_dwordx4 {vr(vQB + 4, 4)}, v{vLin}, {sr(sWS, 4)}, s{sT + 2} offen offset:1024 sc1
s_cmp_ge_u32 s{sWv}, 2
s_cbranch_scc1 L_b2a
s_add_u32 m0, s{sT + 1}, {PHI2}
s_mul_i32 s{sT + 2}, s{sH}, 1568
s_add_u32 s{sT + 2}, s{sT + 2}, s{sT + 1}
buffer_load_dwordx4 v{vLin}, {sr(sPHI, 4)}, s{sT + 2} offen lds
L_b2a:
''')
for p in range(16):
    A(f'buffer_load_dwordx4 {vr(vPart + 4 * p, 4)}, v{vLin}, {sr(sWS, 4)}, s{sT} offen sc1')
    if p < 15:
        A(f's_add_u32 s{sT}, s{sT}, 8192')
for p in range(1, 16):
    A(f's_waitcnt vmcnt({15 - p})')
    A(f'v_pk_add_f32 {vr(vPart, 2)}, {vr(vPart, 2)}, {vr(vPart + 4 * p, 2)}')
    A(f'v_pk_add_f32 {vr(vPart + 2, 2)}, {vr(vPart + 2, 2)}, {vr(vPart + 4 * p + 2, 2)}')
A(f'''
v_cvt_pk_bf16_f32 v{vPart + 4}, v{vPart}, v{vPart + 1}
v_cvt_pk_bf16_f32 v{vPart + 5}, v{vPart + 2}, v{vPart + 3}
s_mov_b32 exec_lo, 0x20000000
s_mov_b32 exec_hi, 0x20000000
v_mov_b32 v{vPart + 4}, 0x3f803f80
v_mov_b32 v{vPart + 5}, 0x3f803f80
s_mov_b64 exec, -1
s_lshr_b32 s{sT}, s{sWv}, 1
s_lshl_b32 s{sT}, s{sT}, 10
s_and_b32 s{sT + 1}, s{sWv}, 1
s_lshl_b32 s{sT + 1}, s{sT + 1}, 3
s_add_u32 s{sT}, s{sT}, s{sT + 1}
v_add_u32 v{vT}, s{sT}, v{vLin}
ds_write_b64 v{vT}, {vr(vPart + 4, 2)} offset:{KVL}
s_waitcnt lgkmcnt(0)
s_barrier
s_cmp_ge_u32 s{sWv}, 4
s_cbranch_scc1 L_b2b
v_bfe_u32 v{vT}, v{vL}, 2, 2
v_lshl_add_u32 v{vT}, v{vH}, 2, v{vT}
v_mul_u32_u24 v{vT + 1}, 56, v{vT}
v_bfe_u32 v{vT + 2}, v{vL}, 4, 1
v_and_b32 v{vT + 3}, 3, v{vL}
v_lshl_add_u32 v{vT + 2}, v{vT + 2}, 2, v{vT + 3}
v_lshl_add_u32 v{vT + 1}, v{vT + 2}, 3, v{vT + 1}
''')
for q in range(4):
    A(f'ds_read_b64_tr_b16 {vr(vWF + 2 * q, 2)}, v{vT + 1} offset:{PHI2 + 8 * q * 56}')
for q in range(4):
    A(f'ds_read_b128 {vr(vKVF + 4 * q, 4)}, v{vLin} offset:{KVL + 1024 * q}')
A(f'''
s_waitcnt lgkmcnt(4)
v_mfma_f32_32x32x16_bf16 {vr(vX, 16)}, {vr(vWF, 4)}, {vr(vQB, 4)}, 0
v_mfma_f32_32x32x16_bf16 {vr(vX, 16)}, {vr(vWF + 4, 4)}, {vr(vQB + 4, 4)}, {vr(vX, 16)}
''')
vIdx2 = vT + 10
A(f'v_mov_b32 v{vIdx2}, 0xdddddddd')
for r in range(32):
    A(f'v_mov_b32 v{vNp + r}, 0')
features(vX, vEp, vEn, vT + 4)
A('s_waitcnt lgkmcnt(0)')
for m in range(2):
    A(f'v_smfmac_f32_32x32x32_bf16 {vr(vNp, 16)}, {vr(vKVF + 4 * m, 4)}, {vr(vEp + 8 * m, 8)}, v{vIdx2}')
for m in range(2):
    A(f'v_smfmac_f32_32x32x32_bf16 {vr(vNn, 16)}, {vr(vKVF + 8 + 4 * m, 4)}, {vr(vEn + 8 * m, 8)}, v{vIdx2}')
ap, an = vT + 4, vT + 6
A(f'''
s_lshl_b32 s{sT + 1}, s{sRB}, 2
s_add_u32 s{sT + 1}, s{sT + 1}, s{sRT}
s_lshl_b32 s{sT + 1}, s{sT + 1}, 4
s_add_u32 s{sT + 1}, s{sT + 1}, s{sH}
s_lshl_b32 s{sT + 1}, s{sT + 1}, 11
s_add_u32 s{sT + 1}, s{sT + 1}, {WS_O + 0x200000}
v_mov_b32 v{vT}, {f32(1e-6)}
v_rcp_f32 v{ap}, v{vNp + 13}
v_rcp_f32 v{an}, v{vNn + 13}
v_fmac_f32 v{vT}, v{vNp + 12}, v{ap}
v_fmac_f32 v{vT}, v{vNn + 12}, v{an}
v_rcp_f32 v{vT}, v{vT}
v_mul_f32 v{ap}, v{ap}, v{vT}
v_mul_f32 v{an}, v{an}, v{vT}
v_mov_b32 v{vT}, v{ap}
v_mov_b32 v{vT + 1}, v{an}
v_permlane32_swap_b32 v{vT}, v{ap}
v_permlane32_swap_b32 v{vT + 1}, v{an}
''')
for r in range(0, 16, 2):
    A(f'v_pk_mul_f32 {vr(vNp + r, 2)}, {vr(vNp + r, 2)}, {vr(ap, 2)} op_sel_hi:[1,0]')
for r in range(0, 16, 2):
    A(f'v_pk_fma_f32 {vr(vNp + r, 2)}, {vr(vNn + r, 2)}, {vr(an, 2)}, {vr(vNp + r, 2)} op_sel_hi:[1,0,1]')
cvt8(vX, vNp)
A(f'''
s_mov_b64 exec, {sr(sHi, 2)}
v_mov_b32 v{vX + 6}, 0
v_mov_b32 v{vX + 7}, 0
s_mov_b64 exec, -1
buffer_store_dwordx4 {vr(vX, 4)}, v{vLin}, {sr(sWS, 4)}, s{sT + 1} offen sc1
buffer_store_dwordx4 {vr(vX + 4, 4)}, v{vLin}, {sr(sWS, 4)}, s{sT + 1} offen offset:1024 sc1
L_b2b:
s_waitcnt vmcnt(0)
s_barrier
s_cmp_eq_u32 s{sWv}, 0
s_cbranch_scc0 L_s3a
''')
o_signal(1)
A('L_s3a:')
stamp('oB_done')
sRB64, sCB = sC, sSlotRd
vWoG, vWoA, vWoB, vOr, vOutA = 16, 17, 18, 19, 20
vC, vG = 24, 40
OL = 65536
A(f'''
s_cmp_ge_u32 s{sJ}, 28
s_cbranch_scc1 L_fin
s_mul_i32 s{sT}, s{sJ}, 37
s_lshr_b32 s{sT}, s{sT}, 8
s_mul_i32 s{sT + 1}, s{sT}, 7
s_sub_u32 s{sCB}, s{sJ}, s{sT + 1}
s_lshl_b32 s{sRB64}, s{sXc}, 2
s_add_u32 s{sRB64}, s{sRB64}, s{sT}
v_lshrrev_b32 v{vT}, 3, v{vL}
s_mul_i32 s{sT}, s{sWv}, 56
v_add_u32 v{vT}, s{sT}, v{vT}
v_mul_u32_u24 v{vT}, 896, v{vT}
v_bfe_u32 v{vT + 1}, v{vL}, 4, 1
v_lshlrev_b32 v{vT + 1}, 2, v{vT + 1}
v_and_b32 v{vT + 2}, 7, v{vL}
v_xor_b32 v{vT + 1}, v{vT + 1}, v{vT + 2}
v_lshl_add_u32 v{vWoG}, v{vT + 1}, 4, v{vT}
s_and_b32 s{sT}, s{sWv}, 1
v_bfe_u32 v{vT}, v{vL}, 2, 2
v_lshrrev_b32 v{vT + 1}, 1, v{vT}
v_xor_b32 v{vT + 1}, s{sT}, v{vT + 1}
v_lshlrev_b32 v{vT + 1}, 6, v{vT + 1}
v_lshl_add_u32 v{vT + 1}, v{vT}, 7, v{vT + 1}
v_and_b32 v{vT}, 1, v{vL}
v_lshl_add_u32 v{vT + 1}, v{vT}, 5, v{vT + 1}
v_bfe_u32 v{vT}, v{vL}, 4, 1
v_lshl_add_u32 v{vT + 1}, v{vT}, 4, v{vT + 1}
v_bfe_u32 v{vT}, v{vL}, 1, 1
v_lshl_add_u32 v{vWoB}, v{vT}, 3, v{vT + 1}
v_lshl_add_u32 v{vWoA}, v{vH}, 9, v{vWoB}
s_lshr_b32 s{sT + 1}, s{sWv}, 1
s_and_b32 s{sT + 1}, s{sT + 1}, 1
s_lshl_b32 s{sT + 2}, s{sT + 1}, 15
s_add_u32 s{sT + 2}, s{sT + 2}, {OL}
v_add_u32 v{vOr}, s{sT + 2}, v{vLin}
s_lshl_b32 s{sT + 2}, s{sRB64}, 1
s_add_u32 s{sT + 2}, s{sT + 2}, s{sT + 1}
s_lshl_b32 s{sT + 2}, s{sT + 2}, 5
v_and_b32 v{vT}, 31, v{vL}
v_add_u32 v{vT}, s{sT + 2}, v{vT}
v_mul_u32_u24 v{vT}, 1792, v{vT}
v_lshl_add_u32 v{vT}, v{vH}, 5, v{vT}
s_lshl_b32 s{sT + 2}, s{sCB}, 1
s_add_u32 s{sT + 2}, s{sT + 2}, s{sT}
s_lshl_b32 s{sT + 2}, s{sT + 2}, 6
v_add_u32 v{vOutA}, s{sT + 2}, v{vT}
s_mov_b32 s{sBr}, 0
s_mov_b32 s{sWO}, s8
s_mov_b32 s{sWO + 1}, s9
s_mov_b32 s{sWO + 2}, {448 * 896}
s_mov_b32 s{sWO + 3}, 0x20000
L_p3:
s_mul_i32 s{sM0}, s{sWv}, 7168
s_lshl_b32 s{sT}, s{sCB}, 7
''')
for i in range(7):
    A(f's_add_u32 m0, s{sM0}, {1024 * i}')
    A(f's_add_u32 s{sT + 1}, s{sT}, {7168 * i}')
    A(f'buffer_load_dwordx4 v{vWoG}, {sr(sWO, 4)}, s{sT + 1} offen lds')
A(f'''
s_cmp_eq_u32 s{sWv}, 0
s_cbranch_scc0 L_p3a
s_lshl_b32 s{sT}, s{sXc}, 3
s_lshl_b32 s{sT + 1}, s{sBr}, 1
s_add_u32 s{sT}, s{sT}, s{sT + 1}
s_bfe_u32 s{sT + 1}, s{sRB64}, 0x10001
s_add_u32 s{sT}, s{sT}, s{sT + 1}
s_lshl_b32 s{sT}, s{sT}, 8
s_add_u32 s{sT}, s{sT}, {WS_FL + 4 * FLINE}
''')
poll('s3', sT, '0xffff', '0', vFl)
A(f'''
L_p3a:
s_barrier
''')
stamp('p3_flag')
A(f'''
s_lshl_b32 s{sT}, s{sHH}, 15
s_lshl_b32 s{sT + 1}, s{sRT}, 11
s_add_u32 s{sT}, s{sT}, s{sT + 1}
s_add_u32 s{sM0}, s{sT}, {OL}
s_lshl_b32 s{sT + 1}, s{sBr}, 21
s_add_u32 s{sT}, s{sT}, s{sT + 1}
s_lshl_b32 s{sT + 1}, s{sRB64}, 16
s_add_u32 s{sT}, s{sT}, s{sT + 1}
''')
for st in range(4):
    A(f's_add_u32 m0, s{sM0}, {8192 * st}')
    A(f's_add_u32 s{sT + 1}, s{sT}, {WS_O + 8192 * st}')
    A(f'buffer_load_dwordx4 v{vLin}, {sr(sWS, 4)}, s{sT + 1} offen sc1 lds')
    A(f'buffer_load_dwordx4 v{vLin}, {sr(sWS, 4)}, s{sT + 1} offen offset:1024 sc1 lds')


def p3_reads(hd, G):
    for m in range(2):
        A(f'ds_read_b128 {vr(G + 8 * m, 4)}, v{vOr} offset:{hd * 2048 + m * 1024}')
        for u in range(2):
            a = vWoB if (m, u) == (1, 1) else vWoA
            A(f'ds_read_b64_tr_b16 {vr(G + 8 * m + 4 + 2 * u, 2)}, v{a} offset:{(28 * hd + 16 * m + 8 * u) * 128}')


for st in range(4):
    A(f's_waitcnt vmcnt({6 - 2 * st})')
    A('s_barrier')
    A(f's_cmp_ge_u32 s{sWv}, 4')
    A(f's_cbranch_scc1 L_p3s{st}')
    p3_reads(4 * st, vG)
    p3_reads(4 * st + 1, vG + 16)
    for q in range(4):
        G = vG + 16 * (q & 1)
        A(f's_waitcnt lgkmcnt({6 if q < 3 else 0})')
        for m in range(2):
            c = '0' if (st, q, m) == (0, 0, 0) else vr(vC, 16)
            A(f'v_mfma_f32_32x32x16_bf16 {vr(vC, 16)}, {vr(G + 8 * m + 4, 4)}, {vr(G + 8 * m, 4)}, {c}')
        if q < 2:
            p3_reads(4 * st + q + 2, G)
    if st == 3:
        cvt8(vG, vC)
        A(f's_mul_i32 s{sT}, s{sBr}, 896')
        A(f'buffer_store_dwordx4 {vr(vG, 4)}, v{vOutA}, {sr(sOUT, 4)}, s{sT} offen')
        A(f'buffer_store_dwordx4 {vr(vG + 4, 4)}, v{vOutA}, {sr(sOUT, 4)}, s{sT} offen offset:16')
    A(f'L_p3s{st}:')
stamp('p3_done')
A(f'''
s_cmp_eq_u32 s{sBr}, 1
s_cbranch_scc1 L_fin
s_mov_b32 s{sBr}, 1
s_mov_b32 s{sWO}, s16
s_mov_b32 s{sWO + 1}, s17
s_barrier
s_branch L_p3
L_fin:
''')
if OPT.get('padto'):
    A(f'''
    L_pad:
    s_memrealtime s[94:95]
    s_waitcnt lgkmcnt(0)
    s_sub_u32 s94, s94, s96
    s_cmp_lt_u32 s94, {OPT['padto']}
    s_cbranch_scc1 L_pad
    ''')
if OPT['stamps']:
    A('s_waitcnt vmcnt(0)')
    stamp('end')
    A(f'''
    s_lshl_b32 s{sT}, s2, 3
    s_add_u32 s{sT}, s{sT}, s{sWv}
    s_lshl_b32 s{sT}, s{sT}, 8
    s_add_u32 s{sT}, s{sT}, {WS_ST}
    v_lshlrev_b32 v{vT}, 2, v{vL}
    buffer_store_dword v255, v{vT}, {sr(sWS, 4)}, s{sT} offen
    ''')
A('s_endpgm')
A(f'''
L_fallback:
s_waitcnt lgkmcnt(0)
s_mov_b32 s{sFB}, 1
s_mov_b64 exec, {sr(sHi, 2)}
v_mov_b32 v{vQ + 6}, 0
v_mov_b32 v{vQ + 7}, 0
s_mov_b64 exec, -1
v_mov_b32 v{vT}, 0xff800000
s_lshl_b32 s{sT}, s{sH}, 18
s_add_u32 s{sT}, s{sT}, {WS_KV}
s_mov_b32 s{sT + 1}, 0
L_fb1:
buffer_load_dwordx4 {vr(vF, 4)}, v{vLin}, {sr(sWS, 4)}, s{sT} offen sc1
buffer_load_dwordx4 {vr(vF + 4, 4)}, v{vLin}, {sr(sWS, 4)}, s{sT} offen offset:1024 sc1
s_waitcnt vmcnt(0)
''')
qk(vS, vF, 0)
qk(vS, vF + 4, 1)
max16(vT, vS, False)
A(f'''
s_add_u32 s{sT}, s{sT}, 4096
s_add_u32 s{sT + 1}, s{sT + 1}, 1
s_cmp_lt_u32 s{sT + 1}, 64
s_cbranch_scc1 L_fb1
v_mov_b32 v{vT + 1}, v{vT}
v_permlane32_swap_b32 v{vT}, v{vT + 1}
v_max_f32 v{vT}, v{vT}, v{vT + 1}
v_sub_f32 v{vT}, 0, v{vT}
''')
set_qpad(vT, vT + 1)
for r in range(16):
    A(f'v_mov_b32 v{vO + r}, 0')
A(f'''
s_lshl_b32 s{sT}, s{sH}, 18
s_lshl_b32 s{sT + 1}, s{sHH}, 17
s_add_u32 s{sT}, s{sT}, s{sT + 1}
s_add_u32 s{sT}, s{sT}, {WS_KV}
s_mov_b32 s{sT + 1}, 0
L_fb2:
''')
for q in range(4):
    A(f'buffer_load_dwordx4 {vr(vF + 4 * q, 4)}, v{vLin}, {sr(sWS, 4)}, s{sT} offen offset:{1024 * q} sc1')
A('s_waitcnt vmcnt(0)')
qk(vS, vF, 0)
qk(vS, vF + 4, 1)
for r in range(16):
    A(f'v_exp_f32 v{vPp + r}, v{vS + r}')
pv(vF + 8, 0)
pv(vF + 12, 1)
A(f'''
s_add_u32 s{sT}, s{sT}, 4096
s_add_u32 s{sT + 1}, s{sT + 1}, 1
s_cmp_lt_u32 s{sT + 1}, 32
s_cbranch_scc1 L_fb2
s_barrier
s_branch L_merge
L_end:
s_endpgm
''')

n = A.fix_hazards(verbose=bool(OPT.get('v')))
hdr = open('cdna_kernels/' + NAME + '.s.ref').read().split('; Override launch')[0]
out = hdr + f'''; One persistent launch, 256 workgroups (one per CU); generated by the author's own script.
; @launch grid=(256,1,1) block=(512,1,1) lds=163840
.amdgcn_target "amdgcn-amd-amdhsa--gfx950"
.text
.globl {NAME}_kernel
.p2align 8
.type {NAME}_kernel,@function
{NAME}_kernel:
''' + A.text() + f'''.fill 256, 4, 0xbf800000
.section .rodata,"a"
.p2align 6
.amdhsa_kernel {NAME}_kernel
  .amdhsa_next_free_vgpr 256
  .amdhsa_next_free_sgpr 100
  .amdhsa_accum_offset 256
  .amdhsa_group_segment_fixed_size 0
  .amdhsa_kernarg_size 80
  .amdhsa_user_sgpr_count 2
  .amdhsa_user_sgpr_kernarg_segment_ptr 1
  .amdhsa_system_sgpr_workgroup_id_x 1
.end_amdhsa_kernel
'''
open(sys.argv[1], 'w').write(out)
if OPT['stamps']:
    open(sys.argv[1] + '.stamps', 'w').write('\n'.join(STAMPS))
print('lines', len(A.lines), 'nops inserted', n)
```

```python
import re

TRANS = ('v_exp_f32', 'v_log_f32', 'v_rcp_f32', 'v_rsq_f32', 'v_sqrt_f32', 'v_sin_f32', 'v_cos_f32')


def regs_of(tok):
    tok = tok.strip()
    tok = tok.lstrip('-')
    m = re.fullmatch(r'abs\((.*)\)', tok)
    if m:
        tok = m.group(1)
    m = re.fullmatch(r'\|(.*)\|', tok)
    if m:
        tok = m.group(1)
    m = re.fullmatch(r'([vsa])(\d+)', tok)
    if m:
        return {(m.group(1), int(m.group(2)))}
    m = re.fullmatch(r'([vsa])\[(\d+):(\d+)\]', tok)
    if m:
        return {(m.group(1), i) for i in range(int(m.group(2)), int(m.group(3)) + 1)}
    if tok in ('vcc', 'vcc_lo', 'vcc_hi'):
        return {('x', 'vcc')}
    if tok in ('exec', 'exec_lo', 'exec_hi'):
        return {('x', 'exec')}
    if tok == 'm0':
        return {('x', 'm0')}
    return set()


class Ins:
    def __init__(self, text):
        self.text = text
        t = text.split(';')[0].strip()
        self.label = None
        self.op = None
        self.directive = False
        self.w = set()
        self.r = set()
        self.ab = set()
        self.c = set()
        self.stdata = set()
        self.target = None
        if not t:
            self.directive = True
            return
        if t.endswith(':'):
            self.label = t[:-1]
            return
        if t.startswith('.'):
            self.directive = True
            return
        p = t.split(None, 1)
        op = self.op = p[0]
        rest = p[1] if len(p) > 1 else ''
        toks = [x.strip() for x in re.split(r',(?![^\[]*\])', rest)] if rest else []
        mods = ''
        if toks:
            q = toks[-1].split(None, 1)
            toks[-1] = q[0]
            mods = q[1] if len(q) > 1 else ''
        self.mods = mods
        R = [regs_of(x) for x in toks]
        U = lambda l: set().union(*l) if l else set()
        self.valu = op.startswith('v_') and not op.startswith(('v_mfma', 'v_smfmac'))
        self.mfma = op.startswith(('v_mfma', 'v_smfmac'))
        self.trans = op.startswith(TRANS)
        self.vmem = op.startswith(('buffer_', 'global_'))
        self.ds = op.startswith('ds_')
        self.salu = op.startswith('s_')
        if op.startswith('v_mfma'):
            self.w = R[0]; self.ab = R[1] | R[2]; self.c = R[3]; self.r = self.ab | self.c
        elif op.startswith('v_smfmac'):
            self.w = R[0]; self.ab = R[1] | R[2] | R[3]; self.c = set(R[0]); self.r = self.ab | self.c
        elif op.startswith('v_permlane') and 'swap' in op:
            self.w = R[0] | R[1]; self.r = R[0] | R[1]
        elif op.startswith(('v_fmac', 'v_pk_fmac', 'v_writelane')):
            self.w = R[0]; self.r = U(R)
        elif op.startswith(('v_add_co', 'v_addc_co', 'v_sub_co')):
            self.w = R[0] | R[1]; self.r = U(R[2:])
        elif op.startswith('v_cmpx'):
            self.w = R[0] | {('x', 'exec')}; self.r = U(R[1:])
        elif op == 'v_nop':
            pass
        elif op.startswith('v_'):
            self.w = R[0]; self.r = U(R[1:])
        elif op.startswith('ds_read'):
            self.w = R[0]; self.r = U(R[1:])
        elif op.startswith('ds_'):
            self.r = U(R)
        elif op.startswith(('buffer_load', 'global_load')):
            if ' lds' in ' ' + mods or op.startswith('global_load_lds'):
                self.r = U(R) | {('x', 'm0')}
                self.ldsdma = True
            else:
                self.w = R[0]; self.r = U(R[1:])
        elif op.startswith('buffer_store'):
            self.r = U(R)
            if op.endswith(('x3', 'x4')):
                self.stdata = R[0]
        elif op.startswith('global_store'):
            self.r = U(R)
            if op.endswith(('x3', 'x4')):
                self.stdata = R[1]
        elif op.startswith(('buffer_atomic', 'global_atomic')):
            self.r = U(R)
            if 'sc0' in mods:
                self.w = R[0]
        elif op.startswith(('s_cbranch', 's_branch')):
            self.target = toks[0]
            if 'vcc' in op:
                self.r = {('x', 'vcc')}
            if 'exec' in op:
                self.r = {('x', 'exec')}
        elif op.startswith(('s_cmp', 's_waitcnt', 's_nop', 's_barrier', 's_setprio', 's_sleep', 's_endpgm', 's_bitcmp')):
            self.r = U(R)
        elif op.startswith('s_'):
            self.w = R[0] if R else set(); self.r = U(R[1:])
            if 'saveexec' in op:
                self.w = self.w | {('x', 'exec')}
        self.toks = toks

    def states(self):
        if self.op is None:
            return 0
        if self.op == 's_nop':
            return int(self.toks[0], 0) + 1
        return 1

    def passes(self):
        if '32x32' in self.op:
            return 8
        return 4


def need(prod, cons):
    n = 0
    vw = {x for x in prod.w if x[0] in 'va'}
    sw = {x for x in prod.w if x[0] == 's' or x == ('x', 'vcc')}
    if prod.valu:
        if cons.mfma and (vw & cons.r):
            n = max(n, 2)
        if cons.op.startswith('v_permlane') and (vw & cons.r):
            n = max(n, 2)
        if cons.op.startswith(('v_readlane', 'v_readfirstlane')) and (vw & cons.r):
            n = max(n, 1)
        if prod.trans and cons.valu and not cons.trans and (vw & cons.r):
            n = max(n, 1)
        if 'dpp' in cons.op or 'row_' in cons.mods or 'quad_perm' in cons.mods:
            if vw & cons.r:
                n = max(n, 2)
        if cons.vmem and (sw & cons.r):
            n = max(n, 5)
        if cons.valu and (sw & cons.r):
            n = max(n, 4 if cons.op.startswith(('v_readlane', 'v_writelane')) else 2)
        if ('x', 'exec') in prod.w and (cons.mfma or cons.op.startswith(('v_permlane', 'v_readlane', 'v_readfirstlane'))):
            n = max(n, 4)
        if ('sdwa' in prod.op or 'op_sel' in prod.mods) and cons.valu and (vw & (cons.r | cons.w)):
            n = max(n, 1)
        if cons.salu and (sw & cons.r):
            n = max(n, 1)
    if prod.mfma:
        p8 = prod.passes() == 8
        if cons.mfma:
            if prod.w & cons.ab:
                n = max(n, 12 if p8 else 8)
            if prod.w & cons.c:
                if not (prod.w == cons.c and prod.passes() == cons.passes()):
                    n = max(n, 10 if p8 else 6)
            elif prod.w & cons.w:
                n = max(n, 0)
        elif (cons.valu or cons.vmem or cons.ds) and (prod.w & (cons.r | cons.w)):
            n = max(n, 12 if p8 else 8)
        if cons.valu and (prod.c & cons.w):
            n = max(n, 7 if p8 else 3)
    if prod.salu and ('x', 'm0') in prod.w and getattr(cons, 'ldsdma', False):
        n = max(n, 1)
    if prod.stdata and (prod.stdata & cons.w):
        n = max(n, 2 if cons.valu else 1)
    return n


class Asm:
    def __init__(self):
        self.lines = []

    def __call__(self, text):
        for ln in text.split('\n'):
            ln = ln.strip()
            if ln:
                self.lines.append(ln)

    def fix_hazards(self, verbose=False):
        total = 0
        cache = {}
        start = 0
        while True:
            ins = [cache[x] if x in cache else cache.setdefault(x, Ins(x)) for x in self.lines]
            labels = {i.label: k for k, i in enumerate(ins) if i.label}
            preds = [[] for _ in ins]
            for k, i in enumerate(ins):
                if k + 1 < len(ins) and i.op not in ('s_branch', 's_endpgm'):
                    preds[k + 1].append(k)
                if i.target is not None:
                    preds[labels[i.target]].append(k)
            fix = None
            for k, c in enumerate(ins):
                if k < start or c.op is None or c.op in ('s_nop',):
                    continue
                worst = 0
                stack = [(p, 0) for p in preds[k]]
                seen = {}
                while stack:
                    p, d = stack.pop()
                    if d >= 12 or seen.get(p, 99) <= d:
                        continue
                    seen[p] = d
                    pi = ins[p]
                    if pi.op is not None:
                        n = need(pi, c)
                        if n - d > worst:
                            worst = n - d; why = pi.text
                    for q in preds[p]:
                        stack.append((q, d + pi.states()))
                if worst > 0:
                    fix = (k, worst, why)
                    break
            if fix is None:
                break
            k, worst, why = fix
            if verbose:
                print(f'  nop {worst} before [{self.lines[k]}] after [{why}]')
            self.lines.insert(k, f's_nop {worst - 1}')
            total += 1
            start = k
        return total

    def text(self):
        out = []
        for ln in self.lines:
            if ln.endswith(':') or ln.startswith('.'):
                out.append(ln)
            else:
                out.append('    ' + ln)
        return '\n'.join(out) + '\n'


def vr(a, n=1):
    return f'v{a}' if n == 1 else f'v[{a}:{a + n - 1}]'


def sr(a, n=1):
    return f's{a}' if n == 1 else f's[{a}:{a + n - 1}]'
```

```python
import sys, math, struct
from asmlib import Asm, vr, sr

NAME = 'concat_heads__softmax_full_mha__linear_kernel_hedgehog__prompt'
OPT = dict(rot=2, stamps=0, force_fb=0, spin=1 << 16, moff=24, outfl=0, rd=3, prio=0)
for a in sys.argv[2:]:
    k, v = a.split('=')
    OPT[k] = int(v, 0)


def f32(x):
    return '0x%08x' % struct.unpack('<I', struct.pack('<f', x))[0]


LOG2E = 1.4426950408889634
QSCALE = LOG2E / math.sqrt(28.0)

WS_QA, WS_KV, WS_QB, WS_KVP, WS_O, WS_FL, WS_KVF, WS_ST, WS_END = (
    0, 0x200000, 0x600000, 0x800000, 0xA00000, 0xE00000, 0xE80000, 0xF00000, 0x1000000)
FGRP = 384 * 128
F_A, F_B, F_K, F_O = 0, 48 * 128, 64 * 128, 96 * 128
sX, sW, sWS, sDBG, sPHI, sWOA, sOUT, sWOB = 24, 28, 32, 36, 40, 44, 48, 96
sWv, sXc, sJ, sB, sRB1, sCG, sH, sRB = 52, 53, 54, 55, 56, 57, 58, 59
sT = 60
sC, sSlot, sKC, sXbase, sWbase, sXo, sWo = 70, 71, 73, 74, 75, 76, 77
sFG = 72
sL = 78
sRT, sHH = 80, 81
sSpin = 82
sCB = 83
sKVo = 84
sRB64 = 85
sHi = 86
sOnesM = 88
sStamp = 90
sM0 = 92
sRH, sH1 = 93, 3
vL, vLin, vH = 1, 2, 3
vT = 4
vFl, vOne = 12, 13
SLOT = 40960
K = 1024
L_Q, L_PHI, L_V, L_WPHI, L_RELAY = 96 * K, 104 * K, 136 * K, 152 * K, 158 * K
L_WOA, L_WOB, L_XCH = 0, 64 * K, 128 * K

A = Asm()
STAMPS = []


def stamp(name):
    if not OPT['stamps']:
        return
    if name not in STAMPS:
        STAMPS.append(name)
    i = STAMPS.index(name)
    A(f'''
    s_memrealtime s[{sStamp}:{sStamp + 1}]
    s_memtime s[94:95]
    s_waitcnt lgkmcnt(0)
    v_writelane_b32 v255, s{sStamp}, {i}
    v_writelane_b32 v255, s94, {i + 32}
    ''')


def spin(tag, srd_, addr, vaddr, vdst, preloaded=False):
    A(f's_mov_b32 s{sSpin}, {OPT["spin"]}')
    if preloaded:
        A(f's_branch L_chk_{tag}')
    A(f'''
    L_poll_{tag}:
    buffer_load_dword v{vdst}, v{vaddr}, {sr(srd_, 4)}, {addr} offen sc1
    s_sub_u32 s{sSpin}, s{sSpin}, 1
    s_waitcnt vmcnt(0)
    s_cmp_eq_u32 s{sSpin}, 0
    s_cbranch_scc1 L_pollx_{tag}
    L_chk_{tag}:
    v_cmp_ne_u32 vcc, 1, v{vdst}
    s_cbranch_vccnz L_poll_{tag}
    L_pollx_{tag}:
    ''')


def srd(d, base, nbytes):
    A(f'''
    s_mov_b32 s{d}, s{base}
    s_mov_b32 s{d + 1}, s{base + 1}
    s_mov_b32 s{d + 2}, {nbytes}
    s_mov_b32 s{d + 3}, 0x20000
    ''')


def cvt8(dst, src):
    for i in range(8):
        A(f'v_cvt_pk_bf16_f32 v{dst + i}, v{src + 2 * i}, v{src + 2 * i + 1}')


def features(tiles):
    A(f's_mov_b64 exec, {sr(sHi, 2)}')
    for X, Ep, En, t in tiles:
        for r in range(12, 16):
            A(f'v_mov_b32 v{X + r}, v{X + 11}')
    A('s_mov_b64 exec, -1')
    for X, Ep, En, t in tiles:
        A(f'v_max3_f32 v{t}, v{X}, v{X + 1}, v{X + 2}')
        A(f'v_max3_f32 v{t + 2}, -v{X}, -v{X + 1}, -v{X + 2}')
    for r in range(3, 15, 2):
        for X, Ep, En, t in tiles:
            A(f'v_max3_f32 v{t}, v{t}, v{X + r}, v{X + r + 1}')
            A(f'v_max3_f32 v{t + 2}, v{t + 2}, -v{X + r}, -v{X + r + 1}')
    for X, Ep, En, t in tiles:
        A(f'v_max_f32 v{t}, v{t}, v{X + 15}')
        A(f'v_max_f32_e64 v{t + 2}, v{t + 2}, -v{X + 15}')
    for X, Ep, En, t in tiles:
        A(f'v_permlane32_swap_b32 v{t}, v{t + 2}')
    for X, Ep, En, t in tiles:
        A(f'v_max_f32 v{t}, v{t}, v{t + 2}')
    for X, Ep, En, t in tiles:
        A(f'v_mul_f32_e64 v{t + 2}, -v{t}, s{sL}')
        A(f'v_mul_f32_e64 v{t}, -v{t}, s{sL}')
    for X, Ep, En, t in tiles:
        A(f'v_permlane32_swap_b32 v{t}, v{t + 2}')
    for X, Ep, En, t in tiles:
        for r in range(0, 16, 2):
            A(f'v_pk_fma_f32 {vr(Ep + r, 2)}, {vr(X + r, 2)}, {sr(sL, 2)}, {vr(t, 2)} op_sel_hi:[1,1,0]')
            A(f'v_pk_fma_f32 {vr(En + r, 2)}, {vr(X + r, 2)}, {sr(sL, 2)}, {vr(t + 2, 2)} op_sel_hi:[1,1,0] neg_lo:[1,0,0] neg_hi:[1,0,0]')
    for X, Ep, En, t in tiles:
        for r in range(16):
            A(f'v_exp_f32 v{Ep + r}, v{Ep + r}')
        for r in range(16):
            A(f'v_exp_f32 v{En + r}, v{En + r}')
    A(f's_mov_b64 exec, {sr(sHi, 2)}')
    for X, Ep, En, t in tiles:
        for r in range(12, 16):
            A(f'v_mov_b32 v{Ep + r}, 0')
            A(f'v_mov_b32 v{En + r}, 0')
    A('s_mov_b64 exec, -1')


def wphi_addr(d, t):
    A(f'''
    v_bfe_u32 v{t}, v{vL}, 2, 2
    v_lshl_add_u32 v{t}, v{vH}, 2, v{t}
    v_mul_u32_u24 v{d}, 56, v{t}
    v_bfe_u32 v{t}, v{vL}, 4, 1
    v_lshl_add_u32 v{d}, v{t}, 5, v{d}
    v_and_b32 v{t}, 3, v{vL}
    v_lshl_add_u32 v{d}, v{t}, 3, v{d}
    ''')


def common_setup():
    srd(sWS, 22, WS_END)
    srd(sDBG, 20, 256)
    srd(sPHI, 14, 16 * 1568)
    srd(sOUT, 18, 2048 * 1792)
    srd(sWOA, 8, 448 * 896)
    srd(sWOB, 16, 448 * 896)
    A(f'''
    s_mov_b32 s{sL}, {f32(LOG2E)}
    s_mov_b32 s{sL + 1}, {f32(LOG2E)}
    s_mov_b32 s{sHi}, 0
    s_mov_b32 s{sHi + 1}, -1
    s_mov_b32 s{sOnesM}, 0x10000000
    s_mov_b32 s{sOnesM + 1}, 0x10000000
    s_lshr_b32 s{sH}, s{sJ}, 4
    s_lshl_b32 s{sT}, s{sXc}, 1
    s_add_u32 s{sH}, s{sH}, s{sT}
    s_and_b32 s{sRB}, s{sJ}, 15
    s_and_b32 s{sRT}, s{sWv}, 3
    s_lshr_b32 s{sHH}, s{sWv}, 2
    s_mul_i32 s{sFG}, s{sXc}, {FGRP}
    s_add_u32 s{sFG}, s{sFG}, {WS_FL}
    s_mul_i32 s{sT}, s{sJ}, 37
    s_lshr_b32 s{sT}, s{sT}, 8
    s_mul_i32 s{sT + 1}, s{sT}, 7
    s_sub_u32 s{sCB}, s{sJ}, s{sT + 1}
    s_lshl_b32 s{sRB64}, s{sXc}, 2
    s_add_u32 s{sRB64}, s{sRB64}, s{sT}
    s_lshl_b32 s{sT}, s{sH}, 6
    s_lshl_b32 s{sT + 1}, s{sHH}, 5
    s_add_u32 s{sT + 1}, s{sT + 1}, s{sRT}
    s_add_u32 s{sT + 1}, s{sT + 1}, s{sT}
    s_lshl_b32 s{sKVo}, s{sT + 1}, 12
    s_add_u32 s{sKVo}, s{sKVo}, {WS_KV}
    v_lshlrev_b32 v{vLin}, 4, v{vL}
    v_lshrrev_b32 v{vH}, 5, v{vL}
    v_lshlrev_b32 v{vFl}, 7, v{vL}
    v_mov_b32 v{vOne}, 1
    ''')


A(f'''
s_cmp_ge_u32 s2, 256
s_cbranch_scc1 L_end
s_load_dwordx16 s[4:19], s[0:1], 0
s_load_dwordx4 s[20:23], s[0:1], 64
''')
if OPT['stamps']:
    A('v_mov_b32 v255, 0')
stamp('start')
A(f'''
v_lshrrev_b32 v{vT}, 6, v0
v_and_b32 v{vL}, 63, v0
v_readfirstlane_b32 s{sWv}, v{vT}
s_and_b32 s{sXc}, s2, 7
s_lshr_b32 s{sJ}, s2, 3
s_lshr_b32 s{sB}, s{sXc}, 2
s_and_b32 s{sT}, s{sXc}, 2
s_lshl_b32 s{sT}, s{sT}, 2
s_and_b32 s{sRB1}, s{sJ}, 7
s_add_u32 s{sRB1}, s{sRB1}, s{sT}
s_and_b32 s{sT}, s{sXc}, 1
s_lshl_b32 s{sT}, s{sT}, 2
s_lshr_b32 s{sCG}, s{sJ}, 3
s_add_u32 s{sCG}, s{sCG}, s{sT}
s_cmp_lt_u32 s{sWv}, 4
s_cbranch_scc1 L_comp
''')
vXg0, vXg1, vWg = 16, 17, 18
A(f'''
s_setprio 3
s_and_b32 s{sRT}, s{sWv}, 3
s_mul_i32 s{sXbase}, s{sRB1}, {128 * 896}
s_cmp_eq_u32 s{sB}, 0
s_cselect_b32 s{sT}, 3, 1
s_cselect_b32 s{sT + 1}, 1, 8
s_mul_i32 s{sT}, s{sT}, 112
s_mul_i32 s{sT + 1}, s{sT + 1}, 112
s_mul_i32 s{sWbase}, s{sCG}, s{sT}
s_mul_i32 s{sT + 2}, s{sRT}, {32 * 896}
s_add_u32 s{sXbase}, s{sXbase}, s{sT + 2}
s_mul_i32 s{sT + 2}, s{sRT}, {16 * 2688}
s_add_u32 s{sWbase}, s{sWbase}, s{sT + 2}
v_lshrrev_b32 v{vT}, 3, v{vL}
v_mul_u32_u24 v{vT + 1}, 896, v{vT}
v_lshrrev_b32 v{vT + 2}, 4, v{vL}
v_and_b32 v{vT + 3}, 7, v{vL}
v_xor_b32 v{vT + 2}, v{vT + 2}, v{vT + 3}
v_lshl_add_u32 v{vXg0}, v{vT + 2}, 4, v{vT + 1}
v_xor_b32 v{vXg1}, 64, v{vXg0}
v_add_u32 v{vXg1}, {8 * 896 - 1024}, v{vXg1}
v_bfe_u32 v{vT + 4}, v{vL}, 2, 1
v_and_b32 v{vT + 5}, 3, v{vL}
''')
for i in range(3):
    A(f'''
    v_add_u32 v{vT + 1}, {8 * i}, v{vT}
    v_mul_u32_u24 v{vT + 2}, 11, v{vT + 1}
    v_lshrrev_b32 v{vT + 2}, 5, v{vT + 2}
    v_mul_u32_u24 v{vT + 3}, 3, v{vT + 2}
    v_sub_u32 v{vT + 1}, v{vT + 1}, v{vT + 3}
    v_mul_u32_u24 v{vT + 1}, s{sT + 1}, v{vT + 1}
    v_bfe_u32 v{vT + 3}, v{vT + 2}, 1, 1
    v_xor_b32 v{vT + 3}, v{vT + 3}, v{vT + 4}
    v_mad_u32_u24 v{vT + 3}, v{vT + 3}, 3, v{vT + 5}
    v_lshl_add_u32 v{vT + 1}, v{vT + 3}, 4, v{vT + 1}
    v_mul_u32_u24 v{vT + 2}, 2688, v{vT + 2}
    ''')
    if i:
        A(f'v_subrev_u32 v{vT + 2}, {1024 * i}, v{vT + 2}')
    A(f'v_add_u32 v{vWg + i}, v{vT + 2}, v{vT + 1}')
if OPT['rot']:
    A(f'''
    s_mul_i32 s{sKC}, s{sCG}, {OPT['rot']}
    s_add_u32 s{sKC}, s{sKC}, s{sRB1}
    s_mul_i32 s{sT + 2}, s{sKC}, 37
    s_lshr_b32 s{sT + 2}, s{sT + 2}, 8
    s_mul_i32 s{sT + 2}, s{sT + 2}, 7
    s_sub_u32 s{sKC}, s{sKC}, s{sT + 2}
    ''')
else:
    A(f's_mov_b32 s{sKC}, 0')
A(f'''
s_lshl_b32 s{sT + 4}, s{sRT}, 12
s_mul_i32 s{sT + 5}, s{sRT}, 6144
s_add_u32 s{sT + 5}, s{sT + 5}, 16384
s_mov_b32 s{sSlot}, 0
s_mov_b32 s{sC}, 0
s_mov_b32 s{sX + 2}, {2048 * 896}
s_mov_b32 s{sX + 3}, 0x20000
s_mov_b32 s{sW + 2}, {448 * 2688}
s_mov_b32 s{sW + 3}, 0x20000
s_waitcnt lgkmcnt(0)
s_cmp_eq_u32 s{sB}, 0
s_cselect_b32 s{sX}, s4, s10
s_cselect_b32 s{sX + 1}, s5, s11
s_cselect_b32 s{sW}, s6, s12
s_cselect_b32 s{sW + 1}, s7, s13
L_ld:
s_lshl_b32 s{sXo}, s{sKC}, 7
s_add_u32 s{sXo}, s{sXo}, s{sXbase}
s_add_u32 m0, s{sSlot}, s{sT + 4}
s_add_u32 s{sT + 6}, s{sXo}, {16 * 896 - 2048}
buffer_load_dwordx4 v{vXg0}, {sr(sX, 4)}, s{sXo} offen lds
buffer_load_dwordx4 v{vXg1}, {sr(sX, 4)}, s{sXo} offen offset:1024 lds
buffer_load_dwordx4 v{vXg0}, {sr(sX, 4)}, s{sT + 6} offen offset:2048 lds
buffer_load_dwordx4 v{vXg1}, {sr(sX, 4)}, s{sT + 6} offen offset:3072 lds
s_mul_i32 s{sWo}, s{sKC}, {64 * 2688}
s_add_u32 m0, s{sSlot}, s{sT + 5}
s_add_u32 s{sWo}, s{sWo}, s{sWbase}
buffer_load_dwordx4 v{vWg}, {sr(sW, 4)}, s{sWo} offen lds
buffer_load_dwordx4 v{vWg + 1}, {sr(sW, 4)}, s{sWo} offen offset:1024 lds
buffer_load_dwordx4 v{vWg + 2}, {sr(sW, 4)}, s{sWo} offen offset:2048 lds
s_add_u32 m0, m0, 3072
s_add_u32 s{sWo}, s{sWo}, {8 * 2688}
buffer_load_dwordx4 v{vWg}, {sr(sW, 4)}, s{sWo} offen lds
buffer_load_dwordx4 v{vWg + 1}, {sr(sW, 4)}, s{sWo} offen offset:1024 lds
buffer_load_dwordx4 v{vWg + 2}, {sr(sW, 4)}, s{sWo} offen offset:2048 lds
s_add_u32 s{sKC}, s{sKC}, 1
s_cmp_eq_u32 s{sKC}, 7
s_cselect_b32 s{sKC}, 0, s{sKC}
s_add_u32 s{sSlot}, s{sSlot}, {SLOT}
s_cmp_eq_u32 s{sSlot}, {3 * SLOT}
s_cselect_b32 s{sSlot}, 0, s{sSlot}
s_add_u32 s{sC}, s{sC}, 1
s_cmp_eq_u32 s{sC}, 1
s_cbranch_scc1 L_ld
s_waitcnt vmcnt(10)
s_barrier
s_cmp_lt_u32 s{sC}, 7
s_cbranch_scc1 L_ld
''')
common_setup()
A(f'''
s_cmp_eq_u32 s{sWv}, 4
s_cbranch_scc0 L_ld2
v_lshlrev_b32 v{vT + 1}, 2, v{vL}
s_mov_b64 exec, 0xff
''')
spin('init', sDBG, '0', vT + 1, vT)
A(f'''
s_mov_b64 exec, -1
L_ld2:
s_waitcnt vmcnt(0)
s_barrier
s_barrier
s_cmp_eq_u32 s{sB}, 0
s_cbranch_scc0 L_ld3
s_barrier
L_ld3:
v_mov_b32 v{vT + 1}, {L_RELAY}
s_cmp_eq_u32 s{sWv}, 4
s_cbranch_scc0 L_relay
s_lshl_b32 s{sT + 1}, 1, s{sRB}
s_or_b32 exec_lo, s{sT + 1}, 0xffff0000
s_mov_b32 exec_hi, 0xffff
''')
spin('s1', sWS, f's{sFG}', vFl, vT)
A(f'''
s_mov_b64 exec, -1
ds_write_b32 v{vT + 1}, v{vOne}
s_branch L_go
L_relay:
s_mov_b32 s{sSpin}, {OPT['spin'] * 16}
L_relay1:
ds_read_b32 v{vT}, v{vT + 1}
s_sub_u32 s{sSpin}, s{sSpin}, 1
s_waitcnt lgkmcnt(0)
s_cmp_eq_u32 s{sSpin}, 0
s_cbranch_scc1 L_go
v_cmp_ne_u32 vcc, 1, v{vT}
s_cbranch_vccnz L_relay1
L_go:
''')
stamp('s1_seen')
A(f'''
s_lshl_b32 s{sT}, s{sH}, 6
s_lshl_b32 s{sT + 1}, s{sRB}, 2
s_add_u32 s{sT + 1}, s{sT + 1}, s{sRT}
s_add_u32 s{sT + 1}, s{sT + 1}, s{sT}
s_lshl_b32 s{sT + 1}, s{sT + 1}, 11
s_lshl_b32 s{sT}, s{sRT}, 11
s_add_u32 m0, s{sT}, {L_Q}
s_lshl_b32 s{sM0}, s{sRT}, 12
buffer_load_dwordx4 v{vLin}, {sr(sWS, 4)}, s{sT + 1} offen sc1 lds
buffer_load_dwordx4 v{vLin}, {sr(sWS, 4)}, s{sT + 1} offen offset:1024 sc1 lds
''')
for c in range(2):
    for kh in range(2):
        A(f's_add_u32 m0, s{sM0}, {c * 32768 + kh * 16384}')
        A(f's_add_u32 s{sT + 2}, s{sKVo}, {(c * 16384 + (kh - 1) * 131072) & 0xffffffff}')
        for q in range(4):
            A(f'buffer_load_dwordx4 v{vLin}, {sr(sWS, 4)}, s{sT + 2} offen offset:{1024 * q} sc1 lds')
A(f'''
s_setprio 0
s_waitcnt vmcnt(8)
s_barrier
s_cmp_eq_u32 s{sB}, 0
s_cbranch_scc1 L_att
''')
vKa, vKb, vKc = 128, 160, 192
A(f'''
v_bfe_u32 v{vT}, v{vL}, 2, 2
v_lshl_add_u32 v{vT + 1}, v{vH}, 2, v{vT}      ; 4h + r
v_lshrrev_b32 v{vT + 2}, 1, v{vT + 1}          ; 2h + (r>>1)
v_bfe_u32 v{vT + 3}, v{vL}, 4, 1
v_and_b32 v{vT}, 2, v{vL}
v_or_b32 v{vT + 3}, v{vT + 3}, v{vT}           ; 2*a1 + a2
v_xor_b32 v{vT + 2}, v{vT + 2}, v{vT + 3}
v_lshlrev_b32 v{vT + 2}, 4, v{vT + 2}
v_lshl_add_u32 v{vT + 1}, v{vT + 1}, 6, v{vT + 2}
v_and_b32 v{vT}, 1, v{vL}
v_lshl_add_u32 v{vT + 1}, v{vT}, 3, v{vT + 1}
s_lshl_b32 s{sT}, s{sRT}, 13
s_add_u32 s{sT}, s{sT}, {L_PHI}
v_add_u32 v{vT + 1}, s{sT}, v{vT + 1}
s_lshr_b32 s{sT + 2}, s{sRT}, 1
s_lshl_b32 s{sT}, s{sT + 2}, 13
s_add_u32 s{sT}, s{sT}, {L_V}
v_add_u32 v{vT + 2}, s{sT}, v{vLin}
''')


def kv_reads(st):
    A(f'ds_read_b64_tr_b16 {vr(vKa + 4 * st, 2)}, v{vT + 1} offset:{(16 * st) * 64}')
    A(f'ds_read_b64_tr_b16 {vr(vKa + 4 * st + 2, 2)}, v{vT + 1} offset:{(16 * st + 8) * 64}')
    A(f'ds_read_b128 {vr(vKb + 4 * st, 4)}, v{vT + 2} offset:{st * 1024}')


for st in range(4):
    kv_reads(st)
for st in range(8):
    A(f's_waitcnt lgkmcnt({min(9, 3 * (7 - st))})')
    A(f'v_mfma_f32_32x32x16_bf16 {vr(vKc, 16)}, {vr(vKa + 4 * st, 4)}, {vr(vKb + 4 * st, 4)}, {vr(vKc, 16) if st else 0}')
    if st + 4 < 8:
        kv_reads(st + 4)
A(f'''
s_lshl_b32 s{sT}, s{sCG}, 1
s_add_u32 s{sT}, s{sT}, s{sT + 2}
s_lshl_b32 s{sT}, s{sT}, 4
s_add_u32 s{sT}, s{sT}, s{sRB1}
s_lshl_b32 s{sT}, s{sT}, 1
s_and_b32 s{sT + 1}, s{sRT}, 1
s_add_u32 s{sT}, s{sT}, s{sT + 1}
s_lshl_b32 s{sT}, s{sT}, 12
s_add_u32 s{sT}, s{sT}, {WS_KVP}
''')
for q in range(4):
    A(f'buffer_store_dwordx4 {vr(vKc + 4 * q, 4)}, v{vLin}, {sr(sWS, 4)}, s{sT} offen offset:{1024 * q} sc1')
A('s_branch L_att')

vXl, vWl = 16, 20
vFA, vFB = 24, 44
vAcc = 64
A(f'''
L_comp:
s_and_b32 s{sRH}, s{sWv}, 1
s_lshr_b32 s{sH1}, s{sWv}, 1
s_waitcnt lgkmcnt(0)
''')
common_setup()
A(f'''
s_cmp_eq_u32 s{sB}, 0
s_cbranch_scc1 L_nophi
s_lshl_b32 s{sT}, s{sWv}, 10
s_add_u32 m0, s{sT}, {L_WPHI}
s_mul_i32 s{sT + 1}, s{sCG}, 3136
s_add_u32 s{sT}, s{sT}, s{sT + 1}
buffer_load_dwordx4 v{vLin}, {sr(sPHI, 4)}, s{sT} offen lds
L_nophi:
s_cmp_eq_u32 s{sWv}, 1
s_cbranch_scc0 L_nopf
s_getpc_b64 s[{sT}:{sT + 1}]
L_pc:
s_sub_u32 s{sT}, s{sT}, L_pc-L_ld
s_subb_u32 s{sT + 1}, s{sT + 1}, 0
s_lshl_b32 s{sT + 2}, s{sJ}, 10
s_cmp_lt_u32 s{sT + 2}, L_end-L_ld
s_cbranch_scc0 L_nopf
s_add_u32 s{sT}, s{sT}, s{sT + 2}
s_addc_u32 s{sT + 1}, s{sT + 1}, 0
global_load_dword v14, v{vLin}, s[{sT}:{sT + 1}]
L_nopf:
s_cmp_eq_u32 s{sWv}, 0
s_cbranch_scc0 L_noinit
v_mov_b32 v{vT}, 0
v_mov_b32 v{vT + 1}, {L_RELAY}
ds_write_b32 v{vT + 1}, v{vT}
s_cmp_eq_u32 s{sJ}, 0
s_cbranch_scc0 L_noinit
''')
for i in range(6):
    A(f's_add_u32 s{sT}, s{sFG}, {8192 * i}')
    A(f'buffer_store_dword v{vT}, v{vFl}, {sr(sWS, 4)}, s{sT} offen sc1')
A(f'''
s_waitcnt vmcnt(0)
s_lshl_b32 s{sT}, s{sXc}, 2
s_mov_b64 exec, 1
buffer_store_dword v{vOne}, v{vT}, {sr(sDBG, 4)}, s{sT} offen sc1
s_mov_b64 exec, -1
L_noinit:
v_and_b32 v{vT}, 31, v{vL}
v_bfe_u32 v{vT + 1}, v{vL}, 1, 3
v_xor_b32 v{vT + 1}, v{vT + 1}, v{vH}
v_lshlrev_b32 v{vT + 1}, 4, v{vT + 1}
s_lshl_b32 s{sT}, s{sRH}, 6
v_add_u32 v{vT}, s{sT}, v{vT}
v_lshl_add_u32 v{vXl}, v{vT}, 7, v{vT + 1}
v_xor_b32 v{vXl + 1}, 32, v{vXl}
v_xor_b32 v{vXl + 2}, 64, v{vXl}
v_xor_b32 v{vXl + 3}, 0x60, v{vXl}
v_bfe_u32 v{vT}, v{vL}, 2, 2
v_lshl_add_u32 v{vT + 1}, v{vH}, 3, v{vT}
v_mul_u32_u24 v{vT + 1}, 384, v{vT + 1}
v_lshrrev_b32 v{vT}, 1, v{vT}
v_bfe_u32 v{vT + 2}, v{vL}, 4, 1
v_and_b32 v{vT + 3}, 3, v{vL}
v_lshl_add_u32 v{vT + 2}, v{vT + 2}, 2, v{vT + 3}
''')
for i in range(3):
    A(f'''
    s_mul_i32 s{sT}, s{sH1}, 3
    s_add_u32 s{sT}, s{sT}, {i}
    s_add_u32 s{sT + 1}, s{sH1}, {2 * i}
    s_cmp_eq_u32 s{sB}, 0
    s_cselect_b32 s{sT}, s{sT}, s{sT + 1}
    s_and_b32 s{sT + 1}, s{sT}, 1
    s_lshr_b32 s{sT}, s{sT}, 1
    s_lshl_b32 s{sT}, s{sT}, 7
    s_add_u32 s{sT}, s{sT}, 16384
    v_add_u32 v{vT + 3}, s{sT + 1}, v{vT + 2}
    v_and_b32 v{vT + 3}, 7, v{vT + 3}
    v_xor_b32 v{vT + 4}, s{sT + 1}, v{vT}
    v_lshl_add_u32 v{vT + 3}, v{vT + 4}, 3, v{vT + 3}
    v_lshl_add_u32 v{vT + 3}, v{vT + 3}, 3, v{vT + 1}
    v_add_u32 v{vWl + i}, s{sT}, v{vT + 3}
    ''')
for i in range(96):
    A(f'v_mov_b32 v{vAcc + i}, 0')


def p1_read_list(s, F):
    r = [f'ds_read_b128 {vr(F, 4)}, v{vXl + s}']
    for i in range(3):
        for u in range(2):
            r.append(f'ds_read_b64_tr_b16 {vr(F + 8 + 4 * i + 2 * u, 2)}, v{vWl + i} offset:{(16 * s + 4 * u) * 384}')
        if i == 0:
            r.append(f'ds_read_b128 {vr(F + 4, 4)}, v{vXl + s} offset:4096')
    return r


def p1_step(F, var, reads, extra=()):
    reads = list(reads)
    extra = list(extra)
    n = 0
    for i in range(3):
        for a in range(2):
            w, x, acc = vr(F + 8 + 4 * i, 4), vr(F + 4 * a, 4), vr(vAcc + 32 * i + 16 * a, 16)
            p, q = (w, x) if var[i] == 'T' else (x, w)
            A(f'v_mfma_f32_32x32x16_bf16 {acc}, {p}, {q}, {acc}')
            if n < 3:
                for r in reads[3 * n:3 * n + 3]:
                    A(r)
            else:
                for r in extra[4 * (n - 3):4 * (n - 3) + 4]:
                    A(r)
            n += 1


A(f'''
s_mov_b32 s{sC}, 0
s_mov_b32 s{sSlot}, 0
s_lshl_b32 s{sT + 8}, s{sCG}, 1
s_add_u32 s{sT + 8}, s{sT + 8}, s{sH1}
s_cmp_eq_u32 s{sB}, 0
s_cselect_b32 s{sT}, s{sT + 8}, 10
s_waitcnt lgkmcnt(0)
s_barrier
''')
stamp('p1_first')
for r in p1_read_list(0, vFA):
    A(r)
A(f'''
s_cmp_eq_u32 s{sT}, 10
s_cbranch_scc1 L_p1_TTN
s_cmp_gt_u32 s{sT}, 10
s_cbranch_scc1 L_p1_NNN
''')
for var in ('TTT', 'TTN', 'NNN'):
    A('.p2align 3')
    A(f'L_p1_{var}:')
    A('s_waitcnt lgkmcnt(0)')
    A(f's_add_u32 s{sC}, s{sC}, 1')
    p1_step(vFA, var, p1_read_list(1, vFB),
            [f's_add_u32 s{sSlot}, s{sSlot}, 1', f's_cmp_eq_u32 s{sSlot}, 3', f's_cselect_b32 s{sSlot}, 0, s{sSlot}',
             f's_cselect_b32 s{sT}, -2, 1', f's_mul_i32 s{sT}, s{sT}, {SLOT}'])
    A('s_waitcnt lgkmcnt(0)')
    A('s_nop 0')
    p1_step(vFB, var, p1_read_list(2, vFA))
    A('s_waitcnt lgkmcnt(0)')
    A('s_nop 0')
    p1_step(vFA, var, p1_read_list(3, vFB), [f'v_add_u32 v{vXl + i}, s{sT}, v{vXl + i}' for i in range(7)] + ['s_nop 0'])
    A('s_waitcnt vmcnt(0) lgkmcnt(0)')
    A('s_barrier')
    p1_step(vFB, var, p1_read_list(0, vFA))
    A(f's_cmp_lt_u32 s{sC}, 7')
    A(f's_cbranch_scc1 L_p1_{var}')
    if var != 'NNN':
        A('s_branch L_p1_done')
A('L_p1_done:')
stamp('p1_done')
A(f'''
s_lshl_b32 s{sT + 4}, s{sRB1}, 1
s_add_u32 s{sT + 4}, s{sT + 4}, s{sRH}
s_lshl_b32 s{sT + 4}, s{sT + 4}, 1
s_waitcnt lgkmcnt(0)
s_cmp_eq_u32 s{sB}, 0
s_cbranch_scc0 L_epiB
''')
vP = 16
A(f'''
v_and_b32 v{vT}, 0x33, v{vL}
v_bfe_u32 v{vT + 1}, v{vL}, 2, 1
v_bfe_u32 v{vT + 2}, v{vL}, 3, 1
v_lshl_add_u32 v{vT}, v{vT + 1}, 3, v{vT}
v_lshl_add_u32 v{vT}, v{vT + 2}, 2, v{vT}
v_lshlrev_b32 v{vT}, 4, v{vT}
s_mov_b32 s{sT + 6}, {f32(QSCALE)}
s_mov_b32 s{sT + 7}, {f32(QSCALE)}
s_mul_i32 s{sT + 8}, s{sT + 8}, 3
''')
for i in range(3):
    acc, P = vAcc + 32 * i, vP + 16 * i
    A(f'''
    s_add_u32 s{sT}, s{sT + 8}, {i}
    s_and_b32 s{sT + 1}, s{sT}, 15
    s_lshl_b32 s{sT + 1}, s{sT + 1}, 6
    s_add_u32 s{sT + 1}, s{sT + 1}, s{sT + 4}
    s_cmp_ge_u32 s{sT}, 16
    s_cbranch_scc1 L_eA_kv{i}
    s_lshl_b32 s{sT + 1}, s{sT + 1}, 11
    ''')
    for r in range(0, 32, 2):
        A(f'v_pk_mul_f32 {vr(acc + r, 2)}, {vr(acc + r, 2)}, {sr(sT + 6, 2)}')
    cvt8(P, acc)
    cvt8(P + 8, acc + 16)
    A(f'''
    s_mov_b64 exec, {sr(sHi, 2)}
    v_mov_b32 v{P + 6}, 0
    v_mov_b32 v{P + 7}, 0
    v_mov_b32 v{P + 14}, 0
    v_mov_b32 v{P + 15}, 0
    s_mov_b64 exec, -1
    ''')
    for q in range(4):
        A(f'buffer_store_dwordx4 {vr(P + 4 * q, 4)}, v{vLin}, {sr(sWS, 4)}, s{sT + 1} offen offset:{1024 * q} sc1')
    A(f'''
    s_branch L_eA_n{i}
    L_eA_kv{i}:
    ''')
    cvt8(P, acc)
    cvt8(P + 8, acc + 16)
    A(f'''
    s_lshl_b32 s{sT + 1}, s{sT + 1}, 12
    s_add_u32 s{sT + 2}, s{sT + 1}, {WS_KV + 4096}
    s_add_u32 s{sT + 1}, s{sT + 1}, {WS_KV}
    s_cmp_ge_u32 s{sT}, 32
    s_cbranch_scc1 L_eA_v{i}
    s_mov_b64 exec, {sr(sHi, 2)}
    v_mov_b32 v{P + 6}, 0x3f803f80
    v_mov_b32 v{P + 7}, 0x3f80
    v_mov_b32 v{P + 14}, 0x3f803f80
    v_mov_b32 v{P + 15}, 0x3f80
    s_mov_b64 exec, -1
    ''')
    for q in range(4):
        A(f'buffer_store_dwordx4 {vr(P + 4 * q, 4)}, v{vT}, {sr(sWS, 4)}, s{sT + 1 + (q >> 1)} offen offset:{1024 * (q & 1)} sc1')
    A(f'''
    s_branch L_eA_n{i}
    L_eA_v{i}:
    s_mov_b32 s{sT}, 0x3f803f80
    s_mov_b64 exec, {sr(sOnesM, 2)}
    ''')
    for r in range(16):
        A(f'v_mov_b32 v{P + r}, s{sT}')
    A('s_mov_b64 exec, -1')
    for q in range(4):
        A(f'buffer_store_dwordx4 {vr(P + 4 * q, 4)}, v{vLin}, {sr(sWS, 4)}, s{sT + 1 + (q >> 1)} offen offset:{2048 + 1024 * (q & 1)} sc1')
    A(f'L_eA_n{i}:')
stamp('epi_done')
A(f'''
s_mul_i32 s{sT}, s{sCG}, 3
v_add_u32 v{vT}, s{sT}, v{vL}
v_and_b32 v{vT + 1}, 7, v{vT}
v_lshrrev_b32 v{vT}, 3, v{vT}
v_mul_u32_u24 v{vT + 1}, {FGRP}, v{vT + 1}
v_lshl_add_u32 v{vT + 2}, v{vT}, 11, v{vT + 1}
s_lshl_b32 s{sT}, s{sRB1}, 7
s_add_u32 s{sT}, s{sT}, {WS_FL + F_A}
s_waitcnt vmcnt(0)
s_barrier
s_cmp_eq_u32 s{sWv}, 0
s_cbranch_scc0 L_k0
s_mov_b64 exec, 7
buffer_store_dword v{vOne}, v{vT + 2}, {sr(sWS, 4)}, s{sT} offen sc1
s_mov_b64 exec, -1
''')
stamp('sigA')
A('s_branch L_k0')
pK, pQ, pV, vWF, vX, vU = 16, 32, 48, 160, 168, 200
A('L_epiB:')
wphi_addr(vU, vU + 1)
A(f'''
s_mul_i32 s{sT}, s{sH1}, 1568
s_add_u32 s{sT}, s{sT}, {L_WPHI}
v_add_u32 v{vU}, s{sT}, v{vU}
''')
for q in range(4):
    A(f'ds_read_b64_tr_b16 {vr(vWF + 2 * q, 2)}, v{vU} offset:{8 * q * 56}')
cvt8(pQ, vAcc)
cvt8(pQ + 8, vAcc + 16)
cvt8(pK, vAcc + 32)
cvt8(pK + 8, vAcc + 48)
A(f's_mov_b64 exec, {sr(sHi, 2)}')
for r in (6, 7, 14, 15):
    A(f'v_mov_b32 v{pK + r}, 0')
for r in (6, 7, 14, 15):
    A(f'v_mov_b32 v{pQ + r}, 0')
A(f'''
s_mov_b64 exec, -1
s_lshl_b32 s{sT + 1}, s{sT + 8}, 6
s_add_u32 s{sT + 1}, s{sT + 1}, s{sT + 4}
s_lshl_b32 s{sT + 1}, s{sT + 1}, 11
s_add_u32 s{sT + 1}, s{sT + 1}, {WS_QB}
s_waitcnt lgkmcnt(0)
''')
for a in range(2):
    A(f'v_mfma_f32_32x32x16_bf16 {vr(vX + 16 * a, 16)}, {vr(vWF, 4)}, {vr(pK + 8 * a, 4)}, 0')
    for i in range(4):
        A(f'v_cvt_pk_bf16_f32 v{pV + 8 * a + i}, v{vAcc + 64 + 16 * a + 2 * i}, v{vAcc + 64 + 16 * a + 2 * i + 1}')
    A(f'v_mfma_f32_32x32x16_bf16 {vr(vX + 16 * a, 16)}, {vr(vWF + 4, 4)}, {vr(pK + 8 * a + 4, 4)}, {vr(vX + 16 * a, 16)}')
    for i in range(4, 8):
        A(f'v_cvt_pk_bf16_f32 v{pV + 8 * a + i}, v{vAcc + 64 + 16 * a + 2 * i}, v{vAcc + 64 + 16 * a + 2 * i + 1}')
for q in range(4):
    A(f'buffer_store_dwordx4 {vr(pQ + 4 * q, 4)}, v{vLin}, {sr(sWS, 4)}, s{sT + 1} offen offset:{1024 * q} sc1')
A(f's_mov_b32 s{sT}, 0x3f803f80')
A(f's_mov_b64 exec, {sr(sOnesM, 2)}')
for r in range(16):
    A(f'v_mov_b32 v{pV + r}, s{sT}')
A(f'''
s_mov_b64 exec, -1
s_lshl_b32 s{sT}, s{sWv}, 12
s_add_u32 s{sT}, s{sT}, {L_V}
v_add_u32 v{vU}, s{sT}, v{vLin}
''')
for q in range(4):
    A(f'ds_write_b128 v{vU}, {vr(pV + 4 * q, 4)} offset:{1024 * q}')
tiles = [(vX + 16 * a, vAcc + 16 * a, vAcc + 32 + 16 * a, vT + 4 * a) for a in range(2)]
features(tiles)
for X, Ep, En, t in tiles:
    A(f'v_pk_add_f32 {vr(t, 2)}, {vr(Ep, 2)}, {vr(Ep + 2, 2)}')
    A(f'v_pk_add_f32 {vr(t + 2, 2)}, {vr(En, 2)}, {vr(En + 2, 2)}')
for r in range(4, 16, 2):
    for X, Ep, En, t in tiles:
        A(f'v_pk_add_f32 {vr(t, 2)}, {vr(t, 2)}, {vr(Ep + r, 2)}')
        A(f'v_pk_add_f32 {vr(t + 2, 2)}, {vr(t + 2, 2)}, {vr(En + r, 2)}')
for X, Ep, En, t in tiles:
    A(f'v_add_f32 v{t}, v{t}, v{t + 1}')
    A(f'v_add_f32 v{t + 2}, v{t + 2}, v{t + 3}')
A(f'''
v_and_b32 v{vU}, 31, v{vL}
v_bfe_u32 v{vU + 1}, v{vL}, 1, 2
''')
for X, Ep, En, t in tiles:
    A(f'v_permlane32_swap_b32 v{t}, v{t + 2}')
for X, Ep, En, t in tiles:
    A(f'v_add_f32 v{t}, v{t}, v{t + 2}')
for X, Ep, En, t in tiles:
    A(f'v_rcp_f32 v{t}, v{t}')
A(f'''
v_lshlrev_b32 v{vU + 2}, 1, v{vH}
''')
for X, Ep, En, t in tiles:
    A(f'v_mov_b32 v{t + 2}, v{t}')
A(f'''
v_xor_b32 v{vU + 1}, v{vU + 1}, v{vU + 2}
v_lshlrev_b32 v{vU + 1}, 4, v{vU + 1}
''')
for X, Ep, En, t in tiles:
    A(f'v_permlane32_swap_b32 v{t}, v{t + 2}')
A(f'''
v_lshl_add_u32 v{vU}, v{vU}, 6, v{vU + 1}
s_lshl_b32 s{sT}, s{sH1}, 14
s_lshl_b32 s{sT + 1}, s{sRH}, 12
s_add_u32 s{sT}, s{sT}, s{sT + 1}
s_add_u32 s{sT}, s{sT}, {L_PHI}
v_add_u32 v{vU}, s{sT}, v{vU}
v_xor_b32 v{vU + 1}, 16, v{vU}
''')
for a, (X, Ep, En, t) in enumerate(tiles):
    for sg, (E, s_) in enumerate(((Ep, t), (En, t + 2))):
        for r in range(0, 16, 2):
            A(f'v_pk_mul_f32 {vr(E + r, 2)}, {vr(E + r, 2)}, {vr(s_, 2)} op_sel_hi:[1,0]')
        P = X + 8 * sg
        cvt8(P, E)
        A(f'ds_write_b128 v{vU}, {vr(P, 4)} offset:{8192 * sg + 2048 * a}')
        A(f'ds_write_b128 v{vU + 1}, {vr(P + 4, 4)} offset:{8192 * sg + 2048 * a}')
stamp('epi_done')
A(f'''
s_waitcnt lgkmcnt(0)
L_k0:
s_barrier
''')
vQ, vO, vS, vPp, vF, vIdx, vFg, vRd = 16, 24, 40, 72, 88, 120, 121, 122
vSl, vQB, vKVF, vSlA, vWoG = 124, 156, 164, 14, 15
A('L_att:')
stamp('k0')


def kv_issue(c):
    A(f's_add_u32 m0, s{sM0}, {(c % 4) * 32768}')
    A(f's_add_u32 s{sT + 2}, s{sKVo}, {c * 16384}')
    for q in range(4):
        A(f'buffer_load_dwordx4 v{vLin}, {sr(sWS, 4)}, s{sT + 2} offen offset:{1024 * q} sc1 lds')


def lds_frag(dst, t, piece):
    off = ((t >> 2) % 4) * 32768 + (t & 3) * 4096 + piece * 1024
    A(f'ds_read_b128 {vr(dst, 4)}, v{vRd + (off >> 16)} offset:{off & 0xffff}')


def set_qpad(m, t):
    A(f'''
    v_and_b32 v{t}, 0xffff0000, v{m}
    v_sub_f32 v{t + 1}, v{m}, v{t}
    v_and_b32 v{t + 2}, 0xffff0000, v{t + 1}
    v_sub_f32 v{t + 1}, v{t + 1}, v{t + 2}
    v_lshrrev_b32 v{t}, 16, v{t}
    s_mov_b64 exec, {sr(sHi, 2)}
    v_or_b32 v{vQ + 6}, v{t}, v{t + 2}
    v_lshrrev_b32 v{vQ + 7}, 16, v{t + 1}
    s_mov_b64 exec, -1
    ''')


def qk(S, K_, half):
    c = vr(S, 16) if half else '0'
    A(f'v_mfma_f32_32x32x16_bf16 {vr(S, 16)}, {vr(K_, 4)}, {vr(vQ + 4 * half, 4)}, {c}')


def pv(V, half):
    A(f'v_smfmac_f32_32x32x32_bf16 {vr(vO, 16)}, {vr(V, 4)}, {vr(vPp + 8 * half, 8)}, v{vIdx}')


A(f'''
s_lshl_b32 s{sT}, s{sRT}, 11
s_add_u32 s{sT}, s{sT}, {L_Q}
v_add_u32 v{vT}, s{sT}, v{vLin}
s_lshl_b32 s{sT}, s{sHH}, 14
v_add_u32 v{vRd}, s{sT}, v{vLin}
ds_read_b128 {vr(vQ, 4)}, v{vT}
ds_read_b128 {vr(vPp, 4)}, v{vLin}
ds_read_b128 {vr(vQ + 4, 4)}, v{vT} offset:1024
ds_read_b128 {vr(vPp + 4, 4)}, v{vLin} offset:1024
''')
lds_frag(vF + 16, 0, 0)
lds_frag(vF + 20, 0, 1)
lds_frag(vF, 1, 0)
lds_frag(vF + 4, 1, 1)
lds_frag(vF + 12, 0, 2)
A(f'''
v_add_u32 v{vRd + 1}, 0x10000, v{vRd}
v_mov_b32 v{vIdx}, 0xdddddddd
s_lshl_b32 s{sM0}, s{sWv}, 12
s_waitcnt lgkmcnt(7)
''')
qk(vS + 16, vPp, 0)
A('s_waitcnt lgkmcnt(5)')
qk(vS + 16, vPp + 4, 1)
A('s_waitcnt lgkmcnt(4)')
qk(vS, vF + 16, 0)
for r in range(16):
    A(f'v_mov_b32 v{vO + r}, 0')
S = vS + 16
A(f'v_max3_f32 v{vT}, v{S}, v{S + 1}, v{S + 2}')
A(f'v_max3_f32 v{vT + 1}, v{S + 3}, v{S + 4}, v{S + 5}')
A(f'v_max3_f32 v{vT}, v{vT}, v{S + 6}, v{S + 7}')
A(f'v_max3_f32 v{vT + 1}, v{vT + 1}, v{S + 8}, v{S + 9}')
A(f'v_max3_f32 v{vT}, v{vT}, v{S + 10}, v{S + 11}')
A(f'v_max3_f32 v{vT + 1}, v{vT + 1}, v{S + 12}, v{S + 13}')
A(f'v_max3_f32 v{vT}, v{vT}, v{S + 14}, v{S + 15}')
A(f'''
v_max_f32 v{vT}, v{vT}, v{vT + 1}
v_mov_b32 v{vT + 1}, v{vT}
v_permlane32_swap_b32 v{vT}, v{vT + 1}
v_max_f32 v{vT}, v{vT}, v{vT + 1}
v_sub_f32 v{vT}, {f32(-float(OPT['moff']) if not OPT['force_fb'] else 200.0)}, v{vT}
''')
set_qpad(vT, vT + 1)
A('s_waitcnt lgkmcnt(3)')
qk(vS, vF + 20, 1)
kv_issue(2)
A(f'''
v_lshrrev_b32 v{vT}, 3, v{vL}
v_mul_u32_u24 v{vT}, 896, v{vT}
v_lshrrev_b32 v{vT + 1}, 4, v{vL}
v_lshlrev_b32 v{vT + 1}, 1, v{vT + 1}
v_and_b32 v{vT + 2}, 7, v{vL}
v_xor_b32 v{vT + 1}, v{vT + 1}, v{vT + 2}
v_lshl_add_u32 v{vWoG}, v{vT + 1}, 4, v{vT}
''')


def wo_issue(srd_, lds_base, first, n, per_wave, wave_s):
    A(f's_mul_i32 s{sT + 3}, s{wave_s}, {per_wave * 1024}')
    A(f's_mul_i32 s{sT + 4}, s{wave_s}, {per_wave * 7168}')
    A(f's_lshl_b32 s{sT + 5}, s{sCB}, 7')
    A(f's_add_u32 s{sT + 4}, s{sT + 4}, s{sT + 5}')
    for i in range(n):
        if i % 4 == 0:
            A(f's_add_u32 m0, s{sT + 3}, {lds_base + (first + i) * 1024}')
        A(f's_add_u32 s{sT + 5}, s{sT + 4}, {(first + i) * 7168 - (i % 4) * 1024}')
        A(f'buffer_load_dwordx4 v{vWoG}, {sr(srd_, 4)}, s{sT + 5} offen offset:{(i % 4) * 1024} lds')


def guard(tag, cmp_, body):
    A(cmp_)
    A(f's_cbranch_scc0 L_g_{tag}')
    body()
    A(f'L_g_{tag}:')


def hook_pre(t):
    if t == 14:
        def b():
            A('s_mov_b64 exec, 0xffff')
            A(f's_add_u32 s{sT}, s{sFG}, {F_B}')
            spin('fb', sWS, f's{sT}', vFl, vFg, preloaded=True)
            A('s_mov_b64 exec, -1')
        guard('h14a', f's_cmp_eq_u32 s{sWv}, 0', b)
        A('.p2align 3')


def hook_mid(t):
    if t == 2:
        def b():
            A(f'''
            s_lshl_b32 s{sT + 1}, s{sWv}, 10
            s_add_u32 m0, s{sT + 1}, {L_WPHI}
            s_mul_i32 s{sT + 2}, s{sH}, 1568
            s_add_u32 s{sT + 2}, s{sT + 2}, s{sT + 1}
            buffer_load_dwordx4 v{vLin}, {sr(sPHI, 4)}, s{sT + 2} offen lds
            ''')
        guard('h2', f's_cmp_lt_u32 s{sWv}, 2', b)
    if t == 6:
        def b():
            A(f'''
            s_mul_i32 s{sT}, s{sCG}, {FGRP}
            s_lshl_b32 s{sT + 1}, s{sRB1}, 7
            s_add_u32 s{sT}, s{sT}, s{sT + 1}
            s_add_u32 s{sT}, s{sT}, {WS_FL + F_B}
            s_mov_b64 exec, 1
            buffer_store_dword v{vOne}, v{vL}, {sr(sWS, 4)}, s{sT} offen sc1
            s_mov_b64 exec, -1
            ''')
        guard('h6', f's_cmp_lt_u32 s{sWv}, s{sB}', b)
    if t == 10:
        def b():
            A(f'''
            s_mov_b64 exec, 0xffff
            s_add_u32 s{sT}, s{sFG}, {F_B}
            buffer_load_dword v{vFg}, v{vFl}, {sr(sWS, 4)}, s{sT} offen sc1
            s_mov_b64 exec, -1
            ''')
        guard('h10', f's_cmp_eq_u32 s{sWv}, 0', b)
    if t == 14:
        def b():
            A(f'''
            v_bfe_u32 v{vT}, v{vL}, 1, 1
            v_and_b32 v{vT + 1}, 1, v{vL}
            v_lshrrev_b32 v{vSlA}, 2, v{vL}
            v_lshlrev_b32 v{vSlA}, 4, v{vSlA}
            v_lshl_add_u32 v{vSlA}, v{vT}, 10, v{vSlA}
            v_lshl_add_u32 v{vSlA}, v{vT + 1}, 3, v{vSlA}
            s_lshr_b32 s{sT}, s{sRB}, 2
            s_lshl_b32 s{sT}, s{sT}, 11
            s_and_b32 s{sT + 1}, s{sRB}, 3
            s_lshl_b32 s{sT + 1}, s{sT + 1}, 8
            s_add_u32 s{sT}, s{sT}, s{sT + 1}
            s_lshl_b32 s{sT + 1}, s{sH}, 17
            s_add_u32 s{sT}, s{sT}, s{sT + 1}
            s_add_u32 s{sT}, s{sT}, {WS_KVP}
            ''')
            for p in range(16):
                A(f'buffer_load_dwordx2 {vr(vSl + 2 * p, 2)}, v{vSlA}, {sr(sWS, 4)}, s{sT} offen sc1')
                if p < 15:
                    A(f's_add_u32 s{sT}, s{sT}, 8192')
        guard('h14b', f's_cmp_eq_u32 s{sWv}, 0', b)
    if t == 18:
        def b():
            n = 8
            while n:
                for p in range(n):
                    A(f'v_pk_add_f32 {vr(vSl + 2 * p, 2)}, {vr(vSl + 2 * p, 2)}, {vr(vSl + 2 * (p + n), 2)}')
                n //= 2
            A(f'''
            s_lshl_b32 s{sT}, s{sH}, 4
            s_add_u32 s{sT}, s{sT}, s{sRB}
            s_lshl_b32 s{sT}, s{sT}, 8
            s_add_u32 s{sT}, s{sT}, {WS_KVF}
            v_cvt_pk_bf16_f32 v{vSl}, v{vSl}, v{vSl + 1}
            v_lshlrev_b32 v{vSlA}, 2, v{vL}
            s_bitcmp1_b32 s{sRB}, 0
            s_cselect_b32 exec_hi, 0x00f00000, 0
            s_mov_b32 exec_lo, 0
            v_mov_b32 v{vSl}, 0x3f803f80
            s_mov_b64 exec, -1
            buffer_store_dword v{vSl}, v{vSlA}, {sr(sWS, 4)}, s{sT} offen sc1
            ''')
        guard('h18', f's_cmp_eq_u32 s{sWv}, 0', b)
    if t == 22:
        def b():
            A(f'''
            s_lshl_b32 s{sT}, s{sJ}, 7
            s_add_u32 s{sT}, s{sT}, s{sFG}
            s_add_u32 s{sT}, s{sT}, {F_K}
            s_mov_b64 exec, 1
            buffer_store_dword v{vOne}, v{vL}, {sr(sWS, 4)}, s{sT} offen sc1
            s_mov_b64 exec, -1
            ''')
        guard('h22a', f's_cmp_eq_u32 s{sWv}, 0', b)

        def b():
            A(f'''
            s_lshl_b32 s{sT}, s{sH}, 6
            s_lshl_b32 s{sT + 1}, s{sRB}, 2
            s_add_u32 s{sT}, s{sT}, s{sT + 1}
            s_add_u32 s{sT}, s{sT}, s{sRT}
            s_lshl_b32 s{sT}, s{sT}, 11
            s_add_u32 s{sT}, s{sT}, {WS_QB}
            buffer_load_dwordx4 {vr(vQB, 4)}, v{vLin}, {sr(sWS, 4)}, s{sT} offen sc1
            buffer_load_dwordx4 {vr(vQB + 4, 4)}, v{vLin}, {sr(sWS, 4)}, s{sT} offen offset:1024 sc1
            ''')
        guard('h22b', f's_cmp_lt_u32 s{sWv}, 4', b)
        wo_issue(sWOA, L_WOA, 0, 4, 4, sWv)
    if t == 26:
        wo_issue(sWOA, L_WOA, 32, 3, 3, sWv)
    if t == 28:
        def b():
            A(f'''
            s_and_b32 s{sT + 9}, s{sJ}, 16
            s_lshl_b32 s{sT + 9}, s{sT + 9}, 7
            s_add_u32 s{sT + 9}, s{sT + 9}, s{sFG}
            s_add_u32 s{sT + 9}, s{sT + 9}, {F_K}
            s_mov_b64 exec, 0xffff
            buffer_load_dword v{vFg}, v{vFl}, {sr(sWS, 4)}, s{sT + 9} offen sc1
            s_mov_b64 exec, -1
            ''')
        guard('h28', f's_cmp_lt_u32 s{sWv}, 4', b)
    if t == 31:
        def b():
            A('s_waitcnt vmcnt(0)')
            A('s_mov_b64 exec, 0xffff')
            spin('fk', sWS, f's{sT + 9}', vFl, vFg, preloaded=True)
            A(f'''
            s_mov_b64 exec, -1
            s_lshl_b32 s{sT}, s{sH}, 12
            s_add_u32 s{sT}, s{sT}, {WS_KVF}
            ''')
            for q in range(4):
                A(f'buffer_load_dwordx4 {vr(vKVF + 4 * q, 4)}, v{vLin}, {sr(sWS, 4)}, s{sT} offen offset:{1024 * q} sc1')
        guard('h31', f's_cmp_lt_u32 s{sWv}, 4', b)
    c = t >> 2
    if (t & 3) == 2 and c <= 4:
        kv_issue(c + 3)
    A('.p2align 3')


RDPOS = {0: [0, 1, 2, 3], 1: [0, 0, 1, 1], 3: [0, 1, 1, 2]}[OPT['rd']]
A('.p2align 3')
for t in range(32):
    S, Sn = vS + 16 * (t & 1), vS + 16 * ((t + 1) & 1)
    F, Fn = vF + 16 * (t & 1), vF + 16 * ((t + 1) & 1)
    ex = lambda r: A(f'v_exp_f32 v{vPp + r}, v{S + r}')

    def fr(slot):
        for q in range(4):
            if RDPOS[q] == slot:
                tt, piece = [(t + 2, 0), (t + 2, 1), (t, 3), (t + 1, 2)][q]
                if tt < 32:
                    lds_frag(Fn + 4 * q, tt, piece)
    c = t >> 2
    if (t & 3) == 2 and c < 7:
        A('s_waitcnt vmcnt(4) lgkmcnt(0)')
        if t == 14:
            A('s_nop 0')
            hook_pre(t)
            A('s_nop 0')
        A('s_barrier')
    else:
        A('s_waitcnt lgkmcnt(0)')
        A('s_nop 0')
    if t < 31:
        qk(Sn, F, 0)
    fr(0)
    for r in range(0, 4):
        ex(r)
    if t < 31:
        qk(Sn, F + 4, 1)
    fr(1)
    for r in range(4, 8):
        ex(r)
    if t > 0:
        pv(F + 8, 1)
    fr(2)
    for r in range(8, 12):
        ex(r)
    pv(F + 12, 0)
    fr(3)
    hook_mid(t)
    for r in range(12, 16):
        ex(r)
A('s_waitcnt lgkmcnt(0)')
pv(vF + 8, 1)
stamp('att_done')
vOA = 14
A(f'''
s_lshl_b32 s{sT}, s{sRT}, 12
s_add_u32 s{sT}, s{sT}, {L_XCH}
v_add_u32 v{vT + 1}, s{sT}, v{vLin}
v_bfe_u32 v{vT}, v{vL}, 4, 1
v_and_b32 v{vOA}, 15, v{vL}
v_lshlrev_b32 v{vOA}, 4, v{vOA}
v_lshl_add_u32 v{vOA}, v{vT}, 10, v{vOA}
v_lshl_add_u32 v{vOA}, v{vH}, 8, v{vOA}
s_lshl_b32 s{sT + 6}, s{sRB}, 2
s_add_u32 s{sT + 6}, s{sT + 6}, s{sRT}
s_lshl_b32 s{sT + 7}, s{sT + 6}, 4
s_add_u32 s{sT + 7}, s{sT + 7}, s{sH}
s_and_b32 s{sT + 8}, s{sT + 7}, 127
s_lshl_b32 s{sT + 7}, s{sT + 7}, 11           ; o offset
s_lshl_b32 s{sT + 8}, s{sT + 8}, 7
s_lshr_b32 s{sT + 6}, s{sT + 6}, 3
s_mul_i32 s{sT + 6}, s{sT + 6}, {FGRP}
s_add_u32 s{sT + 8}, s{sT + 8}, s{sT + 6}
s_cmp_eq_u32 s{sHH}, 0
s_cbranch_scc0 L_tailA
''')


def p3_addr(base):
    vWa = 16
    A(f'''
    v_bfe_u32 v{vT}, v{vL}, 2, 2                 ; r
    v_bfe_u32 v{vT + 1}, v{vL}, 4, 1             ; g&1
    v_and_b32 v{vT + 2}, 3, v{vL}
    v_lshlrev_b32 v{vT + 2}, 3, v{vT + 2}
    v_lshl_add_u32 v{vT + 2}, v{vT}, 7, v{vT + 2}
    v_lshl_add_u32 v{vT + 2}, v{vH}, 11, v{vT + 2}
    v_lshrrev_b32 v{vT}, 1, v{vT}
    v_lshl_add_u32 v{vT + 2}, v{vT}, 5, v{vT + 2}
    v_add_u32 v{vT + 2}, {base}, v{vT + 2}
    v_mul_u32_u24 v{vT + 3}, 576, v{vT + 1}
    v_add_u32 v{vWa}, v{vT + 2}, v{vT + 3}
    v_mul_u32_u24 v{vT + 3}, v{vT + 3}, v{vH}
    v_sub_u32 v{vWa + 4}, v{vWa}, v{vT + 3}
    ''')
    for i in range(1, 4):
        A(f'v_xor_b32 v{vWa + i}, {32 * i}, v{vWa}')
        A(f'v_xor_b32 v{vWa + 4 + i}, {32 * i}, v{vWa + 4}')


vWa, vC, vOf, vWo, NPRE = 16, 24, 40, 104, 9


def wo_reads(hd):
    G = vWo + 16 * (hd % NPRE)
    for ct in range(4):
        for u in range(2):
            A(f'ds_read_b64_tr_b16 {vr(G + 4 * ct + 2 * u, 2)}, v{vWa + 4 * u + (ct ^ (2 * (hd & 1)))} offset:{(28 * hd + 8 * u) * 128}')


vX2, vEp, vEn, vNp, vNn, vWF2 = 180, 40, 56, 72, 88, 104
for q in range(4):
    A(f'ds_write_b128 v{vT + 1}, {vr(vO + 4 * q, 4)} offset:{1024 * q}')
wphi_addr(vT + 2, vT + 3)
A(f'''
v_add_u32 v{vT + 2}, {L_WPHI}, v{vT + 2}
s_waitcnt lgkmcnt(0)
s_barrier
''')
for q in range(4):
    A(f'ds_read_b64_tr_b16 {vr(vWF2 + 2 * q, 2)}, v{vT + 2} offset:{8 * q * 56}')
for r in range(16):
    A(f'v_mov_b32 v{vNp + r}, 0')
A(f'''
s_waitcnt lgkmcnt(0)
v_mfma_f32_32x32x16_bf16 {vr(vX2, 16)}, {vr(vWF2, 4)}, {vr(vQB, 4)}, 0
v_mfma_f32_32x32x16_bf16 {vr(vX2, 16)}, {vr(vWF2 + 4, 4)}, {vr(vQB + 4, 4)}, {vr(vX2, 16)}
''')
for r in range(16):
    A(f'v_mov_b32 v{vNn + r}, 0')
features([(vX2, vEp, vEn, vT + 4)])
A('s_waitcnt vmcnt(0)')
for m in range(2):
    A(f'v_smfmac_f32_32x32x32_bf16 {vr(vNp, 16)}, {vr(vKVF + 4 * m, 4)}, {vr(vEp + 8 * m, 8)}, v{vIdx}')
for m in range(2):
    A(f'v_smfmac_f32_32x32x32_bf16 {vr(vNn, 16)}, {vr(vKVF + 8 + 4 * m, 4)}, {vr(vEn + 8 * m, 8)}, v{vIdx}')
p3_addr(L_WOB)
ap, an = vT + 4, vT + 6
A(f'''
s_add_u32 s{sT + 7}, s{sT + 7}, {WS_O + 0x200000}
s_add_u32 s{sT + 8}, s{sT + 8}, {WS_FL + F_O + 128 * 128}
v_mov_b32 v{vT}, {f32(1e-6)}
v_rcp_f32 v{ap}, v{vNp + 13}
v_rcp_f32 v{an}, v{vNn + 13}
v_fmac_f32 v{vT}, v{vNp + 12}, v{ap}
v_fmac_f32 v{vT}, v{vNn + 12}, v{an}
v_rcp_f32 v{vT}, v{vT}
v_mul_f32 v{ap}, v{ap}, v{vT}
v_mul_f32 v{an}, v{an}, v{vT}
v_mov_b32 v{vT}, v{ap}
v_mov_b32 v{vT + 1}, v{an}
v_permlane32_swap_b32 v{vT}, v{ap}
v_permlane32_swap_b32 v{vT + 1}, v{an}
''')
for r in range(0, 16, 2):
    A(f'v_pk_mul_f32 {vr(vNp + r, 2)}, {vr(vNp + r, 2)}, {vr(ap, 2)} op_sel_hi:[1,0]')
for r in range(0, 16, 2):
    A(f'v_pk_fma_f32 {vr(vNp + r, 2)}, {vr(vNn + r, 2)}, {vr(an, 2)}, {vr(vNp + r, 2)} op_sel_hi:[1,0,1]')
cvt8(vEp, vNp)
A(f'''
s_mov_b64 exec, {sr(sHi, 2)}
v_mov_b32 v{vEp + 6}, 0
v_mov_b32 v{vEp + 7}, 0
s_mov_b64 exec, -1
buffer_store_dwordx4 {vr(vEp, 4)}, v{vOA}, {sr(sWS, 4)}, s{sT + 7} offen sc1
buffer_store_dwordx4 {vr(vEp + 4, 4)}, v{vOA}, {sr(sWS, 4)}, s{sT + 7} offen offset:512 sc1
''')
stamp('o_stored')
A(f'''
s_mov_b64 exec, 1
s_waitcnt vmcnt(0)
buffer_store_dword v{vOne}, v{vL}, {sr(sWS, 4)}, s{sT + 8} offen sc1
s_mov_b64 exec, -1
''')
stamp('o_sig')
A(f'''
s_cmp_ge_u32 s{sJ}, 28
s_cbranch_scc1 L_fin
s_barrier
''')
stamp('m2')
for hd in range(NPRE):
    wo_reads(hd)
A('s_branch L_p3')
A(f'''
L_tailA:
s_add_u32 s{sT + 7}, s{sT + 7}, {WS_O}
s_add_u32 s{sT + 8}, s{sT + 8}, {WS_FL + F_O}
s_waitcnt vmcnt(0)
s_barrier
''')
for q in range(4):
    A(f'ds_read_b128 {vr(vS + 4 * q, 4)}, v{vT + 1} offset:{1024 * q}')
for q in (3, 0, 1, 2):
    pass
for q in range(4):
    A(f's_waitcnt lgkmcnt({3 - q})')
    A(f'v_pk_add_f32 {vr(vO + 4 * q, 2)}, {vr(vO + 4 * q, 2)}, {vr(vS + 4 * q, 2)}')
    A(f'v_pk_add_f32 {vr(vO + 4 * q + 2, 2)}, {vr(vO + 4 * q + 2, 2)}, {vr(vS + 4 * q + 2, 2)}')
A(f'v_add_f32_e64 v{vT}, abs(v{vO}), abs(v{vO + 1})')
A(f'v_add_f32_e64 v{vT + 1}, abs(v{vO + 2}), abs(v{vO + 3})')
for r in range(4, 16, 2):
    A(f'v_add_f32_e64 v{vT}, v{vT}, abs(v{vO + r})')
    A(f'v_add_f32_e64 v{vT + 1}, v{vT + 1}, abs(v{vO + r + 1})')
A(f'''
v_add_f32 v{vT}, v{vT}, v{vT + 1}
s_mov_b32 s{sT}, 0x7b800000
v_cmp_ngt_f32 vcc, s{sT}, v{vT}
s_cbranch_vccnz L_fallback
L_final:
v_rcp_f32 v{vT + 2}, v{vO + 12}
v_rcp_f32 v{vT + 4}, v{vO + 12}
v_permlane32_swap_b32 v{vT + 4}, v{vT + 2}
''')
for r in range(0, 16, 2):
    A(f'v_pk_mul_f32 {vr(vO + r, 2)}, {vr(vO + r, 2)}, {vr(vT + 2, 2)} op_sel_hi:[1,0]')
cvt8(vS, vO)
A(f'''
s_mov_b64 exec, {sr(sHi, 2)}
v_mov_b32 v{vS + 6}, 0
v_mov_b32 v{vS + 7}, 0
s_mov_b64 exec, -1
buffer_store_dwordx4 {vr(vS, 4)}, v{vOA}, {sr(sWS, 4)}, s{sT + 7} offen sc1
buffer_store_dwordx4 {vr(vS + 4, 4)}, v{vOA}, {sr(sWS, 4)}, s{sT + 7} offen offset:512 sc1
''')
stamp('o_stored')
wo_issue(sWOB, L_WOB, 0, 6, 6, sRT)
p3_addr(L_WOA)
A(f'''
s_mov_b64 exec, 1
s_waitcnt vmcnt(6)
buffer_store_dword v{vOne}, v{vL}, {sr(sWS, 4)}, s{sT + 8} offen sc1
s_mov_b64 exec, -1
''')
stamp('o_sig')
A(f'''
s_cmp_ge_u32 s{sJ}, 28
s_cbranch_scc1 L_fin
''')
wo_issue(sWOB, L_WOB, 24, 8, 8, sRT)
for hd in range(NPRE):
    wo_reads(hd)
A('''
s_waitcnt vmcnt(0)
s_barrier
''')
stamp('m2')
A(f'''
L_p3:
s_xor_b32 s{sT + 3}, s{sHH}, 1                 ; branch
s_lshr_b32 s{sT}, s{sRT}, 1
s_lshl_b32 s{sT + 1}, s{sRB64}, 1
s_add_u32 s{sT}, s{sT}, s{sT + 1}
s_and_b32 s{sT + 1}, s{sT}, 7
s_lshl_b32 s{sT + 2}, s{sT + 3}, 3
s_add_u32 s{sT + 1}, s{sT + 1}, s{sT + 2}
s_lshl_b32 s{sT + 1}, s{sT + 1}, 11
s_add_u32 s{sT + 1}, s{sT + 1}, s{sFG}
s_add_u32 s{sT + 1}, s{sT + 1}, {F_O}
s_lshl_b32 s{sT + 2}, s{sT + 3}, 6
s_add_u32 s{sT}, s{sT}, s{sT + 2}
s_lshl_b32 s{sT}, s{sT}, 15
s_and_b32 s{sT + 2}, s{sRT}, 1
s_lshl_b32 s{sT + 2}, s{sT + 2}, 10
s_add_u32 s{sT}, s{sT}, s{sT + 2}
s_add_u32 s{sT}, s{sT}, {WS_O}
s_mov_b64 exec, 0xffff
''')
spin('s3', sWS, f's{sT + 1}', vFl, vT)
A('s_mov_b64 exec, -1')
stamp('p3_flag')
for hd in range(16):
    A(f'buffer_load_dwordx4 {vr(vOf + 4 * hd, 4)}, v{vLin}, {sr(sWS, 4)}, s{sT} offen offset:{2048 * (hd & 1)} sc1')
    if hd & 1 and hd < 15:
        A(f's_add_u32 s{sT}, s{sT}, 4096')
vSt, vLd, vOut = vT + 1, vT + 2, vT + 3
A(f'''
s_mul_i32 s{sT}, s{sWv}, 2304
s_add_u32 s{sT}, s{sT}, {L_XCH}
v_and_b32 v{vT}, 15, v{vL}
v_mul_u32_u24 v{vSt}, 144, v{vT}
v_lshrrev_b32 v{vT}, 4, v{vL}
v_lshl_add_u32 v{vSt}, v{vT}, 3, v{vSt}
v_add_u32 v{vSt}, s{sT}, v{vSt}
v_lshrrev_b32 v{vT}, 3, v{vL}
v_and_b32 v{vT + 4}, 7, v{vL}
v_mul_u32_u24 v{vLd}, 144, v{vT}
v_lshl_add_u32 v{vLd}, v{vT + 4}, 4, v{vLd}
v_add_u32 v{vLd}, s{sT}, v{vLd}
v_mul_u32_u24 v{vOut}, 1792, v{vT}
v_lshl_add_u32 v{vOut}, v{vT + 4}, 4, v{vOut}
s_lshl_b32 s{sT}, s{sRB64}, 2
s_add_u32 s{sT}, s{sT}, s{sRT}
s_mul_i32 s{sT}, s{sT}, {16 * 1792}
s_mul_i32 s{sT + 1}, s{sT + 3}, 896
s_add_u32 s{sT}, s{sT}, s{sT + 1}
s_lshl_b32 s{sT + 1}, s{sCB}, 7
s_add_u32 s{sT}, s{sT}, s{sT + 1}
s_add_u32 s{sT + 1}, s{sT}, {8 * 1792}
''')
for hd in range(16):
    G = vWo + 16 * (hd % NPRE)
    A(f's_waitcnt vmcnt({15 - hd})' + (' lgkmcnt(0)' if hd in (0, NPRE) else ''))
    for ct in range(4):
        c = vr(vC + 4 * ct, 4) if hd else '0'
        A(f'v_mfma_f32_16x16x32_bf16 {vr(vC + 4 * ct, 4)}, {vr(G + 4 * ct, 4)}, {vr(vOf + 4 * hd, 4)}, {c}')
    if hd + NPRE < 16:
        wo_reads(hd + NPRE)
for ct in range(4):
    A(f'v_cvt_pk_bf16_f32 v{vOf + 2 * ct}, v{vC + 4 * ct}, v{vC + 4 * ct + 1}')
    A(f'v_cvt_pk_bf16_f32 v{vOf + 2 * ct + 1}, v{vC + 4 * ct + 2}, v{vC + 4 * ct + 3}')
    A(f'ds_write_b64 v{vSt}, {vr(vOf + 2 * ct, 2)} offset:{32 * ct}')
OUTFL = ['', 'sc1', 'nt', 'sc0 sc1'][OPT['outfl']]
A(f'''
s_waitcnt lgkmcnt(0)
ds_read_b128 {vr(vOf + 8, 4)}, v{vLd}
ds_read_b128 {vr(vOf + 12, 4)}, v{vLd} offset:{8 * 144}
s_waitcnt lgkmcnt(1)
buffer_store_dwordx4 {vr(vOf + 8, 4)}, v{vOut}, {sr(sOUT, 4)}, s{sT} offen {OUTFL}
s_waitcnt lgkmcnt(0)
buffer_store_dwordx4 {vr(vOf + 12, 4)}, v{vOut}, {sr(sOUT, 4)}, s{sT + 1} offen {OUTFL}
''')
stamp('p3_done')
A('L_fin:')
if OPT['stamps']:
    A('s_waitcnt vmcnt(0)')
    stamp('end')
    A(f'''
    s_lshl_b32 s{sT}, s2, 3
    s_add_u32 s{sT}, s{sT}, s{sWv}
    s_lshl_b32 s{sT}, s{sT}, 8
    s_add_u32 s{sT}, s{sT}, {WS_ST}
    v_lshlrev_b32 v{vT}, 2, v{vL}
    buffer_store_dword v255, v{vT}, {sr(sWS, 4)}, s{sT} offen
    ''')
A('s_endpgm')
A(f'''
L_fallback:
s_mov_b64 exec, {sr(sHi, 2)}
v_mov_b32 v{vQ + 6}, 0
v_mov_b32 v{vQ + 7}, 0
s_mov_b64 exec, -1
v_mov_b32 v{vT}, 0xff800000
s_lshl_b32 s{sT}, s{sH}, 18
s_add_u32 s{sT}, s{sT}, {WS_KV}
s_mov_b32 s{sT + 1}, 0
L_fb1:
buffer_load_dwordx4 {vr(vF, 4)}, v{vLin}, {sr(sWS, 4)}, s{sT} offen sc1
buffer_load_dwordx4 {vr(vF + 4, 4)}, v{vLin}, {sr(sWS, 4)}, s{sT} offen offset:1024 sc1
s_waitcnt vmcnt(0)
''')
qk(vS, vF, 0)
qk(vS, vF + 4, 1)
for r in range(0, 16, 2):
    A(f'v_max3_f32 v{vT}, v{vT}, v{vS + r}, v{vS + r + 1}')
A(f'''
s_add_u32 s{sT}, s{sT}, 4096
s_add_u32 s{sT + 1}, s{sT + 1}, 1
s_cmp_lt_u32 s{sT + 1}, 64
s_cbranch_scc1 L_fb1
v_mov_b32 v{vT + 1}, v{vT}
v_permlane32_swap_b32 v{vT}, v{vT + 1}
v_max_f32 v{vT}, v{vT}, v{vT + 1}
v_sub_f32 v{vT}, 0, v{vT}
''')
set_qpad(vT, vT + 1)
for r in range(16):
    A(f'v_mov_b32 v{vO + r}, 0')
A(f'''
s_lshl_b32 s{sT}, s{sH}, 18
s_add_u32 s{sT}, s{sT}, {WS_KV}
s_mov_b32 s{sT + 1}, 0
L_fb2:
''')
for q in range(4):
    A(f'buffer_load_dwordx4 {vr(vF + 4 * q, 4)}, v{vLin}, {sr(sWS, 4)}, s{sT} offen offset:{1024 * q} sc1')
A('s_waitcnt vmcnt(0)')
qk(vS, vF, 0)
qk(vS, vF + 4, 1)
for r in range(16):
    A(f'v_exp_f32 v{vPp + r}, v{vS + r}')
pv(vF + 8, 0)
pv(vF + 12, 1)
A(f'''
s_add_u32 s{sT}, s{sT}, 4096
s_add_u32 s{sT + 1}, s{sT + 1}, 1
s_cmp_lt_u32 s{sT + 1}, 64
s_cbranch_scc1 L_fb2
s_nop 11
s_branch L_final
L_end:
s_endpgm
''')

n = A.fix_hazards(verbose=bool(OPT.get('v')))
hdr = open('cdna_kernels/' + NAME + '.s.ref').read().split('; Override launch')[0]
out = hdr + f'''; One persistent launch, 256 workgroups (one per CU); generated by the author's own script.
; @launch grid=(256,1,1) block=(512,1,1) lds=163840
.amdgcn_target "amdgcn-amd-amdhsa--gfx950"
.text
.globl {NAME}_kernel
.p2align 8
.type {NAME}_kernel,@function
{NAME}_kernel:
''' + A.text() + f'''.fill 256, 4, 0xbf800000
.section .rodata,"a"
.p2align 6
.amdhsa_kernel {NAME}_kernel
  .amdhsa_next_free_vgpr 256
  .amdhsa_next_free_sgpr 100
  .amdhsa_accum_offset 256
  .amdhsa_group_segment_fixed_size 0
  .amdhsa_kernarg_size 80
  .amdhsa_user_sgpr_count 2
  .amdhsa_user_sgpr_kernarg_segment_ptr 1
  .amdhsa_system_sgpr_workgroup_id_x 1
.end_amdhsa_kernel
'''
open(sys.argv[1], 'w').write(out)
if OPT['stamps']:
    open(sys.argv[1] + '.stamps', 'w').write('\n'.join(STAMPS))
print('lines', len(A.lines), 'nops inserted', n)
```

```python
import sys, math, struct
from asmlib import Asm, vr, sr

NAME = 'concat_heads__softmax_full_mha__linear_kernel_hedgehog__prompt'
OPT = dict(rot=0, stamps=0, force_fb=0, spin=1 << 16, moff=24, outfl=1, rd=3, prio=0, mix=1, fine=0)
PROBE = None
for a in sys.argv[2:]:
    k, v = a.split('=')
    if k == 'probe':
        PROBE = v
    else:
        OPT[k] = int(v, 0)


def f32(x):
    return '0x%08x' % struct.unpack('<I', struct.pack('<f', x))[0]


LOG2E = 1.4426950408889634
QSCALE = LOG2E / math.sqrt(28.0)

WS_QA, WS_KV, WS_QB, WS_KVP, WS_O, WS_FL, WS_KVF, WS_ST, WS_END = (
    0, 0x200000, 0x600000, 0x800000, 0xA00000, 0xE00000, 0xE80000, 0xF00000, 0x1000000)
FGRP = 384 * 128
F_A, F_B, F_K, F_O = 0, 48 * 128, 64 * 128, 96 * 128
sX, sW, sWS, sDBG, sPHI, sWOA, sOUT, sWOB = 24, 28, 32, 36, 40, 44, 48, 96
sWv, sXc, sJ, sB, sRB1, sCG, sH, sRB = 52, 53, 54, 55, 56, 57, 58, 59
sT = 60
sC, sSlot, sKC, sXbase, sWbase, sXo, sWo = 70, 71, 73, 74, 75, 76, 77
sFG = 72
sL = 78
sRT, sHH = 80, 81
sSpin = 82
sCB = 83
sKVo = 84
sRB64 = 85
sHi = 86
sOnesM = 88
sStamp = 90
sM0 = 92
sRH, sH1, sJI = 93, 3, 100
vL, vLin, vH = 1, 2, 3
vT = 4
vFl, vOne = 12, 13
SLOT = 40960
K = 1024
L_Q, L_PHI, L_V, L_WPHI, L_RELAY = 96 * K, 104 * K, 136 * K, 152 * K, 158 * K
L_WOA, L_WOB, L_XCH = 64 * K, 0, 128 * K

A = Asm()
STAMPS = []


def stamp(name):
    if PROBE == name:
        A('s_memrealtime s[90:91]')
        A('s_waitcnt lgkmcnt(0)')
    if not OPT['stamps']:
        return
    if name not in STAMPS:
        STAMPS.append(name)
    i = STAMPS.index(name)
    A(f'''
    s_memrealtime s[{sStamp}:{sStamp + 1}]
    s_memtime s[94:95]
    s_waitcnt lgkmcnt(0)
    v_writelane_b32 v255, s{sStamp}, {i}
    v_writelane_b32 v255, s94, {i + 32}
    ''')


def spin(tag, srd_, addr, vaddr, vdst, preloaded=False):
    A(f's_mov_b32 s{sSpin}, {OPT["spin"]}')
    if preloaded:
        A(f's_branch L_chk_{tag}')
    A(f'''
    L_poll_{tag}:
    buffer_load_dword v{vdst}, v{vaddr}, {sr(srd_, 4)}, {addr} offen sc1
    s_sub_u32 s{sSpin}, s{sSpin}, 1
    s_waitcnt vmcnt(0)
    s_cmp_eq_u32 s{sSpin}, 0
    s_cbranch_scc1 L_pollx_{tag}
    L_chk_{tag}:
    v_cmp_ne_u32 vcc, 1, v{vdst}
    s_cbranch_vccnz L_poll_{tag}
    L_pollx_{tag}:
    ''')


def srd(d, base, nbytes):
    A(f'''
    s_mov_b32 s{d}, s{base}
    s_mov_b32 s{d + 1}, s{base + 1}
    s_mov_b32 s{d + 2}, {nbytes}
    s_mov_b32 s{d + 3}, 0x20000
    ''')


def cvt8(dst, src):
    for i in range(8):
        A(f'v_cvt_pk_bf16_f32 v{dst + i}, v{src + 2 * i}, v{src + 2 * i + 1}')


def features(tiles):
    A(f's_mov_b64 exec, {sr(sHi, 2)}')
    for X, Ep, En, t in tiles:
        for r in range(12, 16):
            A(f'v_mov_b32 v{X + r}, v{X + 11}')
    A('s_mov_b64 exec, -1')
    for X, Ep, En, t in tiles:
        A(f'v_max3_f32 v{t}, v{X}, v{X + 1}, v{X + 2}')
        A(f'v_max3_f32 v{t + 2}, -v{X}, -v{X + 1}, -v{X + 2}')
    for r in range(3, 15, 2):
        for X, Ep, En, t in tiles:
            A(f'v_max3_f32 v{t}, v{t}, v{X + r}, v{X + r + 1}')
            A(f'v_max3_f32 v{t + 2}, v{t + 2}, -v{X + r}, -v{X + r + 1}')
    for X, Ep, En, t in tiles:
        A(f'v_max_f32 v{t}, v{t}, v{X + 15}')
        A(f'v_max_f32_e64 v{t + 2}, v{t + 2}, -v{X + 15}')
    for X, Ep, En, t in tiles:
        A(f'v_permlane32_swap_b32 v{t}, v{t + 2}')
    for X, Ep, En, t in tiles:
        A(f'v_max_f32 v{t}, v{t}, v{t + 2}')
    for X, Ep, En, t in tiles:
        A(f'v_mul_f32_e64 v{t + 2}, -v{t}, s{sL}')
        A(f'v_mul_f32_e64 v{t}, -v{t}, s{sL}')
    for X, Ep, En, t in tiles:
        A(f'v_permlane32_swap_b32 v{t}, v{t + 2}')
    for X, Ep, En, t in tiles:
        for r in range(0, 16, 2):
            A(f'v_pk_fma_f32 {vr(Ep + r, 2)}, {vr(X + r, 2)}, {sr(sL, 2)}, {vr(t, 2)} op_sel_hi:[1,1,0]')
            A(f'v_pk_fma_f32 {vr(En + r, 2)}, {vr(X + r, 2)}, {sr(sL, 2)}, {vr(t + 2, 2)} op_sel_hi:[1,1,0] neg_lo:[1,0,0] neg_hi:[1,0,0]')
    for X, Ep, En, t in tiles:
        for r in range(16):
            A(f'v_exp_f32 v{Ep + r}, v{Ep + r}')
        for r in range(16):
            A(f'v_exp_f32 v{En + r}, v{En + r}')
    A(f's_mov_b64 exec, {sr(sHi, 2)}')
    for X, Ep, En, t in tiles:
        for r in range(12, 16):
            A(f'v_mov_b32 v{Ep + r}, 0')
            A(f'v_mov_b32 v{En + r}, 0')
    A('s_mov_b64 exec, -1')


def wphi_addr(d, t):
    A(f'''
    v_bfe_u32 v{t}, v{vL}, 2, 2
    v_lshl_add_u32 v{t}, v{vH}, 2, v{t}
    v_mul_u32_u24 v{d}, 56, v{t}
    v_bfe_u32 v{t}, v{vL}, 4, 1
    v_lshl_add_u32 v{d}, v{t}, 5, v{d}
    v_and_b32 v{t}, 3, v{vL}
    v_lshl_add_u32 v{d}, v{t}, 3, v{d}
    ''')


def common_setup():
    srd(sWS, 22, WS_END)
    srd(sDBG, 20, 256)
    srd(sPHI, 14, 16 * 1568)
    srd(sOUT, 18, 2048 * 1792)
    srd(sWOA, 8, 448 * 896)
    srd(sWOB, 16, 448 * 896)
    A(f'''
    s_mov_b32 s{sL}, {f32(LOG2E)}
    s_mov_b32 s{sL + 1}, {f32(LOG2E)}
    s_mov_b32 s{sHi}, 0
    s_mov_b32 s{sHi + 1}, -1
    s_mov_b32 s{sOnesM}, 0x10000000
    s_mov_b32 s{sOnesM + 1}, 0x10000000
    s_lshr_b32 s{sH}, s{sJ}, 4
    s_lshl_b32 s{sT}, s{sXc}, 1
    s_add_u32 s{sH}, s{sH}, s{sT}
    s_and_b32 s{sRB}, s{sJ}, 15
    s_and_b32 s{sRT}, s{sWv}, 3
    s_lshr_b32 s{sHH}, s{sWv}, 2
    s_mul_i32 s{sFG}, s{sXc}, {FGRP}
    s_add_u32 s{sFG}, s{sFG}, {WS_FL}
    s_mul_i32 s{sT}, s{sJ}, 37
    s_lshr_b32 s{sT}, s{sT}, 8
    s_mul_i32 s{sT + 1}, s{sT}, 7
    s_sub_u32 s{sCB}, s{sJ}, s{sT + 1}
    s_lshl_b32 s{sRB64}, s{sXc}, 2
    s_add_u32 s{sRB64}, s{sRB64}, s{sT}
    s_lshl_b32 s{sT}, s{sH}, 6
    s_lshl_b32 s{sT + 1}, s{sHH}, 5
    s_add_u32 s{sT + 1}, s{sT + 1}, s{sRT}
    s_add_u32 s{sT + 1}, s{sT + 1}, s{sT}
    s_lshl_b32 s{sKVo}, s{sT + 1}, 12
    s_add_u32 s{sKVo}, s{sKVo}, {WS_KV}
    v_lshlrev_b32 v{vLin}, 4, v{vL}
    v_lshrrev_b32 v{vH}, 5, v{vL}
    v_lshlrev_b32 v{vFl}, 7, v{vL}
    v_mov_b32 v{vOne}, 1
    ''')


A(f'''
s_cmp_ge_u32 s2, 256
s_cbranch_scc1 L_end
s_load_dwordx16 s[4:19], s[0:1], 0
s_load_dwordx4 s[20:23], s[0:1], 64
''')
if OPT['stamps']:
    A('v_mov_b32 v255, 0')
if PROBE:
    A('s_memrealtime s[90:91]')
stamp('start')
A(f'''
v_lshrrev_b32 v{vT}, 6, v0
v_and_b32 v{vL}, 63, v0
v_readfirstlane_b32 s{sWv}, v{vT}
s_and_b32 s{sXc}, s2, 7
s_lshr_b32 s{sJ}, s2, 3
''')
if OPT['mix']:
    A(f'''
    s_lshr_b32 s{sB}, s{sJ}, 4
    s_and_b32 s{sT}, s{sXc}, 6
    s_lshl_b32 s{sT}, s{sT}, 1
    s_and_b32 s{sRB1}, s{sJ}, 3
    s_add_u32 s{sRB1}, s{sRB1}, s{sT}
    s_and_b32 s{sT}, s{sXc}, 1
    s_lshl_b32 s{sT}, s{sT}, 2
    s_bfe_u32 s{sCG}, s{sJ}, 0x20002
    s_add_u32 s{sCG}, s{sCG}, s{sT}
    ''')
else:
    A(f'''
s_lshr_b32 s{sB}, s{sXc}, 2
s_and_b32 s{sT}, s{sXc}, 2
s_lshl_b32 s{sT}, s{sT}, 2
s_and_b32 s{sRB1}, s{sJ}, 7
s_add_u32 s{sRB1}, s{sRB1}, s{sT}
s_and_b32 s{sT}, s{sXc}, 1
s_lshl_b32 s{sT}, s{sT}, 2
s_lshr_b32 s{sCG}, s{sJ}, 3
s_add_u32 s{sCG}, s{sCG}, s{sT}
''')
A(f'''
s_bitcmp1_b32 s{sXc}, 0
s_cselect_b32 s{sJI}, 7, 4
s_lshr_b32 s{sT}, s{sJ}, 2
s_xor_b32 s{sJI}, s{sJI}, s{sT}
s_cmp_lt_u32 s{sWv}, 4
s_cbranch_scc1 L_comp
''')
vXg0, vXg1, vWg = 16, 17, 18
A(f'''
s_setprio 3
s_and_b32 s{sRT}, s{sWv}, 3
s_mul_i32 s{sXbase}, s{sRB1}, {128 * 896}
s_cmp_eq_u32 s{sB}, 0
s_cselect_b32 s{sT}, 3, 1
s_cselect_b32 s{sT + 1}, 1, 8
s_mul_i32 s{sT}, s{sT}, 112
s_mul_i32 s{sT + 1}, s{sT + 1}, 112
s_mul_i32 s{sWbase}, s{sCG}, s{sT}
s_mul_i32 s{sT + 2}, s{sRT}, {32 * 896}
s_add_u32 s{sXbase}, s{sXbase}, s{sT + 2}
s_mul_i32 s{sT + 2}, s{sRT}, {16 * 2688}
s_add_u32 s{sWbase}, s{sWbase}, s{sT + 2}
v_lshrrev_b32 v{vT}, 3, v{vL}
v_mul_u32_u24 v{vT + 1}, 896, v{vT}
v_lshrrev_b32 v{vT + 2}, 4, v{vL}
v_and_b32 v{vT + 3}, 7, v{vL}
v_xor_b32 v{vT + 2}, v{vT + 2}, v{vT + 3}
v_lshl_add_u32 v{vXg0}, v{vT + 2}, 4, v{vT + 1}
v_xor_b32 v{vXg1}, 64, v{vXg0}
v_add_u32 v{vXg1}, {8 * 896 - 1024}, v{vXg1}
v_and_b32 v{vT + 5}, 7, v{vL}
''')
for i in range(3):
    A(f'''
    v_add_u32 v{vT + 1}, {8 * i}, v{vT}
    v_mul_u32_u24 v{vT + 2}, 11, v{vT + 1}
    v_lshrrev_b32 v{vT + 2}, 5, v{vT + 2}
    v_mul_u32_u24 v{vT + 3}, 3, v{vT + 2}
    v_sub_u32 v{vT + 1}, v{vT + 1}, v{vT + 3}
    v_mul_u32_u24 v{vT + 1}, s{sT + 1}, v{vT + 1}
    v_and_b32 v{vT + 3}, 2, v{vT + 2}
    v_lshlrev_b32 v{vT + 3}, 1, v{vT + 3}
    v_xor_b32 v{vT + 3}, v{vT + 3}, v{vT + 5}
    v_lshl_add_u32 v{vT + 1}, v{vT + 3}, 4, v{vT + 1}
    v_add_u32 v{vT + 3}, 1, v{vT + 3}
    v_and_b32 v{vT + 3}, 8, v{vT + 3}
    v_lshl_add_u32 v{vT + 1}, v{vT + 3}, 27, v{vT + 1}
    v_mul_u32_u24 v{vT + 2}, 2688, v{vT + 2}
    ''')
    if i:
        A(f'v_subrev_u32 v{vT + 2}, {1024 * i}, v{vT + 2}')
    A(f'v_add_u32 v{vWg + i}, v{vT + 2}, v{vT + 1}')
if OPT['rot']:
    A(f'''
    s_mul_i32 s{sKC}, s{sCG}, {OPT['rot']}
    s_add_u32 s{sKC}, s{sKC}, s{sRB1}
    s_mul_i32 s{sT + 2}, s{sKC}, 37
    s_lshr_b32 s{sT + 2}, s{sT + 2}, 8
    s_mul_i32 s{sT + 2}, s{sT + 2}, 7
    s_sub_u32 s{sKC}, s{sKC}, s{sT + 2}
    ''')
else:
    A(f's_mov_b32 s{sKC}, 0')
A(f'''
s_lshl_b32 s{sT + 4}, s{sRT}, 12
s_mul_i32 s{sT + 5}, s{sRT}, 6144
s_add_u32 s{sT + 5}, s{sT + 5}, 16384
s_mov_b32 s{sSlot}, 0
s_mov_b32 s{sC}, 0
s_mov_b32 s{sX + 2}, {2048 * 896}
s_mov_b32 s{sX + 3}, 0x20000
s_mov_b32 s{sW + 2}, {448 * 2688}
s_mov_b32 s{sW + 3}, 0x20000
s_waitcnt lgkmcnt(0)
s_cmp_eq_u32 s{sB}, 0
s_cselect_b32 s{sX}, s4, s10
s_cselect_b32 s{sX + 1}, s5, s11
s_cselect_b32 s{sW}, s6, s12
s_cselect_b32 s{sW + 1}, s7, s13
s_cmp_eq_u32 s{sJI}, 0
s_cbranch_scc1 L_zero
L_ld:
s_lshl_b32 s{sXo}, s{sKC}, 7
s_add_u32 s{sXo}, s{sXo}, s{sXbase}
s_add_u32 m0, s{sSlot}, s{sT + 4}
s_add_u32 s{sT + 6}, s{sXo}, {16 * 896 - 2048}
buffer_load_dwordx4 v{vXg0}, {sr(sX, 4)}, s{sXo} offen lds
buffer_load_dwordx4 v{vXg1}, {sr(sX, 4)}, s{sXo} offen offset:1024 lds
buffer_load_dwordx4 v{vXg0}, {sr(sX, 4)}, s{sT + 6} offen offset:2048 lds
buffer_load_dwordx4 v{vXg1}, {sr(sX, 4)}, s{sT + 6} offen offset:3072 lds
s_mul_i32 s{sWo}, s{sKC}, {64 * 2688}
s_add_u32 m0, s{sSlot}, s{sT + 5}
s_add_u32 s{sWo}, s{sWo}, s{sWbase}
buffer_load_dwordx4 v{vWg}, {sr(sW, 4)}, s{sWo} offen lds
buffer_load_dwordx4 v{vWg + 1}, {sr(sW, 4)}, s{sWo} offen offset:1024 lds
buffer_load_dwordx4 v{vWg + 2}, {sr(sW, 4)}, s{sWo} offen offset:2048 lds
s_add_u32 m0, m0, 3072
s_add_u32 s{sWo}, s{sWo}, {8 * 2688}
s_cmp_eq_u32 s{sC}, 0
s_cbranch_scc1 L_ldb
s_waitcnt vmcnt(7)
s_barrier
L_ldb:
buffer_load_dwordx4 v{vWg}, {sr(sW, 4)}, s{sWo} offen lds
buffer_load_dwordx4 v{vWg + 1}, {sr(sW, 4)}, s{sWo} offen offset:1024 lds
buffer_load_dwordx4 v{vWg + 2}, {sr(sW, 4)}, s{sWo} offen offset:2048 lds
s_add_u32 s{sKC}, s{sKC}, 1
s_cmp_eq_u32 s{sKC}, 7
s_cselect_b32 s{sKC}, 0, s{sKC}
s_add_u32 s{sSlot}, s{sSlot}, {SLOT}
s_cmp_eq_u32 s{sSlot}, {3 * SLOT}
s_cselect_b32 s{sSlot}, 0, s{sSlot}
s_add_u32 s{sC}, s{sC}, 1
s_cmp_lt_u32 s{sC}, 7
s_cbranch_scc1 L_ld
s_branch L_ld1
L_zero:
s_mov_b32 s{sWS}, s22
s_mov_b32 s{sWS + 1}, s23
s_mov_b32 s{sWS + 2}, {WS_END}
s_mov_b32 s{sWS + 3}, 0x20000
s_mul_i32 s{sT}, s{sXc}, {FGRP}
s_and_b32 s{sT + 1}, s{sJ}, 3
s_lshl_b32 s{sT + 1}, s{sT + 1}, 2
s_add_u32 s{sT + 1}, s{sT + 1}, s{sRT}
s_mul_i32 s{sT + 1}, s{sT + 1}, 3072
s_add_u32 s{sT}, s{sT}, s{sT + 1}
s_add_u32 s{sT}, s{sT}, {WS_FL}
v_lshlrev_b32 v{vLin}, 4, v{vL}
v_mov_b32 v{vT}, 0
v_mov_b32 v{vT + 1}, 0
v_mov_b32 v{vT + 2}, 0
v_mov_b32 v{vT + 3}, 0
buffer_store_dwordx4 {vr(vT, 4)}, v{vLin}, {sr(sWS, 4)}, s{sT} offen sc1
buffer_store_dwordx4 {vr(vT, 4)}, v{vLin}, {sr(sWS, 4)}, s{sT} offen offset:1024 sc1
buffer_store_dwordx4 {vr(vT, 4)}, v{vLin}, {sr(sWS, 4)}, s{sT} offen offset:2048 sc1
s_branch L_ld
L_ld1:
''')
common_setup()
A(f'''
s_cmp_eq_u32 s{sWv}, 4
s_cbranch_scc0 L_ld2
v_lshlrev_b32 v{vT + 1}, 2, v{vL}
s_mov_b32 exec_hi, 0
''')
spin('init', sDBG, '0', vT + 1, vT)
A(f'''
s_mov_b64 exec, -1
L_ld2:
s_waitcnt vmcnt(0)
s_barrier
s_barrier
s_cmp_eq_u32 s{sB}, 0
s_cbranch_scc0 L_ld3
s_barrier
L_ld3:
v_mov_b32 v{vT + 1}, {L_RELAY}
s_cmp_eq_u32 s{sWv}, 4
s_cbranch_scc0 L_relay
s_lshl_b32 s{sT + 1}, 1, s{sRB}
s_or_b32 exec_lo, s{sT + 1}, 0xffff0000
s_mov_b32 exec_hi, 0xffff
''')
spin('s1', sWS, f's{sFG}', vFl, vT)
A(f'''
s_mov_b64 exec, -1
ds_write_b32 v{vT + 1}, v{vOne}
s_branch L_go
L_relay:
s_mov_b32 s{sSpin}, {OPT['spin'] * 16}
L_relay1:
ds_read_b32 v{vT}, v{vT + 1}
s_sub_u32 s{sSpin}, s{sSpin}, 1
s_waitcnt lgkmcnt(0)
s_cmp_eq_u32 s{sSpin}, 0
s_cbranch_scc1 L_go
v_cmp_ne_u32 vcc, 1, v{vT}
s_cbranch_vccnz L_relay1
L_go:
''')
stamp('s1_seen')
A(f'''
s_lshl_b32 s{sT}, s{sH}, 6
s_lshl_b32 s{sT + 1}, s{sRB}, 2
s_add_u32 s{sT + 1}, s{sT + 1}, s{sRT}
s_add_u32 s{sT + 1}, s{sT + 1}, s{sT}
s_lshl_b32 s{sT + 1}, s{sT + 1}, 11
s_lshl_b32 s{sT}, s{sRT}, 11
s_add_u32 m0, s{sT}, {L_Q}
s_lshl_b32 s{sM0}, s{sRT}, 12
buffer_load_dwordx4 v{vLin}, {sr(sWS, 4)}, s{sT + 1} offen sc1 lds
buffer_load_dwordx4 v{vLin}, {sr(sWS, 4)}, s{sT + 1} offen offset:1024 sc1 lds
''')
for c in range(2):
    for kh in range(2):
        A(f's_add_u32 m0, s{sM0}, {c * 32768 + kh * 16384}')
        A(f's_add_u32 s{sT + 2}, s{sKVo}, {(c * 16384 + (kh - 1) * 131072) & 0xffffffff}')
        for q in range(4):
            A(f'buffer_load_dwordx4 v{vLin}, {sr(sWS, 4)}, s{sT + 2} offen offset:{1024 * q} sc1 lds')
A(f'''
s_setprio 0
s_waitcnt vmcnt(8)
s_barrier
s_cmp_eq_u32 s{sB}, 0
s_cbranch_scc1 L_att
''')
vKa, vKb, vKc = 128, 160, 192
A(f'''
v_bfe_u32 v{vT}, v{vL}, 2, 2
v_lshl_add_u32 v{vT + 1}, v{vH}, 2, v{vT}      ; 4h + r
v_lshrrev_b32 v{vT + 2}, 1, v{vT + 1}          ; 2h + (r>>1)
v_bfe_u32 v{vT + 3}, v{vL}, 4, 1
v_and_b32 v{vT}, 2, v{vL}
v_or_b32 v{vT + 3}, v{vT + 3}, v{vT}           ; 2*a1 + a2
v_xor_b32 v{vT + 2}, v{vT + 2}, v{vT + 3}
v_lshlrev_b32 v{vT + 2}, 4, v{vT + 2}
v_lshl_add_u32 v{vT + 1}, v{vT + 1}, 6, v{vT + 2}
v_and_b32 v{vT}, 1, v{vL}
v_lshl_add_u32 v{vT + 1}, v{vT}, 3, v{vT + 1}
s_lshl_b32 s{sT}, s{sRT}, 13
s_add_u32 s{sT}, s{sT}, {L_PHI}
v_add_u32 v{vT + 1}, s{sT}, v{vT + 1}
s_lshr_b32 s{sT + 2}, s{sRT}, 1
s_lshl_b32 s{sT}, s{sT + 2}, 13
s_add_u32 s{sT}, s{sT}, {L_V}
v_add_u32 v{vT + 2}, s{sT}, v{vLin}
''')


def kv_reads(st):
    A(f'ds_read_b64_tr_b16 {vr(vKa + 4 * st, 2)}, v{vT + 1} offset:{(16 * st) * 64}')
    A(f'ds_read_b64_tr_b16 {vr(vKa + 4 * st + 2, 2)}, v{vT + 1} offset:{(16 * st + 8) * 64}')
    A(f'ds_read_b128 {vr(vKb + 4 * st, 4)}, v{vT + 2} offset:{st * 1024}')


for st in range(4):
    kv_reads(st)
for st in range(8):
    A(f's_waitcnt lgkmcnt({min(9, 3 * (7 - st))})')
    A(f'v_mfma_f32_32x32x16_bf16 {vr(vKc, 16)}, {vr(vKa + 4 * st, 4)}, {vr(vKb + 4 * st, 4)}, {vr(vKc, 16) if st else 0}')
    if st + 4 < 8:
        kv_reads(st + 4)
A(f'''
s_lshl_b32 s{sT}, s{sCG}, 1
s_add_u32 s{sT}, s{sT}, s{sT + 2}
s_lshl_b32 s{sT}, s{sT}, 4
s_add_u32 s{sT}, s{sT}, s{sRB1}
s_lshl_b32 s{sT}, s{sT}, 1
s_and_b32 s{sT + 1}, s{sRT}, 1
s_add_u32 s{sT}, s{sT}, s{sT + 1}
s_lshl_b32 s{sT}, s{sT}, 12
s_add_u32 s{sT}, s{sT}, {WS_KVP}
''')
for q in range(4):
    A(f'buffer_store_dwordx4 {vr(vKc + 4 * q, 4)}, v{vLin}, {sr(sWS, 4)}, s{sT} offen offset:{1024 * q} sc1')
A('s_branch L_att')

vXl, vWl = 16, 20
vFA, vFB = 24, 44
vAcc = 64
A(f'''
L_comp:
s_and_b32 s{sRH}, s{sWv}, 1
s_lshr_b32 s{sH1}, s{sWv}, 1
s_waitcnt lgkmcnt(0)
''')
common_setup()
A(f'''
s_cmp_eq_u32 s{sB}, 0
s_cbranch_scc1 L_nophi
s_lshl_b32 s{sT}, s{sWv}, 10
s_add_u32 m0, s{sT}, {L_WPHI}
s_mul_i32 s{sT + 1}, s{sCG}, 3136
s_add_u32 s{sT}, s{sT}, s{sT + 1}
buffer_load_dwordx4 v{vLin}, {sr(sPHI, 4)}, s{sT} offen lds
L_nophi:
s_cmp_eq_u32 s{sWv}, 1
s_cbranch_scc0 L_nopf
s_getpc_b64 s[{sT}:{sT + 1}]
L_pc:
s_sub_u32 s{sT}, s{sT}, L_pc-L_ld
s_subb_u32 s{sT + 1}, s{sT + 1}, 0
s_lshl_b32 s{sT + 2}, s{sJ}, 10
s_cmp_lt_u32 s{sT + 2}, L_end-L_ld
s_cbranch_scc0 L_nopf
s_add_u32 s{sT}, s{sT}, s{sT + 2}
s_addc_u32 s{sT + 1}, s{sT + 1}, 0
global_load_dword v14, v{vLin}, s[{sT}:{sT + 1}]
L_nopf:
s_cmp_eq_u32 s{sWv}, 0
s_cbranch_scc0 L_noinit
v_mov_b32 v{vT}, 0
v_mov_b32 v{vT + 1}, {L_RELAY}
ds_write_b32 v{vT + 1}, v{vT}
ds_write_b32 v{vT + 1}, v{vT} offset:4
''')
A(f'''
L_noinit:
v_and_b32 v{vT}, 31, v{vL}
v_bfe_u32 v{vT + 1}, v{vL}, 1, 3
v_xor_b32 v{vT + 1}, v{vT + 1}, v{vH}
v_lshlrev_b32 v{vT + 1}, 4, v{vT + 1}
s_lshl_b32 s{sT}, s{sRH}, 6
v_add_u32 v{vT}, s{sT}, v{vT}
v_lshl_add_u32 v{vXl}, v{vT}, 7, v{vT + 1}
v_xor_b32 v{vXl + 1}, 32, v{vXl}
v_xor_b32 v{vXl + 2}, 64, v{vXl}
v_xor_b32 v{vXl + 3}, 0x60, v{vXl}
v_bfe_u32 v{vT}, v{vL}, 2, 2
v_lshl_add_u32 v{vT + 1}, v{vH}, 3, v{vT}
v_mul_u32_u24 v{vT + 1}, 384, v{vT + 1}
v_lshrrev_b32 v{vT}, 1, v{vT}
v_bfe_u32 v{vT + 2}, v{vL}, 4, 1
v_and_b32 v{vT + 3}, 3, v{vL}
v_lshl_add_u32 v{vT + 2}, v{vT + 2}, 2, v{vT + 3}
v_add_u32 v{vT + 5}, 1, v{vT + 2}
v_and_b32 v{vT + 5}, 8, v{vT + 5}
v_lshlrev_b32 v{vT}, 3, v{vT}
''')
for i in range(3):
    A(f'''
    s_mul_i32 s{sT}, s{sH1}, 3
    s_add_u32 s{sT}, s{sT}, {i}
    s_add_u32 s{sT + 1}, s{sH1}, {2 * i}
    s_cmp_eq_u32 s{sB}, 0
    s_cselect_b32 s{sT}, s{sT}, s{sT + 1}
    s_and_b32 s{sT + 1}, s{sT}, 1
    s_lshr_b32 s{sT}, s{sT}, 1
    s_lshl_b32 s{sT}, s{sT}, 7
    s_add_u32 s{sT}, s{sT}, 16384
    s_xor_b32 s{sT + 2}, s{sT + 1}, 1
    s_mul_i32 s{sT + 1}, s{sT + 1}, 7
    v_mad_u32_u24 v{vT + 3}, v{vT + 5}, s{sT + 2}, v{vT + 2}
    v_add_u32 v{vT + 3}, s{sT + 1}, v{vT + 3}
    v_xor_b32 v{vT + 3}, v{vT + 3}, v{vT}
    v_lshl_add_u32 v{vT + 3}, v{vT + 3}, 3, v{vT + 1}
    v_add_u32 v{vWl + i}, s{sT}, v{vT + 3}
    ''')
A(f'''
s_lshl_b32 s{sT + 8}, s{sCG}, 1
s_add_u32 s{sT + 8}, s{sT + 8}, s{sH1}
''')
for i in range(3):
    A(f'''
    s_mul_i32 s{sT}, s{sT + 8}, 3
    s_add_u32 s{sT}, s{sT}, {i}
    s_lshr_b32 s{sT}, s{sT}, 4
    s_cmp_eq_u32 s{sB}, 0
    s_cselect_b32 s{sT}, s{sT}, {i & 2}
    v_mov_b32 v{vT}, 0
    s_cmp_eq_u32 s{sT}, 2
    s_cselect_b64 exec, {sr(sOnesM, 2)}, 0
    v_mov_b32 v{vT}, 1.0
    s_mov_b64 exec, -1
    v_mov_b32 v{vT + 1}, v{vT}
    s_cmp_eq_u32 s{sT}, 1
    s_cselect_b64 exec, {sr(sHi, 2)}, 0
    v_mov_b32 v{vT + 1}, 1.0
    s_mov_b64 exec, -1
    ''')
    for r in range(32):
        A(f'v_mov_b32 v{vAcc + 32 * i + r}, v{vT + 1 if (r & 15) in (12, 13, 14) else vT}')


def p1_read_list(s, F):
    r = [f'ds_read_b128 {vr(F, 4)}, v{vXl + s}']
    for i in range(3):
        for u in range(2):
            r.append(f'ds_read_b64_tr_b16 {vr(F + 8 + 4 * i + 2 * u, 2)}, v{vWl + i} offset:{(16 * s + 4 * u) * 384}')
        if i == 0:
            r.append(f'ds_read_b128 {vr(F + 4, 4)}, v{vXl + s} offset:4096')
    return r


def p1_step(F, var, reads, extra=()):
    reads = list(reads)
    extra = list(extra)
    n = 0
    for i in range(3):
        for a in range(2):
            w, x, acc = vr(F + 8 + 4 * i, 4), vr(F + 4 * a, 4), vr(vAcc + 32 * i + 16 * a, 16)
            p, q = (w, x) if var[i] == 'T' else (x, w)
            A(f'v_mfma_f32_32x32x16_bf16 {acc}, {p}, {q}, {acc}')
            if n < 3:
                for r in reads[3 * n:3 * n + 3]:
                    A(r)
            else:
                for r in extra[4 * (n - 3):4 * (n - 3) + 4]:
                    A(r)
            n += 1


A(f'''
s_mov_b32 s{sC}, 0
s_mov_b32 s{sSlot}, 0
s_cmp_eq_u32 s{sB}, 0
s_cselect_b32 s{sT}, s{sT + 8}, 10
s_waitcnt lgkmcnt(0)
s_barrier
''')
stamp('p1_first')
for r in p1_read_list(0, vFA):
    A(r)
A(f'''
s_or_b32 s{sT + 1}, s{sJI}, s{sWv}
s_cbranch_scc1 L_nosig0
s_and_b32 s{sT + 1}, s2, 31
s_lshl_b32 s{sT + 1}, s{sT + 1}, 2
s_mov_b64 exec, 1
buffer_store_dword v{vOne}, v{vL}, {sr(sDBG, 4)}, s{sT + 1} offen sc1
s_mov_b64 exec, -1
L_nosig0:
s_cmp_eq_u32 s{sT}, 10
s_cbranch_scc1 L_p1_TTN
s_cmp_gt_u32 s{sT}, 10
s_cbranch_scc1 L_p1_NNN
''')
for var in ('TTT', 'TTN', 'NNN'):
    A('.p2align 3')
    A(f'L_p1_{var}:')
    A('s_waitcnt lgkmcnt(0)')
    A(f's_add_u32 s{sC}, s{sC}, 1')
    p1_step(vFA, var, p1_read_list(1, vFB),
            [f's_add_u32 s{sSlot}, s{sSlot}, 1', f's_cmp_eq_u32 s{sSlot}, 3', f's_cselect_b32 s{sSlot}, 0, s{sSlot}',
             f's_cselect_b32 s{sT}, -2, 1', f's_mul_i32 s{sT}, s{sT}, {SLOT}'])
    A('s_waitcnt lgkmcnt(0)')
    A('s_nop 0')
    p1_step(vFB, var, p1_read_list(2, vFA))
    A('s_waitcnt lgkmcnt(0)')
    A('s_nop 0')
    p1_step(vFA, var, p1_read_list(3, vFB), [f'v_add_u32 v{vXl + i}, s{sT}, v{vXl + i}' for i in range(7)] + ['s_nop 0'])
    A('s_waitcnt lgkmcnt(0)')
    A('s_barrier')
    p1_step(vFB, var, p1_read_list(0, vFA))
    A(f's_cmp_eq_u32 s{sC}, 4')
    A(f's_cbranch_scc1 L_p1h_{var}')
    A(f's_cmp_lt_u32 s{sC}, 7')
    A(f's_cbranch_scc1 L_p1_{var}')
    A('s_branch L_p1_done')
    A(f'''
    L_p1h_{var}:
    s_waitcnt vmcnt(0)
    s_branch L_p1_{var}
    ''')
A('L_p1_done:')
stamp('p1_done')
A(f'''
s_lshl_b32 s{sT + 4}, s{sRB1}, 1
s_add_u32 s{sT + 4}, s{sT + 4}, s{sRH}
s_lshl_b32 s{sT + 4}, s{sT + 4}, 1
s_waitcnt lgkmcnt(0)
s_cmp_eq_u32 s{sB}, 0
s_cbranch_scc0 L_epiB
''')
vP = 16
A(f'''
v_and_b32 v{vT}, 0x33, v{vL}
v_bfe_u32 v{vT + 1}, v{vL}, 2, 1
v_bfe_u32 v{vT + 2}, v{vL}, 3, 1
v_lshl_add_u32 v{vT}, v{vT + 1}, 3, v{vT}
v_lshl_add_u32 v{vT}, v{vT + 2}, 2, v{vT}
v_lshlrev_b32 v{vT}, 4, v{vT}
s_mov_b32 s{sT + 6}, {f32(QSCALE)}
s_mov_b32 s{sT + 7}, {f32(QSCALE)}
s_mul_i32 s{sT + 8}, s{sT + 8}, 3
''')
for i in range(3):
    acc, P = vAcc + 32 * i, vP + 16 * i
    A(f'''
    s_add_u32 s{sT}, s{sT + 8}, {i}
    s_and_b32 s{sT + 1}, s{sT}, 15
    s_lshl_b32 s{sT + 1}, s{sT + 1}, 6
    s_add_u32 s{sT + 1}, s{sT + 1}, s{sT + 4}
    s_lshr_b32 s{sT}, s{sT}, 4
    s_cmp_eq_u32 s{sT}, 1
    s_cselect_b64 vcc, -1, 0
    s_cmp_eq_u32 s{sT}, 0
    s_cbranch_scc0 L_eA_kv{i}
    s_lshl_b32 s{sT + 1}, s{sT + 1}, 11
    s_add_u32 s{sT + 2}, s{sT + 1}, 2048
    ''')
    for r in range(0, 32, 2):
        A(f'v_pk_mul_f32 {vr(acc + r, 2)}, {vr(acc + r, 2)}, {sr(sT + 6, 2)}')
    A(f'''
    s_branch L_eA_n{i}
    L_eA_kv{i}:
    s_lshl_b32 s{sT + 1}, s{sT + 1}, 1
    s_add_u32 s{sT + 1}, s{sT + 1}, s{sT}
    s_lshl_b32 s{sT + 1}, s{sT + 1}, 11
    s_add_u32 s{sT + 2}, s{sT + 1}, {WS_KV - 2048 + 4096}
    s_add_u32 s{sT + 1}, s{sT + 1}, {WS_KV - 2048}
    L_eA_n{i}:
    v_cndmask_b32 v{vT + 1}, v{vLin}, v{vT}, vcc
    ''')
    for q in range(4):
        for r in range(4 * q, 4 * q + 4):
            A(f'v_cvt_pk_bf16_f32 v{P + r}, v{acc + 2 * r}, v{acc + 2 * r + 1}')
        A(f'buffer_store_dwordx4 {vr(P + 4 * q, 4)}, v{vT + 1}, {sr(sWS, 4)}, s{sT + 1 + (q >> 1)} offen offset:{1024 * (q & 1)} sc1')
stamp('epi_done')
A(f'''
s_mul_i32 s{sT}, s{sCG}, 3
v_add_u32 v{vT}, s{sT}, v{vL}
v_and_b32 v{vT + 1}, 7, v{vT}
v_lshrrev_b32 v{vT}, 3, v{vT}
v_mul_u32_u24 v{vT + 1}, {FGRP}, v{vT + 1}
v_lshl_add_u32 v{vT + 2}, v{vT}, 11, v{vT + 1}
s_lshl_b32 s{sT}, s{sRB1}, 7
s_add_u32 s{sT}, s{sT}, {WS_FL + F_A}
s_waitcnt vmcnt(0)
s_barrier
s_cmp_eq_u32 s{sWv}, 0
s_cbranch_scc0 L_k0
s_mov_b64 exec, 7
buffer_store_dword v{vOne}, v{vT + 2}, {sr(sWS, 4)}, s{sT} offen sc1
s_mov_b64 exec, -1
''')
stamp('sigA')
A('s_branch L_k0')
pK, pQ, pV, vWF, vX, vU = 16, 32, 48, 160, 168, 200
A('L_epiB:')
wphi_addr(vU, vU + 1)
A(f'''
s_mul_i32 s{sT}, s{sH1}, 1568
s_add_u32 s{sT}, s{sT}, {L_WPHI}
v_add_u32 v{vU}, s{sT}, v{vU}
''')
for q in range(4):
    A(f'ds_read_b64_tr_b16 {vr(vWF + 2 * q, 2)}, v{vU} offset:{8 * q * 56}')
cvt8(pK, vAcc + 32)
cvt8(pK + 8, vAcc + 48)
A(f'''
s_lshl_b32 s{sT + 1}, s{sT + 8}, 6
s_add_u32 s{sT + 1}, s{sT + 1}, s{sT + 4}
s_lshl_b32 s{sT + 1}, s{sT + 1}, 11
s_add_u32 s{sT + 1}, s{sT + 1}, {WS_QB}
s_waitcnt lgkmcnt(0)
''')
for a in range(2):
    A(f'v_mfma_f32_32x32x16_bf16 {vr(vX + 16 * a, 16)}, {vr(vWF, 4)}, {vr(pK + 8 * a, 4)}, 0')
    for i in range(4):
        A(f'v_cvt_pk_bf16_f32 v{pV + 8 * a + i}, v{vAcc + 64 + 16 * a + 2 * i}, v{vAcc + 64 + 16 * a + 2 * i + 1}')
    A(f'v_mfma_f32_32x32x16_bf16 {vr(vX + 16 * a, 16)}, {vr(vWF + 4, 4)}, {vr(pK + 8 * a + 4, 4)}, {vr(vX + 16 * a, 16)}')
    for i in range(4, 8):
        A(f'v_cvt_pk_bf16_f32 v{pV + 8 * a + i}, v{vAcc + 64 + 16 * a + 2 * i}, v{vAcc + 64 + 16 * a + 2 * i + 1}')
cvt8(pQ, vAcc)
cvt8(pQ + 8, vAcc + 16)
for q in range(4):
    A(f'buffer_store_dwordx4 {vr(pQ + 4 * q, 4)}, v{vLin}, {sr(sWS, 4)}, s{sT + 1} offen offset:{1024 * q} sc1')
A(f'''
s_lshl_b32 s{sT}, s{sWv}, 12
s_add_u32 s{sT}, s{sT}, {L_V}
v_add_u32 v{vU}, s{sT}, v{vLin}
''')
for q in range(4):
    A(f'ds_write_b128 v{vU}, {vr(pV + 4 * q, 4)} offset:{1024 * q}')
tiles = [(vX + 16 * a, vAcc + 16 * a, vAcc + 32 + 16 * a, vT + 4 * a) for a in range(2)]
features(tiles)
for X, Ep, En, t in tiles:
    A(f'v_pk_add_f32 {vr(t, 2)}, {vr(Ep, 2)}, {vr(Ep + 2, 2)}')
    A(f'v_pk_add_f32 {vr(t + 2, 2)}, {vr(En, 2)}, {vr(En + 2, 2)}')
for r in range(4, 16, 2):
    for X, Ep, En, t in tiles:
        A(f'v_pk_add_f32 {vr(t, 2)}, {vr(t, 2)}, {vr(Ep + r, 2)}')
        A(f'v_pk_add_f32 {vr(t + 2, 2)}, {vr(t + 2, 2)}, {vr(En + r, 2)}')
for X, Ep, En, t in tiles:
    A(f'v_add_f32 v{t}, v{t}, v{t + 1}')
    A(f'v_add_f32 v{t + 2}, v{t + 2}, v{t + 3}')
A(f'''
v_and_b32 v{vU}, 31, v{vL}
v_bfe_u32 v{vU + 1}, v{vL}, 1, 2
''')
for X, Ep, En, t in tiles:
    A(f'v_permlane32_swap_b32 v{t}, v{t + 2}')
for X, Ep, En, t in tiles:
    A(f'v_add_f32 v{t}, v{t}, v{t + 2}')
for X, Ep, En, t in tiles:
    A(f'v_rcp_f32 v{t}, v{t}')
A(f'''
v_lshlrev_b32 v{vU + 2}, 1, v{vH}
''')
for X, Ep, En, t in tiles:
    A(f'v_mov_b32 v{t + 2}, v{t}')
A(f'''
v_xor_b32 v{vU + 1}, v{vU + 1}, v{vU + 2}
v_lshlrev_b32 v{vU + 1}, 4, v{vU + 1}
''')
for X, Ep, En, t in tiles:
    A(f'v_permlane32_swap_b32 v{t}, v{t + 2}')
A(f'''
v_lshl_add_u32 v{vU}, v{vU}, 6, v{vU + 1}
s_lshl_b32 s{sT}, s{sH1}, 14
s_lshl_b32 s{sT + 1}, s{sRH}, 12
s_add_u32 s{sT}, s{sT}, s{sT + 1}
s_add_u32 s{sT}, s{sT}, {L_PHI}
v_add_u32 v{vU}, s{sT}, v{vU}
v_xor_b32 v{vU + 1}, 16, v{vU}
''')
for a, (X, Ep, En, t) in enumerate(tiles):
    for sg, (E, s_) in enumerate(((Ep, t), (En, t + 2))):
        for r in range(0, 16, 2):
            A(f'v_pk_mul_f32 {vr(E + r, 2)}, {vr(E + r, 2)}, {vr(s_, 2)} op_sel_hi:[1,0]')
        P = X + 8 * sg
        cvt8(P, E)
        A(f'ds_write_b128 v{vU}, {vr(P, 4)} offset:{8192 * sg + 2048 * a}')
        A(f'ds_write_b128 v{vU + 1}, {vr(P + 4, 4)} offset:{8192 * sg + 2048 * a}')
stamp('epi_done')
A(f'''
s_waitcnt lgkmcnt(0)
L_k0:
s_barrier
''')
vQ, vO, vS, vPp, vF, vIdx, vFg, vRd = 16, 24, 40, 72, 88, 120, 121, 122
vEp, vEn, vNp, vNn, vQB, vWF2, vKVF, vSlA, vWoG = 124, 140, 156, 172, 188, 196, 204, 14, 15
vSl, vX2, vOA = 220, vNp, 252
A('L_att:')
stamp('k0')


def kv_issue(c):
    for kh in range(2):
        A(f's_add_u32 m0, s{sM0}, {(c % 4) * 32768 + kh * 16384}')
        A(f's_add_u32 s{sT + 2}, s{sKVo}, {c * 16384 + kh * 131072}')
        for q in range(4):
            A(f'buffer_load_dwordx4 v{vLin}, {sr(sWS, 4)}, s{sT + 2} offen offset:{1024 * q} sc1 lds')


def lds_frag(dst, t, piece):
    off = ((t >> 2) % 4) * 32768 + (t & 3) * 4096 + piece * 1024
    A(f'ds_read_b128 {vr(dst, 4)}, v{vRd + (off >> 16)} offset:{off & 0xffff}')


def set_qpad(m, t):
    A(f'''
    v_and_b32 v{t}, 0xffff0000, v{m}
    v_sub_f32 v{t + 1}, v{m}, v{t}
    v_and_b32 v{t + 2}, 0xffff0000, v{t + 1}
    v_sub_f32 v{t + 1}, v{t + 1}, v{t + 2}
    v_lshrrev_b32 v{t}, 16, v{t}
    s_mov_b64 exec, {sr(sHi, 2)}
    v_or_b32 v{vQ + 6}, v{t}, v{t + 2}
    v_lshrrev_b32 v{vQ + 7}, 16, v{t + 1}
    s_mov_b64 exec, -1
    ''')


def qk(S, K_, half):
    c = vr(S, 16) if half else '0'
    A(f'v_mfma_f32_32x32x16_bf16 {vr(S, 16)}, {vr(K_, 4)}, {vr(vQ + 4 * half, 4)}, {c}')


def pv(V, half):
    A(f'v_smfmac_f32_32x32x32_bf16 {vr(vO, 16)}, {vr(V, 4)}, {vr(vPp + 8 * half, 8)}, v{vIdx}')


A(f'''
s_lshl_b32 s{sT}, s{sRT}, 11
s_add_u32 s{sT}, s{sT}, {L_Q}
v_add_u32 v{vT}, s{sT}, v{vLin}
s_lshl_b32 s{sT}, s{sHH}, 14
v_add_u32 v{vRd}, s{sT}, v{vLin}
ds_read_b128 {vr(vQ, 4)}, v{vT}
ds_read_b128 {vr(vPp, 4)}, v{vLin}
ds_read_b128 {vr(vQ + 4, 4)}, v{vT} offset:1024
ds_read_b128 {vr(vPp + 4, 4)}, v{vLin} offset:1024
''')
lds_frag(vF + 16, 0, 0)
lds_frag(vF + 20, 0, 1)
lds_frag(vF, 1, 0)
lds_frag(vF + 4, 1, 1)
lds_frag(vF + 12, 0, 2)
A(f'''
v_add_u32 v{vRd + 1}, 0x10000, v{vRd}
v_mov_b32 v{vIdx}, 0xdddddddd
s_lshl_b32 s{sM0}, s{sWv}, 12
s_waitcnt lgkmcnt(7)
''')
qk(vS + 16, vPp, 0)
A('s_waitcnt lgkmcnt(5)')
qk(vS + 16, vPp + 4, 1)
A('s_waitcnt lgkmcnt(4)')
qk(vS, vF + 16, 0)
for r in range(16):
    A(f'v_mov_b32 v{vO + r}, 0')
S = vS + 16
A(f'v_max3_f32 v{vT}, v{S}, v{S + 1}, v{S + 2}')
A(f'v_max3_f32 v{vT + 1}, v{S + 3}, v{S + 4}, v{S + 5}')
A(f'v_max3_f32 v{vT}, v{vT}, v{S + 6}, v{S + 7}')
A(f'v_max3_f32 v{vT + 1}, v{vT + 1}, v{S + 8}, v{S + 9}')
A(f'v_max3_f32 v{vT}, v{vT}, v{S + 10}, v{S + 11}')
A(f'v_max3_f32 v{vT + 1}, v{vT + 1}, v{S + 12}, v{S + 13}')
A(f'v_max3_f32 v{vT}, v{vT}, v{S + 14}, v{S + 15}')
A(f'''
v_max_f32 v{vT}, v{vT}, v{vT + 1}
v_mov_b32 v{vT + 1}, v{vT}
v_permlane32_swap_b32 v{vT}, v{vT + 1}
v_max_f32 v{vT}, v{vT}, v{vT + 1}
v_sub_f32 v{vT}, {f32(-float(OPT['moff']) if not OPT['force_fb'] else 200.0)}, v{vT}
''')
set_qpad(vT, vT + 1)
A('s_waitcnt lgkmcnt(3)')
qk(vS, vF + 20, 1)
A(f'''
v_lshrrev_b32 v{vT}, 3, v{vL}
v_mul_u32_u24 v{vT}, 896, v{vT}
v_lshrrev_b32 v{vT + 1}, 4, v{vL}
v_lshlrev_b32 v{vT + 1}, 1, v{vT + 1}
v_and_b32 v{vT + 2}, 7, v{vL}
v_xor_b32 v{vT + 1}, v{vT + 1}, v{vT + 2}
v_lshl_add_u32 v{vWoG}, v{vT + 1}, 4, v{vT}
s_nop 0
''')


def wo_issue(srd_, lds_base, first, n, per_wave, wave_s):
    A(f's_mul_i32 s{sT + 3}, s{wave_s}, {per_wave * 1024}')
    A(f's_mul_i32 s{sT + 4}, s{wave_s}, {per_wave * 7168}')
    A(f's_lshl_b32 s{sT + 5}, s{sCB}, 7')
    A(f's_add_u32 s{sT + 4}, s{sT + 4}, s{sT + 5}')
    for i in range(n):
        if i % 4 == 0:
            A(f's_add_u32 m0, s{sT + 3}, {lds_base + (first + i) * 1024}')
        A(f's_add_u32 s{sT + 5}, s{sT + 4}, {(first + i) * 7168 - (i % 4) * 1024}')
        A(f'buffer_load_dwordx4 v{vWoG}, {sr(srd_, 4)}, s{sT + 5} offen offset:{(i % 4) * 1024} lds')


def guard(tag, cmp_, body):
    A(cmp_)
    A(f's_cbranch_scc0 L_g_{tag}')
    body()
    A(f'L_g_{tag}:')


def o_addr(br):
    A(f"""
    v_bfe_u32 v{vT}, v{vL}, 4, 1
    v_and_b32 v{vOA}, 15, v{vL}
    v_lshlrev_b32 v{vOA}, 4, v{vOA}
    v_lshl_add_u32 v{vOA}, v{vT}, 10, v{vOA}
    v_lshl_add_u32 v{vOA}, v{vH}, 8, v{vOA}
    s_lshl_b32 s{sT + 6}, s{sRB}, 2
    s_add_u32 s{sT + 6}, s{sT + 6}, s{sRT}
    s_lshl_b32 s{sT + 7}, s{sT + 6}, 4
    s_add_u32 s{sT + 7}, s{sT + 7}, s{sH}
    s_and_b32 s{sT + 8}, s{sT + 7}, 127
    s_lshl_b32 s{sT + 7}, s{sT + 7}, 11
    s_lshl_b32 s{sT + 8}, s{sT + 8}, 7
    s_lshr_b32 s{sT + 6}, s{sT + 6}, 3
    s_mul_i32 s{sT + 6}, s{sT + 6}, {FGRP}
    s_add_u32 s{sT + 8}, s{sT + 8}, s{sT + 6}
    s_add_u32 s{sT + 7}, s{sT + 7}, {WS_O + 0x200000 * br}
    s_add_u32 s{sT + 8}, s{sT + 8}, {WS_FL + F_O + 128 * 128 * br}
    """)


def signal(addr):
    A(f"""
    s_mov_b64 exec, 1
    buffer_store_dword v{vOne}, v{vL}, {sr(sWS, 4)}, {addr} offen sc1
    s_mov_b64 exec, -1
    """)


def sample(addr):
    A(f"""
    s_mov_b64 exec, 0xffff
    buffer_load_dword v{vFg}, v{vFl}, {sr(sWS, 4)}, {addr} offen sc1
    s_mov_b64 exec, -1
    """)


def check(tag, addr):
    A('s_mov_b64 exec, 0xffff')
    spin(tag, sWS, addr, vFl, vFg, preloaded=True)
    A('s_mov_b64 exec, -1')


def p3_flag_addr(d):
    A(f"""
    s_lshr_b32 s{sT}, s{sRT}, 1
    s_lshl_b32 s{d}, s{sRB64}, 1
    s_add_u32 s{d}, s{d}, s{sT}
    s_and_b32 s{d}, s{d}, 7
    s_xor_b32 s{sT}, s{sHH}, 1
    s_lshl_b32 s{sT}, s{sT}, 3
    s_add_u32 s{d}, s{d}, s{sT}
    s_lshl_b32 s{d}, s{d}, 11
    s_add_u32 s{d}, s{d}, s{sFG}
    s_add_u32 s{d}, s{d}, {F_O}
    """)


W0 = f's_cmp_eq_u32 s{sWv}, 0'
W03 = f's_cmp_lt_u32 s{sWv}, 4'


def hook_end(k):
    if k == 0:
        A(f"""
        s_lshr_b32 s{sT}, s{sWv}, 1
        s_lshl_b32 s{sT}, s{sT}, 5
        s_add_u32 s{sT}, s{sT}, s{sJ}
        s_lshl_b32 s{sT}, s{sT}, 13
        s_bitcmp1_b32 s{sWv}, 0
        s_cbranch_scc1 L_wpf1
        buffer_load_dword v{vFg}, v{vFl}, {sr(sWOA, 4)}, s{sT} offen
        s_branch L_wpf2
        L_wpf1:
        buffer_load_dword v{vFg}, v{vFl}, {sr(sWOB, 4)}, s{sT} offen
        L_wpf2:
        """)

        def b():
            A(f"""
            s_lshl_b32 s{sT + 1}, s{sWv}, 10
            s_add_u32 m0, s{sT + 1}, {L_WPHI}
            s_mul_i32 s{sT + 2}, s{sH}, 1568
            s_add_u32 s{sT + 2}, s{sT + 2}, s{sT + 1}
            buffer_load_dwordx4 v{vLin}, {sr(sPHI, 4)}, s{sT + 2} offen lds
            """)
        guard('e0', f's_cmp_lt_u32 s{sWv}, 2', b)
    if k == 2:
        def b():
            check('fb', f's{sT + 9}')
            A(f"""
            v_bfe_u32 v{vT}, v{vL}, 1, 1
            v_and_b32 v{vT + 1}, 1, v{vL}
            v_lshrrev_b32 v{vSlA}, 2, v{vL}
            v_lshlrev_b32 v{vSlA}, 4, v{vSlA}
            v_lshl_add_u32 v{vSlA}, v{vT}, 10, v{vSlA}
            v_lshl_add_u32 v{vSlA}, v{vT + 1}, 3, v{vSlA}
            s_lshr_b32 s{sT}, s{sRB}, 2
            s_lshl_b32 s{sT}, s{sT}, 11
            s_and_b32 s{sT + 1}, s{sRB}, 3
            s_lshl_b32 s{sT + 1}, s{sT + 1}, 8
            s_add_u32 s{sT}, s{sT}, s{sT + 1}
            s_lshl_b32 s{sT + 1}, s{sH}, 17
            s_add_u32 s{sT}, s{sT}, s{sT + 1}
            s_add_u32 s{sT}, s{sT}, {WS_KVP}
            """)
            for p in range(16):
                A(f'buffer_load_dwordx2 {vr(vSl + 2 * p, 2)}, v{vSlA}, {sr(sWS, 4)}, s{sT} offen sc1')
                if p < 15:
                    A(f's_add_u32 s{sT}, s{sT}, 8192')
        guard('e2', W0, b)
    if k == 3:
        def b():
            n = 8
            while n:
                for p in range(n):
                    A(f'v_pk_add_f32 {vr(vSl + 2 * p, 2)}, {vr(vSl + 2 * p, 2)}, {vr(vSl + 2 * (p + n), 2)}')
                n //= 2
            A(f"""
            s_lshl_b32 s{sT}, s{sH}, 4
            s_add_u32 s{sT}, s{sT}, s{sRB}
            s_lshl_b32 s{sT}, s{sT}, 8
            s_add_u32 s{sT}, s{sT}, {WS_KVF}
            v_cvt_pk_bf16_f32 v{vSl}, v{vSl}, v{vSl + 1}
            v_lshlrev_b32 v{vSlA}, 2, v{vL}
            s_bitcmp1_b32 s{sRB}, 0
            s_cselect_b32 exec_hi, 0x00f00000, 0
            s_mov_b32 exec_lo, 0
            v_mov_b32 v{vSl}, 0x3f803f80
            s_mov_b64 exec, -1
            buffer_store_dword v{vSl}, v{vSlA}, {sr(sWS, 4)}, s{sT} offen sc1
            """)
        guard('e3', W0, b)
        wphi_addr(vT + 2, vT + 3)
        A(f'v_add_u32 v{vT + 2}, {L_WPHI}, v{vT + 2}')
        for q in range(4):
            A(f'ds_read_b64_tr_b16 {vr(vWF2 + 2 * q, 2)}, v{vT + 2} offset:{8 * q * 56}')
    if k == 4:
        A(f'v_mfma_f32_32x32x16_bf16 {vr(vX2, 16)}, {vr(vWF2, 4)}, {vr(vQB, 4)}, 0')
        A(f'v_mfma_f32_32x32x16_bf16 {vr(vX2, 16)}, {vr(vWF2 + 4, 4)}, {vr(vQB + 4, 4)}, {vr(vX2, 16)}')
    if k == 5:
        check('fk', f's{sT + 9}')
        A(f's_lshl_b32 s{sT}, s{sH}, 12')
        A(f's_add_u32 s{sT}, s{sT}, {WS_KVF}')
        for q in range(4):
            A(f'buffer_load_dwordx4 {vr(vKVF + 4 * q, 4)}, v{vLin}, {sr(sWS, 4)}, s{sT} offen offset:{1024 * q} sc1')
        for r in range(32):
            A(f'v_mov_b32 v{vNp + r}, 0')
    if k == 6:
        for m in range(2):
            A(f'v_smfmac_f32_32x32x32_bf16 {vr(vNp, 16)}, {vr(vKVF + 4 * m, 4)}, {vr(vEp + 8 * m, 8)}, v{vIdx}')
        for m in range(2):
            A(f'v_smfmac_f32_32x32x32_bf16 {vr(vNn, 16)}, {vr(vKVF + 8 + 4 * m, 4)}, {vr(vEn + 8 * m, 8)}, v{vIdx}')
        o_addr(1)
        ap, an = vT + 4, vT + 6
        A(f"""
        v_mov_b32 v{vT}, {f32(1e-6)}
        v_rcp_f32 v{ap}, v{vNp + 13}
        v_rcp_f32 v{an}, v{vNn + 13}
        v_fmac_f32 v{vT}, v{vNp + 12}, v{ap}
        v_fmac_f32 v{vT}, v{vNn + 12}, v{an}
        v_rcp_f32 v{vT}, v{vT}
        v_mul_f32 v{ap}, v{ap}, v{vT}
        v_mul_f32 v{an}, v{an}, v{vT}
        v_mov_b32 v{vT}, v{ap}
        v_mov_b32 v{vT + 1}, v{an}
        v_permlane32_swap_b32 v{vT}, v{ap}
        v_permlane32_swap_b32 v{vT + 1}, v{an}
        """)
        for r in range(0, 16, 2):
            A(f'v_pk_mul_f32 {vr(vNp + r, 2)}, {vr(vNp + r, 2)}, {vr(ap, 2)} op_sel_hi:[1,0]')
        for r in range(0, 16, 2):
            A(f'v_pk_fma_f32 {vr(vNp + r, 2)}, {vr(vNn + r, 2)}, {vr(an, 2)}, {vr(vNp + r, 2)} op_sel_hi:[1,0,1]')
        cvt8(vEp, vNp)
        A(f"""
        s_mov_b64 exec, {sr(sHi, 2)}
        v_mov_b32 v{vEp + 6}, 0
        v_mov_b32 v{vEp + 7}, 0
        s_mov_b64 exec, -1
        buffer_store_dwordx4 {vr(vEp, 4)}, v{vOA}, {sr(sWS, 4)}, s{sT + 7} offen sc1
        buffer_store_dwordx4 {vr(vEp + 4, 4)}, v{vOA}, {sr(sWS, 4)}, s{sT + 7} offen offset:512 sc1
        """)
        wo_issue(sWOB, L_WOB, 0, 8, 8, sWv)
    if k <= 5:
        kv_issue(k + 2)
    if k == 4:
        features([(vX2, vEp, vEn, vT + 4)])


def hook_mid(t):
    n0 = len(A.lines)
    if t == 2:
        def b():
            A(f"""
            s_mul_i32 s{sT}, s{sCG}, {FGRP}
            s_lshl_b32 s{sT + 1}, s{sRB1}, 7
            s_add_u32 s{sT}, s{sT}, s{sT + 1}
            s_add_u32 s{sT}, s{sT}, {WS_FL + F_B}
            """)
            signal(f's{sT}')
        guard('m2', f's_cmp_lt_u32 s{sWv}, s{sB}', b)
    if t == 8:
        def b():
            A(f's_add_u32 s{sT + 9}, s{sFG}, {F_B}')
            sample(f's{sT + 9}')
        guard('m8', W0, b)
    if t == 12:
        def b():
            A(f"""
            s_lshl_b32 s{sT}, s{sH}, 6
            s_lshl_b32 s{sT + 1}, s{sRB}, 2
            s_add_u32 s{sT}, s{sT}, s{sT + 1}
            s_add_u32 s{sT}, s{sT}, s{sRT}
            s_lshl_b32 s{sT}, s{sT}, 11
            s_add_u32 s{sT}, s{sT}, {WS_QB}
            buffer_load_dwordx4 {vr(vQB, 4)}, v{vLin}, {sr(sWS, 4)}, s{sT} offen sc1
            buffer_load_dwordx4 {vr(vQB + 4, 4)}, v{vLin}, {sr(sWS, 4)}, s{sT} offen offset:1024 sc1
            """)
        guard('m12', W03, b)
    if t == 15:
        def b():
            A(f"""
            s_lshl_b32 s{sT}, s{sJ}, 7
            s_add_u32 s{sT}, s{sT}, s{sFG}
            s_add_u32 s{sT}, s{sT}, {F_K}
            s_waitcnt vmcnt(8)
            """)
            signal(f's{sT}')
        guard('m15', W0, b)
    if t == 20:
        def b():
            A(f"""
            s_and_b32 s{sT + 9}, s{sJ}, 16
            s_lshl_b32 s{sT + 9}, s{sT + 9}, 7
            s_add_u32 s{sT + 9}, s{sT + 9}, s{sFG}
            s_add_u32 s{sT + 9}, s{sT + 9}, {F_K}
            """)
            sample(f's{sT + 9}')
        guard('m20', W03, b)
    if t == 27:
        def b():
            A('s_waitcnt vmcnt(8)')
            signal(f's{sT + 8}')
            wo_issue(sWOB, L_WOB, 32, 6, 6, sWv)
        guard('m27', W03, b)
    if len(A.lines) != n0:
        A('.p2align 3')


RDPOS = {0: [0, 1, 2, 3], 1: [0, 0, 1, 1], 3: [0, 1, 1, 2]}[OPT['rd']]
A('.p2align 3')
for t in range(32):
    S, Sn = vS + 16 * (t & 1), vS + 16 * ((t + 1) & 1)
    F, Fn = vF + 16 * (t & 1), vF + 16 * ((t + 1) & 1)
    ex = lambda r: A(f'v_exp_f32 v{vPp + r}, v{S + r}')

    def fr(slot):
        for q in range(4):
            if RDPOS[q] == slot:
                tt, piece = [(t + 2, 0), (t + 2, 1), (t, 3), (t + 1, 2)][q]
                if tt < 32:
                    lds_frag(Fn + 4 * q, tt, piece)
    c = t >> 2
    if (t & 3) == 2 and c < 7:
        if OPT['fine']:
            stamp(f'pre{t}')
        A('s_waitcnt vmcnt(0)')
        guard(f'end{c}', W03, lambda: hook_end(c))
        if OPT['fine']:
            stamp(f'hk{t}')
        A('.p2align 3')
        A('s_waitcnt lgkmcnt(0)')
        A('s_barrier')
    else:
        A('s_waitcnt lgkmcnt(0)')
        A('s_nop 0')
    if t < 31:
        qk(Sn, F, 0)
    fr(0)
    for r in range(0, 4):
        ex(r)
    if t < 31:
        qk(Sn, F + 4, 1)
    fr(1)
    for r in range(4, 8):
        ex(r)
    if t > 0:
        pv(F + 8, 1)
    fr(2)
    for r in range(8, 12):
        ex(r)
    pv(F + 12, 0)
    fr(3)
    hook_mid(t)
    for r in range(12, 16):
        ex(r)
A('s_waitcnt lgkmcnt(0)')
pv(vF + 8, 1)
stamp('att_done')
A(f"""
s_lshl_b32 s{sT}, s{sRT}, 12
s_add_u32 s{sT}, s{sT}, {L_XCH}
v_add_u32 v{vT + 4}, s{sT}, v{vLin}
""")
p3_flag_addr(sT + 9)
A(f"""
s_cmp_eq_u32 s{sHH}, 0
s_cbranch_scc0 L_tailA
""")


def p3_addr(base):
    vWa = 16
    A(f"""
    v_bfe_u32 v{vT}, v{vL}, 2, 2                 ; r
    v_bfe_u32 v{vT + 1}, v{vL}, 4, 1             ; g&1
    v_and_b32 v{vT + 2}, 3, v{vL}
    v_lshlrev_b32 v{vT + 2}, 3, v{vT + 2}
    v_lshl_add_u32 v{vT + 2}, v{vT}, 7, v{vT + 2}
    v_lshl_add_u32 v{vT + 2}, v{vH}, 11, v{vT + 2}
    v_lshrrev_b32 v{vT}, 1, v{vT}
    v_lshl_add_u32 v{vT + 2}, v{vT}, 5, v{vT + 2}
    v_add_u32 v{vT + 2}, {base}, v{vT + 2}
    v_mul_u32_u24 v{vT + 3}, 576, v{vT + 1}
    v_add_u32 v{vWa}, v{vT + 2}, v{vT + 3}
    v_mul_u32_u24 v{vT + 3}, v{vT + 3}, v{vH}
    v_sub_u32 v{vWa + 4}, v{vWa}, v{vT + 3}
    """)
    for i in range(1, 4):
        A(f'v_xor_b32 v{vWa + i}, {32 * i}, v{vWa}')
        A(f'v_xor_b32 v{vWa + 4 + i}, {32 * i}, v{vWa + 4}')


vWa, vC, vOf, vWo, NPRE = 16, 24, 40, 104, 9
vFg3 = 248


def wo_reads(hd):
    G = vWo + 16 * (hd % NPRE)
    for ct in range(4):
        for u in range(2):
            A(f'ds_read_b64_tr_b16 {vr(G + 4 * ct + 2 * u, 2)}, v{vWa + 4 * u + (ct ^ (2 * (hd & 1)))} offset:{(28 * hd + 8 * u) * 128}')


A(f"""
s_mov_b64 exec, 0xffff
buffer_load_dword v{vFg3}, v{vFl}, {sr(sWS, 4)}, s{sT + 9} offen sc1
s_mov_b64 exec, -1
""")
for q in range(4):
    A(f'ds_write_b128 v{vT + 4}, {vr(vO + 4 * q, 4)} offset:{1024 * q}')
p3_addr(L_WOB)
A(f"""
s_waitcnt vmcnt(1) lgkmcnt(0)
s_barrier
s_cmp_ge_u32 s{sJ}, 28
s_cbranch_scc1 L_fin
s_branch L_p3
""")
A(f"""
L_tailA:
s_setprio 3
""")
o_addr(0)
A('s_barrier')
for q in range(4):
    A(f'ds_read_b128 {vr(vS + 4 * q, 4)}, v{vT + 4} offset:{1024 * q}')
for q in range(4):
    A(f's_waitcnt lgkmcnt({3 - q})')
    A(f'v_pk_add_f32 {vr(vO + 4 * q, 2)}, {vr(vO + 4 * q, 2)}, {vr(vS + 4 * q, 2)}')
    A(f'v_pk_add_f32 {vr(vO + 4 * q + 2, 2)}, {vr(vO + 4 * q + 2, 2)}, {vr(vS + 4 * q + 2, 2)}')
A(f'v_add_f32_e64 v{vT}, abs(v{vO}), abs(v{vO + 1})')
A(f'v_add_f32_e64 v{vT + 1}, abs(v{vO + 2}), abs(v{vO + 3})')
for r in range(4, 16, 2):
    A(f'v_add_f32_e64 v{vT}, v{vT}, abs(v{vO + r})')
    A(f'v_add_f32_e64 v{vT + 1}, v{vT + 1}, abs(v{vO + r + 1})')
A(f"""
v_add_f32 v{vT}, v{vT}, v{vT + 1}
s_mov_b32 s{sT}, 0x7b800000
v_cmp_ngt_f32 vcc, s{sT}, v{vT}
s_cbranch_vccnz L_fallback
L_final:
v_rcp_f32 v{vT + 2}, v{vO + 12}
v_rcp_f32 v{vT + 4}, v{vO + 12}
v_permlane32_swap_b32 v{vT + 4}, v{vT + 2}
""")
for r in range(0, 16, 2):
    A(f'v_pk_mul_f32 {vr(vO + r, 2)}, {vr(vO + r, 2)}, {vr(vT + 2, 2)} op_sel_hi:[1,0]')
cvt8(vS, vO)
A(f"""
s_mov_b64 exec, {sr(sHi, 2)}
v_mov_b32 v{vS + 6}, 0
v_mov_b32 v{vS + 7}, 0
s_mov_b64 exec, -1
buffer_store_dwordx4 {vr(vS, 4)}, v{vOA}, {sr(sWS, 4)}, s{sT + 7} offen sc1
buffer_store_dwordx4 {vr(vS + 4, 4)}, v{vOA}, {sr(sWS, 4)}, s{sT + 7} offen offset:512 sc1
""")
stamp('o_stored')
p3_addr(L_WOA)
A('s_waitcnt vmcnt(0)')
signal(f's{sT + 8}')
stamp('o_sig')
A(f"""
s_cmp_ge_u32 s{sJ}, 28
s_cbranch_scc1 L_fin
""")
wo_issue(sWOA, L_WOA, 0, 14, 14, sRT)
A(f"""
v_mov_b32 v{vT + 1}, {L_RELAY + 4}
v_mov_b32 v{vFg3}, 0
s_mov_b32 s{sSpin}, {OPT['spin'] * 64}
s_mov_b64 exec, 1
s_waitcnt vmcnt(0)
ds_add_u32 v{vT + 1}, v{vOne}
L_cnt:
ds_read_b32 v{vT}, v{vT + 1}
s_sub_u32 s{sSpin}, s{sSpin}, 1
s_waitcnt lgkmcnt(0)
s_cmp_eq_u32 s{sSpin}, 0
s_cbranch_scc1 L_cntx
v_cmp_ne_u32 vcc, 4, v{vT}
s_cbranch_vccnz L_cnt
L_cntx:
s_mov_b64 exec, 0xffff
buffer_load_dword v{vFg3}, v{vFl}, {sr(sWS, 4)}, s{sT + 9} offen sc1
s_mov_b64 exec, -1
""")
stamp('wo_in')
A('L_p3:')
for hd in range(NPRE):
    wo_reads(hd)
A(f'''
s_xor_b32 s{sT + 3}, s{sHH}, 1                 ; branch
s_lshr_b32 s{sT}, s{sRT}, 1
s_lshl_b32 s{sT + 1}, s{sRB64}, 1
s_add_u32 s{sT}, s{sT}, s{sT + 1}
s_lshl_b32 s{sT + 2}, s{sT + 3}, 6
s_add_u32 s{sT}, s{sT}, s{sT + 2}
s_lshl_b32 s{sT}, s{sT}, 15
s_and_b32 s{sT + 2}, s{sRT}, 1
s_lshl_b32 s{sT + 2}, s{sT + 2}, 10
s_add_u32 s{sT}, s{sT}, s{sT + 2}
s_add_u32 s{sT}, s{sT}, {WS_O}
s_mov_b64 exec, 0xffff
s_waitcnt vmcnt(0)
''')
spin('s3', sWS, f's{sT + 9}', vFl, vFg3, preloaded=True)
A('s_mov_b64 exec, -1')
stamp('p3_flag')
for hd in range(16):
    A(f'buffer_load_dwordx4 {vr(vOf + 4 * hd, 4)}, v{vLin}, {sr(sWS, 4)}, s{sT} offen offset:{2048 * (hd & 1)} sc1')
    if hd & 1 and hd < 15:
        A(f's_add_u32 s{sT}, s{sT}, 4096')
vSt, vLd, vOut = vT + 1, vT + 2, vT + 3
A(f'''
s_mul_i32 s{sT}, s{sRT}, 2304
s_lshl_b32 s{sT + 1}, s{sT + 3}, 14
s_add_u32 s{sT}, s{sT}, s{sT + 1}
s_add_u32 s{sT}, s{sT}, {L_XCH}
v_and_b32 v{vT}, 15, v{vL}
v_mul_u32_u24 v{vSt}, 144, v{vT}
v_lshrrev_b32 v{vT}, 4, v{vL}
v_lshl_add_u32 v{vSt}, v{vT}, 3, v{vSt}
v_add_u32 v{vSt}, s{sT}, v{vSt}
v_lshrrev_b32 v{vT}, 3, v{vL}
v_and_b32 v{vT + 4}, 7, v{vL}
v_mul_u32_u24 v{vLd}, 144, v{vT}
v_lshl_add_u32 v{vLd}, v{vT + 4}, 4, v{vLd}
v_add_u32 v{vLd}, s{sT}, v{vLd}
v_mul_u32_u24 v{vOut}, 1792, v{vT}
v_lshl_add_u32 v{vOut}, v{vT + 4}, 4, v{vOut}
s_lshl_b32 s{sT}, s{sRB64}, 2
s_add_u32 s{sT}, s{sT}, s{sRT}
s_mul_i32 s{sT}, s{sT}, {16 * 1792}
s_mul_i32 s{sT + 1}, s{sT + 3}, 896
s_add_u32 s{sT}, s{sT}, s{sT + 1}
s_lshl_b32 s{sT + 1}, s{sCB}, 7
s_add_u32 s{sT}, s{sT}, s{sT + 1}
s_add_u32 s{sT + 1}, s{sT}, {8 * 1792}
''')
for hd in range(16):
    G = vWo + 16 * (hd % NPRE)
    A(f's_waitcnt vmcnt({15 - hd})' + (' lgkmcnt(0)' if hd in (0, NPRE) else ''))
    for ct in range(4):
        c = vr(vC + 4 * ct, 4) if hd else '0'
        A(f'v_mfma_f32_16x16x32_bf16 {vr(vC + 4 * ct, 4)}, {vr(G + 4 * ct, 4)}, {vr(vOf + 4 * hd, 4)}, {c}')
    if hd + NPRE < 16:
        wo_reads(hd + NPRE)
for ct in range(4):
    A(f'v_cvt_pk_bf16_f32 v{vOf + 2 * ct}, v{vC + 4 * ct}, v{vC + 4 * ct + 1}')
    A(f'v_cvt_pk_bf16_f32 v{vOf + 2 * ct + 1}, v{vC + 4 * ct + 2}, v{vC + 4 * ct + 3}')
    A(f'ds_write_b64 v{vSt}, {vr(vOf + 2 * ct, 2)} offset:{32 * ct}')
OUTFL = ['', 'sc1', 'nt', 'sc0 sc1'][OPT['outfl']]
A(f'''
s_waitcnt lgkmcnt(0)
ds_read_b128 {vr(vOf + 8, 4)}, v{vLd}
ds_read_b128 {vr(vOf + 12, 4)}, v{vLd} offset:{8 * 144}
s_waitcnt lgkmcnt(1)
buffer_store_dwordx4 {vr(vOf + 8, 4)}, v{vOut}, {sr(sOUT, 4)}, s{sT} offen {OUTFL}
s_waitcnt lgkmcnt(0)
buffer_store_dwordx4 {vr(vOf + 12, 4)}, v{vOut}, {sr(sOUT, 4)}, s{sT + 1} offen {OUTFL}
''')
stamp('p3_done')
A('L_fin:')
if PROBE:
    A('''
    L_pad:
    s_memrealtime s[94:95]
    s_waitcnt lgkmcnt(0)
    s_sub_u32 s94, s94, s90
    s_cmp_lt_u32 s94, 3000
    s_cbranch_scc1 L_pad
    ''')
if OPT['stamps']:
    A('s_waitcnt vmcnt(0)')
    stamp('end')
    A(f'''
    s_lshl_b32 s{sT}, s2, 3
    s_add_u32 s{sT}, s{sT}, s{sWv}
    s_lshl_b32 s{sT}, s{sT}, 8
    s_add_u32 s{sT}, s{sT}, {WS_ST}
    v_lshlrev_b32 v{vT}, 2, v{vL}
    buffer_store_dword v255, v{vT}, {sr(sWS, 4)}, s{sT} offen
    ''')
A('s_endpgm')
A(f'''
L_fallback:
s_mov_b64 exec, {sr(sHi, 2)}
v_mov_b32 v{vQ + 6}, 0
v_mov_b32 v{vQ + 7}, 0
s_mov_b64 exec, -1
v_mov_b32 v{vT}, 0xff800000
s_lshl_b32 s{sT}, s{sH}, 18
s_add_u32 s{sT}, s{sT}, {WS_KV}
s_mov_b32 s{sT + 1}, 0
L_fb1:
buffer_load_dwordx4 {vr(vF, 4)}, v{vLin}, {sr(sWS, 4)}, s{sT} offen sc1
buffer_load_dwordx4 {vr(vF + 4, 4)}, v{vLin}, {sr(sWS, 4)}, s{sT} offen offset:1024 sc1
s_waitcnt vmcnt(0)
''')
qk(vS, vF, 0)
qk(vS, vF + 4, 1)
for r in range(0, 16, 2):
    A(f'v_max3_f32 v{vT}, v{vT}, v{vS + r}, v{vS + r + 1}')
A(f'''
s_add_u32 s{sT}, s{sT}, 4096
s_add_u32 s{sT + 1}, s{sT + 1}, 1
s_cmp_lt_u32 s{sT + 1}, 64
s_cbranch_scc1 L_fb1
v_mov_b32 v{vT + 1}, v{vT}
v_permlane32_swap_b32 v{vT}, v{vT + 1}
v_max_f32 v{vT}, v{vT}, v{vT + 1}
v_sub_f32 v{vT}, 0, v{vT}
''')
set_qpad(vT, vT + 1)
for r in range(16):
    A(f'v_mov_b32 v{vO + r}, 0')
A(f'''
s_lshl_b32 s{sT}, s{sH}, 18
s_add_u32 s{sT}, s{sT}, {WS_KV}
s_mov_b32 s{sT + 1}, 0
L_fb2:
''')
for q in range(4):
    A(f'buffer_load_dwordx4 {vr(vF + 4 * q, 4)}, v{vLin}, {sr(sWS, 4)}, s{sT} offen offset:{1024 * q} sc1')
A('s_waitcnt vmcnt(0)')
qk(vS, vF, 0)
qk(vS, vF + 4, 1)
for r in range(16):
    A(f'v_exp_f32 v{vPp + r}, v{vS + r}')
pv(vF + 8, 0)
pv(vF + 12, 1)
A(f'''
s_add_u32 s{sT}, s{sT}, 4096
s_add_u32 s{sT + 1}, s{sT + 1}, 1
s_cmp_lt_u32 s{sT + 1}, 64
s_cbranch_scc1 L_fb2
s_nop 11
s_branch L_final
L_end:
s_endpgm
''')

n = A.fix_hazards(verbose=bool(OPT.get('v')))
hdr = open('cdna_kernels/' + NAME + '.s.ref').read().split('; Override launch')[0]
out = hdr + f'''; One persistent launch, 256 workgroups (one per CU); generated by the author's own script.
; @launch grid=(256,1,1) block=(512,1,1) lds=163840
.amdgcn_target "amdgcn-amd-amdhsa--gfx950"
.text
.globl {NAME}_kernel
.p2align 8
.type {NAME}_kernel,@function
{NAME}_kernel:
''' + A.text() + f'''.fill 256, 4, 0xbf800000
.section .rodata,"a"
.p2align 6
.amdhsa_kernel {NAME}_kernel
  .amdhsa_next_free_vgpr 256
  .amdhsa_next_free_sgpr 102
  .amdhsa_accum_offset 256
  .amdhsa_group_segment_fixed_size 0
  .amdhsa_kernarg_size 80
  .amdhsa_user_sgpr_count 2
  .amdhsa_user_sgpr_kernarg_segment_ptr 1
  .amdhsa_system_sgpr_workgroup_id_x 1
.end_amdhsa_kernel
'''
open(sys.argv[1], 'w').write(out)
if OPT['stamps']:
    open(sys.argv[1] + '.stamps', 'w').write('\n'.join(STAMPS + [str(OPT['mix'])]))
print('lines', len(A.lines), 'nops inserted', n)
```

```python
import sys, math, struct
from asmlib import Asm, vr, sr

NAME = 'concat_heads__softmax_full_mha__linear_kernel_hedgehog__prompt'
OPT = dict(rot=0, stamps=0, force_fb=0, spin=1 << 16, moff=24, outfl=1, rd=3, prio=0, mix=1, fine=0, pfa=0, pfb=0x0443, wpf=1, pfc=0, pfl=0, pfd=0, pfnt=0)
PROBE = None
for a in sys.argv[2:]:
    k, v = a.split('=')
    if k == 'probe':
        PROBE = v
    else:
        OPT[k] = int(v, 0)


def f32(x):
    return '0x%08x' % struct.unpack('<I', struct.pack('<f', x))[0]


LOG2E = 1.4426950408889634
QSCALE = LOG2E / math.sqrt(28.0)

WS_QA, WS_KV, WS_QB, WS_KVP, WS_O, WS_FL, WS_KVF, WS_ST, WS_END = (
    0, 0x200000, 0x600000, 0x800000, 0xA00000, 0xE00000, 0xE80000, 0xF00000, 0x1000000)
FGRP = 384 * 128
F_A, F_B, F_K, F_O = 0, 48 * 128, 64 * 128, 96 * 128
sX, sW, sWS, sDBG, sPHI, sWOA, sOUT, sWOB = 24, 28, 32, 36, 40, 44, 48, 96
sWv, sXc, sJ, sB, sRB1, sCG, sH, sRB = 52, 53, 54, 55, 56, 57, 58, 59
sT = 60
sC, sSlot, sKC, sXbase, sWbase, sXo, sWo = 70, 71, 73, 74, 75, 76, 77
sFG = 72
sL = 78
sRT, sHH = 80, 81
sSpin = 82
sCB = 83
sKVo = 84
sRB64 = 85
sHi = 86
sOnesM = 88
sStamp = 90
sM0 = 92
sRH, sH1, sJI = 93, 3, 100
vL, vLin, vH = 1, 2, 3
vT = 4
vFl, vOne = 12, 13
SLOT = 40960
K = 1024
L_Q, L_PHI, L_V, L_WPHI, L_RELAY = 96 * K, 104 * K, 136 * K, 152 * K, 158 * K
L_WOA, L_WOB, L_XCH = 64 * K, 0, 128 * K

A = Asm()
STAMPS = []


def stamp(name):
    if PROBE == name:
        A('s_memrealtime s[90:91]')
        A('s_waitcnt lgkmcnt(0)')
    if not OPT['stamps']:
        return
    if name not in STAMPS:
        STAMPS.append(name)
    i = STAMPS.index(name)
    A(f'''
    s_memrealtime s[{sStamp}:{sStamp + 1}]
    s_memtime s[94:95]
    s_waitcnt lgkmcnt(0)
    v_writelane_b32 v255, s{sStamp}, {i}
    v_writelane_b32 v255, s94, {i + 32}
    ''')


def spin(tag, srd_, addr, vaddr, vdst, preloaded=False):
    A(f's_mov_b32 s{sSpin}, {OPT["spin"]}')
    if preloaded:
        A(f's_branch L_chk_{tag}')
    A(f'''
    L_poll_{tag}:
    buffer_load_dword v{vdst}, v{vaddr}, {sr(srd_, 4)}, {addr} offen sc1
    s_sub_u32 s{sSpin}, s{sSpin}, 1
    s_waitcnt vmcnt(0)
    s_cmp_eq_u32 s{sSpin}, 0
    s_cbranch_scc1 L_pollx_{tag}
    L_chk_{tag}:
    v_cmp_ne_u32 vcc, 1, v{vdst}
    s_cbranch_vccnz L_poll_{tag}
    L_pollx_{tag}:
    ''')


def srd(d, base, nbytes):
    A(f'''
    s_mov_b32 s{d}, s{base}
    s_mov_b32 s{d + 1}, s{base + 1}
    s_mov_b32 s{d + 2}, {nbytes}
    s_mov_b32 s{d + 3}, 0x20000
    ''')


def cvt8(dst, src):
    for i in range(8):
        A(f'v_cvt_pk_bf16_f32 v{dst + i}, v{src + 2 * i}, v{src + 2 * i + 1}')


def features(tiles):
    A(f's_mov_b64 exec, {sr(sHi, 2)}')
    for X, Ep, En, t in tiles:
        for r in range(12, 16):
            A(f'v_mov_b32 v{X + r}, v{X + 11}')
    A('s_mov_b64 exec, -1')
    for X, Ep, En, t in tiles:
        A(f'v_max3_f32 v{t}, v{X}, v{X + 1}, v{X + 2}')
        A(f'v_max3_f32 v{t + 2}, -v{X}, -v{X + 1}, -v{X + 2}')
    for r in range(3, 15, 2):
        for X, Ep, En, t in tiles:
            A(f'v_max3_f32 v{t}, v{t}, v{X + r}, v{X + r + 1}')
            A(f'v_max3_f32 v{t + 2}, v{t + 2}, -v{X + r}, -v{X + r + 1}')
    for X, Ep, En, t in tiles:
        A(f'v_max_f32 v{t}, v{t}, v{X + 15}')
        A(f'v_max_f32_e64 v{t + 2}, v{t + 2}, -v{X + 15}')
    for X, Ep, En, t in tiles:
        A(f'v_permlane32_swap_b32 v{t}, v{t + 2}')
    for X, Ep, En, t in tiles:
        A(f'v_max_f32 v{t}, v{t}, v{t + 2}')
    for X, Ep, En, t in tiles:
        A(f'v_mul_f32_e64 v{t + 2}, -v{t}, s{sL}')
        A(f'v_mul_f32_e64 v{t}, -v{t}, s{sL}')
    for X, Ep, En, t in tiles:
        A(f'v_permlane32_swap_b32 v{t}, v{t + 2}')
    for X, Ep, En, t in tiles:
        for r in range(0, 16, 2):
            A(f'v_pk_fma_f32 {vr(Ep + r, 2)}, {vr(X + r, 2)}, {sr(sL, 2)}, {vr(t, 2)} op_sel_hi:[1,1,0]')
            A(f'v_pk_fma_f32 {vr(En + r, 2)}, {vr(X + r, 2)}, {sr(sL, 2)}, {vr(t + 2, 2)} op_sel_hi:[1,1,0] neg_lo:[1,0,0] neg_hi:[1,0,0]')
    for X, Ep, En, t in tiles:
        for r in range(16):
            A(f'v_exp_f32 v{Ep + r}, v{Ep + r}')
        for r in range(16):
            A(f'v_exp_f32 v{En + r}, v{En + r}')
    A(f's_mov_b64 exec, {sr(sHi, 2)}')
    for X, Ep, En, t in tiles:
        for r in range(12, 16):
            A(f'v_mov_b32 v{Ep + r}, 0')
            A(f'v_mov_b32 v{En + r}, 0')
    A('s_mov_b64 exec, -1')


def wphi_addr(d, t):
    A(f'''
    v_bfe_u32 v{t}, v{vL}, 2, 2
    v_lshl_add_u32 v{t}, v{vH}, 2, v{t}
    v_mul_u32_u24 v{d}, 56, v{t}
    v_bfe_u32 v{t}, v{vL}, 4, 1
    v_lshl_add_u32 v{d}, v{t}, 5, v{d}
    v_and_b32 v{t}, 3, v{vL}
    v_lshl_add_u32 v{d}, v{t}, 3, v{d}
    ''')


def common_setup():
    srd(sWS, 22, WS_END)
    srd(sDBG, 20, 256)
    srd(sPHI, 14, 16 * 1568)
    srd(sOUT, 18, 2048 * 1792)
    srd(sWOA, 8, 448 * 896)
    srd(sWOB, 16, 448 * 896)
    A(f'''
    s_mov_b32 s{sL}, {f32(LOG2E)}
    s_mov_b32 s{sL + 1}, {f32(LOG2E)}
    s_mov_b32 s{sHi}, 0
    s_mov_b32 s{sHi + 1}, -1
    s_mov_b32 s{sOnesM}, 0x10000000
    s_mov_b32 s{sOnesM + 1}, 0x10000000
    s_lshr_b32 s{sH}, s{sJ}, 4
    s_lshl_b32 s{sT}, s{sXc}, 1
    s_add_u32 s{sH}, s{sH}, s{sT}
    s_and_b32 s{sRB}, s{sJ}, 15
    s_and_b32 s{sRT}, s{sWv}, 3
    s_lshr_b32 s{sHH}, s{sWv}, 2
    s_mul_i32 s{sFG}, s{sXc}, {FGRP}
    s_add_u32 s{sFG}, s{sFG}, {WS_FL}
    s_mul_i32 s{sT}, s{sJ}, 37
    s_lshr_b32 s{sT}, s{sT}, 8
    s_mul_i32 s{sT + 1}, s{sT}, 7
    s_sub_u32 s{sCB}, s{sJ}, s{sT + 1}
    s_lshl_b32 s{sRB64}, s{sXc}, 2
    s_add_u32 s{sRB64}, s{sRB64}, s{sT}
    s_lshl_b32 s{sT}, s{sH}, 6
    s_lshl_b32 s{sT + 1}, s{sHH}, 5
    s_add_u32 s{sT + 1}, s{sT + 1}, s{sRT}
    s_add_u32 s{sT + 1}, s{sT + 1}, s{sT}
    s_lshl_b32 s{sKVo}, s{sT + 1}, 12
    s_add_u32 s{sKVo}, s{sKVo}, {WS_KV}
    v_lshlrev_b32 v{vLin}, 4, v{vL}
    v_lshrrev_b32 v{vH}, 5, v{vL}
    v_lshlrev_b32 v{vFl}, 7, v{vL}
    v_mov_b32 v{vOne}, 1
    ''')


sPx, sPw, sPd = 101, 0, 1


def spf_setup():
    A(f"""
    s_and_b32 s{sT}, s{sJ}, 15
    s_lshl_b32 s{sT + 1}, s{sXc}, 4
    s_add_u32 s{sT + 1}, s{sT + 1}, s{sT}
    s_lshl_b32 s{sT + 1}, s{sT + 1}, 2
    s_and_b32 s{sT + 2}, s{sWv}, 3
    s_add_u32 s{sT + 1}, s{sT + 1}, s{sT + 2}
    s_mul_i32 s{sPx}, s{sT + 1}, {4 * 896}
    s_lshr_b32 s{sT + 1}, s{sXc}, 1
    s_lshl_b32 s{sT + 1}, s{sT + 1}, 4
    s_add_u32 s{sT}, s{sT}, s{sT + 1}
    s_mul_i32 s{sT}, s{sT}, 21
    s_and_b32 s{sT + 1}, s{sXc}, 1
    s_mul_i32 s{sT + 1}, s{sT + 1}, 9
    s_mul_i32 s{sT + 2}, s{sT + 2}, 3
    s_add_u32 s{sT}, s{sT}, s{sT + 1}
    s_add_u32 s{sT}, s{sT}, s{sT + 2}
    s_lshl_b32 s{sPw}, s{sT}, 7
    """)


def spf(kc):
    for i in range(4):
        A(f's_buffer_load_dword s{sPd}, {sr(sX, 4)}, s{sPx} offset:{i * 896 + kc * 128}')
    for i in range(3):
        A(f's_buffer_load_dword s{sPd}, {sr(sW, 4)}, s{sPw} offset:{i * 128 + kc * 64 * 2688}')


def digits(v):
    return [int(c, 16) & 7 for c in ('%x' % v)] if v else []


A(f'''
s_cmp_ge_u32 s2, 256
s_cbranch_scc1 L_end
s_load_dwordx16 s[4:19], s[0:1], 0
s_load_dwordx4 s[20:23], s[0:1], 64
''')
if OPT['stamps']:
    A('v_mov_b32 v255, 0')
if PROBE:
    A('s_memrealtime s[90:91]')
stamp('start')
A(f'''
v_lshrrev_b32 v{vT}, 6, v0
v_and_b32 v{vL}, 63, v0
v_readfirstlane_b32 s{sWv}, v{vT}
s_and_b32 s{sXc}, s2, 7
s_lshr_b32 s{sJ}, s2, 3
''')
if OPT['mix']:
    A(f'''
    s_lshr_b32 s{sB}, s{sJ}, 4
    s_and_b32 s{sT}, s{sXc}, 6
    s_lshl_b32 s{sT}, s{sT}, 1
    s_and_b32 s{sRB1}, s{sJ}, 3
    s_add_u32 s{sRB1}, s{sRB1}, s{sT}
    s_and_b32 s{sT}, s{sXc}, 1
    s_lshl_b32 s{sT}, s{sT}, 2
    s_bfe_u32 s{sCG}, s{sJ}, 0x20002
    s_add_u32 s{sCG}, s{sCG}, s{sT}
    ''')
else:
    A(f'''
s_lshr_b32 s{sB}, s{sXc}, 2
s_and_b32 s{sT}, s{sXc}, 2
s_lshl_b32 s{sT}, s{sT}, 2
s_and_b32 s{sRB1}, s{sJ}, 7
s_add_u32 s{sRB1}, s{sRB1}, s{sT}
s_and_b32 s{sT}, s{sXc}, 1
s_lshl_b32 s{sT}, s{sT}, 2
s_lshr_b32 s{sCG}, s{sJ}, 3
s_add_u32 s{sCG}, s{sCG}, s{sT}
''')
A(f'''
s_bitcmp1_b32 s{sXc}, 0
s_cselect_b32 s{sJI}, 7, 4
s_lshr_b32 s{sT}, s{sJ}, 2
s_xor_b32 s{sJI}, s{sJI}, s{sT}
s_cmp_lt_u32 s{sWv}, 4
s_cbranch_scc1 L_comp
''')
vXg0, vXg1, vWg = 16, 17, 18
A(f'''
s_setprio 3
s_and_b32 s{sRT}, s{sWv}, 3
s_mul_i32 s{sXbase}, s{sRB1}, {128 * 896}
s_cmp_eq_u32 s{sB}, 0
s_cselect_b32 s{sT}, 3, 1
s_cselect_b32 s{sT + 1}, 1, 8
s_mul_i32 s{sT}, s{sT}, 112
s_mul_i32 s{sT + 1}, s{sT + 1}, 112
s_mul_i32 s{sWbase}, s{sCG}, s{sT}
s_mul_i32 s{sT + 2}, s{sRT}, {32 * 896}
s_add_u32 s{sXbase}, s{sXbase}, s{sT + 2}
s_mul_i32 s{sT + 2}, s{sRT}, {16 * 2688}
s_add_u32 s{sWbase}, s{sWbase}, s{sT + 2}
v_lshrrev_b32 v{vT}, 3, v{vL}
v_mul_u32_u24 v{vT + 1}, 896, v{vT}
v_lshrrev_b32 v{vT + 2}, 4, v{vL}
v_and_b32 v{vT + 3}, 7, v{vL}
v_xor_b32 v{vT + 2}, v{vT + 2}, v{vT + 3}
v_lshl_add_u32 v{vXg0}, v{vT + 2}, 4, v{vT + 1}
v_xor_b32 v{vXg1}, 64, v{vXg0}
v_add_u32 v{vXg1}, {8 * 896 - 1024}, v{vXg1}
v_and_b32 v{vT + 5}, 7, v{vL}
''')
for i in range(3):
    A(f'''
    v_add_u32 v{vT + 1}, {8 * i}, v{vT}
    v_mul_u32_u24 v{vT + 2}, 11, v{vT + 1}
    v_lshrrev_b32 v{vT + 2}, 5, v{vT + 2}
    v_mul_u32_u24 v{vT + 3}, 3, v{vT + 2}
    v_sub_u32 v{vT + 1}, v{vT + 1}, v{vT + 3}
    v_mul_u32_u24 v{vT + 1}, s{sT + 1}, v{vT + 1}
    v_and_b32 v{vT + 3}, 2, v{vT + 2}
    v_lshlrev_b32 v{vT + 3}, 1, v{vT + 3}
    v_xor_b32 v{vT + 3}, v{vT + 3}, v{vT + 5}
    v_lshl_add_u32 v{vT + 1}, v{vT + 3}, 4, v{vT + 1}
    v_add_u32 v{vT + 3}, 1, v{vT + 3}
    v_and_b32 v{vT + 3}, 8, v{vT + 3}
    v_lshl_add_u32 v{vT + 1}, v{vT + 3}, 27, v{vT + 1}
    v_mul_u32_u24 v{vT + 2}, 2688, v{vT + 2}
    ''')
    if i:
        A(f'v_subrev_u32 v{vT + 2}, {1024 * i}, v{vT + 2}')
    A(f'v_add_u32 v{vWg + i}, v{vT + 2}, v{vT + 1}')
if OPT['rot']:
    A(f'''
    s_mul_i32 s{sKC}, s{sCG}, {OPT['rot']}
    s_add_u32 s{sKC}, s{sKC}, s{sRB1}
    s_mul_i32 s{sT + 2}, s{sKC}, 37
    s_lshr_b32 s{sT + 2}, s{sT + 2}, 8
    s_mul_i32 s{sT + 2}, s{sT + 2}, 7
    s_sub_u32 s{sKC}, s{sKC}, s{sT + 2}
    ''')
else:
    A(f's_mov_b32 s{sKC}, 0')
A(f'''
s_lshl_b32 s{sT + 4}, s{sRT}, 12
s_mul_i32 s{sT + 5}, s{sRT}, 6144
s_add_u32 s{sT + 5}, s{sT + 5}, 16384
s_mov_b32 s{sSlot}, 0
s_mov_b32 s{sC}, 0
s_mov_b32 s{sX + 2}, {2048 * 896}
s_mov_b32 s{sX + 3}, 0x20000
s_mov_b32 s{sW + 2}, {448 * 2688}
s_mov_b32 s{sW + 3}, 0x20000
s_waitcnt lgkmcnt(0)
s_cmp_eq_u32 s{sB}, 0
s_cselect_b32 s{sX}, s4, s10
s_cselect_b32 s{sX + 1}, s5, s11
s_cselect_b32 s{sW}, s6, s12
s_cselect_b32 s{sW + 1}, s7, s13
s_cmp_eq_u32 s{sJI}, 0
s_cbranch_scc1 L_zero
L_ld:
s_lshl_b32 s{sXo}, s{sKC}, 7
s_add_u32 s{sXo}, s{sXo}, s{sXbase}
s_add_u32 m0, s{sSlot}, s{sT + 4}
s_add_u32 s{sT + 6}, s{sXo}, {16 * 896 - 2048}
buffer_load_dwordx4 v{vXg0}, {sr(sX, 4)}, s{sXo} offen lds
buffer_load_dwordx4 v{vXg1}, {sr(sX, 4)}, s{sXo} offen offset:1024 lds
buffer_load_dwordx4 v{vXg0}, {sr(sX, 4)}, s{sT + 6} offen offset:2048 lds
buffer_load_dwordx4 v{vXg1}, {sr(sX, 4)}, s{sT + 6} offen offset:3072 lds
s_mul_i32 s{sWo}, s{sKC}, {64 * 2688}
s_add_u32 m0, s{sSlot}, s{sT + 5}
s_add_u32 s{sWo}, s{sWo}, s{sWbase}
buffer_load_dwordx4 v{vWg}, {sr(sW, 4)}, s{sWo} offen lds
buffer_load_dwordx4 v{vWg + 1}, {sr(sW, 4)}, s{sWo} offen offset:1024 lds
buffer_load_dwordx4 v{vWg + 2}, {sr(sW, 4)}, s{sWo} offen offset:2048 lds
s_add_u32 m0, m0, 3072
s_add_u32 s{sWo}, s{sWo}, {8 * 2688}
s_cmp_eq_u32 s{sC}, 0
s_cbranch_scc1 L_ld0
s_waitcnt vmcnt(7)
s_barrier
''')
if OPT['pfd']:
    A(f's_cmp_gt_u32 s{sC}, {6 - OPT["pfd"]}')
    A('s_cbranch_scc1 L_ldb')
    A(f's_add_u32 s{sPx}, s{sPx}, 128')
    A(f's_add_u32 s{sPw}, s{sPw}, {64 * 2688}')
    spf(OPT['pfd'])
A(f'''
L_ldb:
buffer_load_dwordx4 v{vWg}, {sr(sW, 4)}, s{sWo} offen lds
buffer_load_dwordx4 v{vWg + 1}, {sr(sW, 4)}, s{sWo} offen offset:1024 lds
buffer_load_dwordx4 v{vWg + 2}, {sr(sW, 4)}, s{sWo} offen offset:2048 lds
s_add_u32 s{sKC}, s{sKC}, 1
s_cmp_eq_u32 s{sKC}, 7
s_cselect_b32 s{sKC}, 0, s{sKC}
s_add_u32 s{sSlot}, s{sSlot}, {SLOT}
s_cmp_eq_u32 s{sSlot}, {3 * SLOT}
s_cselect_b32 s{sSlot}, 0, s{sSlot}
s_add_u32 s{sC}, s{sC}, 1
s_cmp_lt_u32 s{sC}, 7
s_cbranch_scc1 L_ld
s_branch L_ld1
L_ld0:
''')
if OPT['pfl'] or OPT['pfd']:
    spf_setup()
    for kc in digits(OPT['pfl']):
        spf(kc)
A(f'''
s_branch L_ldb
L_zero:
s_mov_b32 s{sWS}, s22
s_mov_b32 s{sWS + 1}, s23
s_mov_b32 s{sWS + 2}, {WS_END}
s_mov_b32 s{sWS + 3}, 0x20000
s_mul_i32 s{sT}, s{sXc}, {FGRP}
s_and_b32 s{sT + 1}, s{sJ}, 3
s_lshl_b32 s{sT + 1}, s{sT + 1}, 2
s_add_u32 s{sT + 1}, s{sT + 1}, s{sRT}
s_mul_i32 s{sT + 1}, s{sT + 1}, 3072
s_add_u32 s{sT}, s{sT}, s{sT + 1}
s_add_u32 s{sT}, s{sT}, {WS_FL}
v_lshlrev_b32 v{vLin}, 4, v{vL}
v_mov_b32 v{vT}, 0
v_mov_b32 v{vT + 1}, 0
v_mov_b32 v{vT + 2}, 0
v_mov_b32 v{vT + 3}, 0
buffer_store_dwordx4 {vr(vT, 4)}, v{vLin}, {sr(sWS, 4)}, s{sT} offen sc1
buffer_store_dwordx4 {vr(vT, 4)}, v{vLin}, {sr(sWS, 4)}, s{sT} offen offset:1024 sc1
buffer_store_dwordx4 {vr(vT, 4)}, v{vLin}, {sr(sWS, 4)}, s{sT} offen offset:2048 sc1
s_branch L_ld
L_ld1:
''')
common_setup()
A(f'''
s_cmp_eq_u32 s{sWv}, 4
s_cbranch_scc0 L_ld2
v_lshlrev_b32 v{vT + 1}, 2, v{vL}
s_mov_b32 exec_hi, 0
''')
spin('init', sDBG, '0', vT + 1, vT)
A(f'''
s_mov_b64 exec, -1
L_ld2:
s_waitcnt vmcnt(0) lgkmcnt(0)
s_barrier
s_barrier
s_cmp_eq_u32 s{sB}, 0
s_cbranch_scc0 L_ld3
s_barrier
L_ld3:
v_mov_b32 v{vT + 1}, {L_RELAY}
s_cmp_eq_u32 s{sWv}, 4
s_cbranch_scc0 L_relay
s_lshl_b32 s{sT + 1}, 1, s{sRB}
s_or_b32 exec_lo, s{sT + 1}, 0xffff0000
s_mov_b32 exec_hi, 0xffff
''')
spin('s1', sWS, f's{sFG}', vFl, vT)
A(f'''
s_mov_b64 exec, -1
ds_write_b32 v{vT + 1}, v{vOne}
s_branch L_go
L_relay:
s_mov_b32 s{sSpin}, {OPT['spin'] * 16}
L_relay1:
ds_read_b32 v{vT}, v{vT + 1}
s_sub_u32 s{sSpin}, s{sSpin}, 1
s_waitcnt lgkmcnt(0)
s_cmp_eq_u32 s{sSpin}, 0
s_cbranch_scc1 L_go
v_cmp_ne_u32 vcc, 1, v{vT}
s_cbranch_vccnz L_relay1
L_go:
''')
stamp('s1_seen')
A(f'''
s_lshl_b32 s{sT}, s{sH}, 6
s_lshl_b32 s{sT + 1}, s{sRB}, 2
s_add_u32 s{sT + 1}, s{sT + 1}, s{sRT}
s_add_u32 s{sT + 1}, s{sT + 1}, s{sT}
s_lshl_b32 s{sT + 1}, s{sT + 1}, 11
s_lshl_b32 s{sT}, s{sRT}, 11
s_add_u32 m0, s{sT}, {L_Q}
s_lshl_b32 s{sM0}, s{sRT}, 12
buffer_load_dwordx4 v{vLin}, {sr(sWS, 4)}, s{sT + 1} offen sc1 lds
buffer_load_dwordx4 v{vLin}, {sr(sWS, 4)}, s{sT + 1} offen offset:1024 sc1 lds
''')
for c in range(2):
    for kh in range(2):
        A(f's_add_u32 m0, s{sM0}, {c * 32768 + kh * 16384}')
        A(f's_add_u32 s{sT + 2}, s{sKVo}, {(c * 16384 + (kh - 1) * 131072) & 0xffffffff}')
        for q in range(4):
            A(f'buffer_load_dwordx4 v{vLin}, {sr(sWS, 4)}, s{sT + 2} offen offset:{1024 * q} sc1 lds')
A(f'''
s_setprio 0
s_waitcnt vmcnt(8)
s_barrier
s_cmp_eq_u32 s{sB}, 0
s_cbranch_scc1 L_att
''')
vKa, vKb, vKc = 128, 160, 192
A(f'''
v_bfe_u32 v{vT}, v{vL}, 2, 2
v_lshl_add_u32 v{vT + 1}, v{vH}, 2, v{vT}      ; 4h + r
v_lshrrev_b32 v{vT + 2}, 1, v{vT + 1}          ; 2h + (r>>1)
v_bfe_u32 v{vT + 3}, v{vL}, 4, 1
v_and_b32 v{vT}, 2, v{vL}
v_or_b32 v{vT + 3}, v{vT + 3}, v{vT}           ; 2*a1 + a2
v_xor_b32 v{vT + 2}, v{vT + 2}, v{vT + 3}
v_lshlrev_b32 v{vT + 2}, 4, v{vT + 2}
v_lshl_add_u32 v{vT + 1}, v{vT + 1}, 6, v{vT + 2}
v_and_b32 v{vT}, 1, v{vL}
v_lshl_add_u32 v{vT + 1}, v{vT}, 3, v{vT + 1}
s_lshl_b32 s{sT}, s{sRT}, 13
s_add_u32 s{sT}, s{sT}, {L_PHI}
v_add_u32 v{vT + 1}, s{sT}, v{vT + 1}
s_lshr_b32 s{sT + 2}, s{sRT}, 1
s_lshl_b32 s{sT}, s{sT + 2}, 13
s_add_u32 s{sT}, s{sT}, {L_V}
v_add_u32 v{vT + 2}, s{sT}, v{vLin}
''')


def kv_reads(st):
    A(f'ds_read_b64_tr_b16 {vr(vKa + 4 * st, 2)}, v{vT + 1} offset:{(16 * st) * 64}')
    A(f'ds_read_b64_tr_b16 {vr(vKa + 4 * st + 2, 2)}, v{vT + 1} offset:{(16 * st + 8) * 64}')
    A(f'ds_read_b128 {vr(vKb + 4 * st, 4)}, v{vT + 2} offset:{st * 1024}')


for st in range(4):
    kv_reads(st)
for st in range(8):
    A(f's_waitcnt lgkmcnt({min(9, 3 * (7 - st))})')
    A(f'v_mfma_f32_32x32x16_bf16 {vr(vKc, 16)}, {vr(vKa + 4 * st, 4)}, {vr(vKb + 4 * st, 4)}, {vr(vKc, 16) if st else 0}')
    if st + 4 < 8:
        kv_reads(st + 4)
A(f'''
s_lshl_b32 s{sT}, s{sCG}, 1
s_add_u32 s{sT}, s{sT}, s{sT + 2}
s_lshl_b32 s{sT}, s{sT}, 4
s_add_u32 s{sT}, s{sT}, s{sRB1}
s_lshl_b32 s{sT}, s{sT}, 1
s_and_b32 s{sT + 1}, s{sRT}, 1
s_add_u32 s{sT}, s{sT}, s{sT + 1}
s_lshl_b32 s{sT}, s{sT}, 12
s_add_u32 s{sT}, s{sT}, {WS_KVP}
''')
for q in range(4):
    A(f'buffer_store_dwordx4 {vr(vKc + 4 * q, 4)}, v{vLin}, {sr(sWS, 4)}, s{sT} offen offset:{1024 * q} sc1')
A('s_branch L_att')

vXl, vWl = 16, 20
vFA, vFB = 24, 44
vAcc = 64
A(f'''
L_comp:
s_and_b32 s{sRH}, s{sWv}, 1
s_lshr_b32 s{sH1}, s{sWv}, 1
''')


vPf, sPf = 23, 101


def prefetch_setup():
    A(f"""
    s_and_b32 s{sT}, s{sJ}, 15
    v_lshrrev_b32 v{vT}, 4, v{vL}
    v_and_b32 v{vT + 1}, 15, v{vL}
    s_mov_b32 s{sX + 3}, 0x20000
    s_cmp_eq_u32 s{sRH}, 0
    s_cbranch_scc0 L_pfw
    v_mul_u32_u24 v{vT + 1}, 896, v{vT + 1}
    v_lshl_add_u32 v{vPf}, v{vT}, 7, v{vT + 1}
    s_lshl_b32 s{sT + 1}, s{sXc}, 4
    s_add_u32 s{sT}, s{sT}, s{sT + 1}
    s_mul_i32 s{sPf}, s{sT}, {16 * 896}
    s_mov_b32 s{sW}, 128
    s_mov_b32 s{sX + 2}, {2048 * 896}
    s_cmp_eq_u32 s{sB}, 0
    s_waitcnt lgkmcnt(0)
    s_cselect_b32 s{sX}, s4, s10
    s_cselect_b32 s{sX + 1}, s5, s11
    s_branch L_pfi
    L_pfw:
    v_min_u32 v{vT + 1}, 10, v{vT + 1}
    v_mul_u32_u24 v{vT}, {64 * 2688}, v{vT}
    v_lshl_add_u32 v{vPf}, v{vT + 1}, 7, v{vT}
    s_lshr_b32 s{sT + 1}, s{sXc}, 1
    s_lshl_b32 s{sT + 1}, s{sT + 1}, 4
    s_add_u32 s{sT}, s{sT}, s{sT + 1}
    s_mul_i32 s{sT}, s{sT}, 2688
    s_and_b32 s{sT + 1}, s{sXc}, 1
    s_mul_i32 s{sT + 1}, s{sT + 1}, 1280
    s_add_u32 s{sPf}, s{sT}, s{sT + 1}
    s_mov_b32 s{sW}, {64 * 2688}
    s_mov_b32 s{sX + 2}, {448 * 2688}
    s_cmp_eq_u32 s{sB}, 0
    s_waitcnt lgkmcnt(0)
    s_cselect_b32 s{sX}, s6, s12
    s_cselect_b32 s{sX + 1}, s7, s13
    L_pfi:
    """)


def prefetch(code):
    k0, n0, k1, n1 = (code >> 12) & 15, (code >> 8) & 15, (code >> 4) & 15, code & 15
    A(f"""
    s_cmp_eq_u32 s{sH1}, 0
    s_cselect_b32 s{sT}, {k0}, {k1}
    s_cselect_b32 s{sT + 1}, {64 - 16 * n0}, {64 - 16 * n1}
    s_mul_i32 s{sT}, s{sT}, s{sW}
    s_add_u32 s{sT}, s{sT}, s{sPf}
    s_lshr_b64 exec, -1, s{sT + 1}
    buffer_load_dword v15, v{vPf}, {sr(sX, 4)}, s{sT} offen {'nt' if OPT['pfnt'] else ''}
    s_mov_b64 exec, -1
    """)


if OPT['pfa'] or OPT['pfb']:
    prefetch_setup()
if OPT['pfa']:
    prefetch(OPT['pfa'])
A('s_waitcnt lgkmcnt(0)')
if OPT['pfc']:
    A(f'''
    s_cmp_eq_u32 s{sB}, 0
    s_cselect_b32 s{sX}, s4, s10
    s_cselect_b32 s{sX + 1}, s5, s11
    s_cselect_b32 s{sW}, s6, s12
    s_cselect_b32 s{sW + 1}, s7, s13
    s_mov_b32 s{sX + 2}, {2048 * 896}
    s_mov_b32 s{sX + 3}, 0x20000
    s_mov_b32 s{sW + 2}, {448 * 2688}
    s_mov_b32 s{sW + 3}, 0x20000
    ''')
    spf_setup()
    for kc in digits(OPT['pfc']):
        spf(kc)
common_setup()
A(f'''
s_cmp_eq_u32 s{sB}, 0
s_cbranch_scc1 L_nophi
s_lshl_b32 s{sT}, s{sWv}, 10
s_add_u32 m0, s{sT}, {L_WPHI}
s_mul_i32 s{sT + 1}, s{sCG}, 3136
s_add_u32 s{sT}, s{sT}, s{sT + 1}
buffer_load_dwordx4 v{vLin}, {sr(sPHI, 4)}, s{sT} offen lds
L_nophi:
s_cmp_eq_u32 s{sWv}, 1
s_cbranch_scc0 L_nopf
s_getpc_b64 s[{sT}:{sT + 1}]
L_pc:
s_sub_u32 s{sT}, s{sT}, L_pc-L_ld
s_subb_u32 s{sT + 1}, s{sT + 1}, 0
s_lshl_b32 s{sT + 2}, s{sJ}, 10
s_cmp_lt_u32 s{sT + 2}, L_end-L_ld
s_cbranch_scc0 L_nopf
s_add_u32 s{sT}, s{sT}, s{sT + 2}
s_addc_u32 s{sT + 1}, s{sT + 1}, 0
global_load_dword v14, v{vLin}, s[{sT}:{sT + 1}]
L_nopf:
s_cmp_eq_u32 s{sWv}, 0
s_cbranch_scc0 L_noinit
v_mov_b32 v{vT}, 0
v_mov_b32 v{vT + 1}, {L_RELAY}
ds_write_b32 v{vT + 1}, v{vT}
ds_write_b32 v{vT + 1}, v{vT} offset:4
''')
A(f'''
L_noinit:
v_and_b32 v{vT}, 31, v{vL}
v_bfe_u32 v{vT + 1}, v{vL}, 1, 3
v_xor_b32 v{vT + 1}, v{vT + 1}, v{vH}
v_lshlrev_b32 v{vT + 1}, 4, v{vT + 1}
s_lshl_b32 s{sT}, s{sRH}, 6
v_add_u32 v{vT}, s{sT}, v{vT}
v_lshl_add_u32 v{vXl}, v{vT}, 7, v{vT + 1}
v_xor_b32 v{vXl + 1}, 32, v{vXl}
v_xor_b32 v{vXl + 2}, 64, v{vXl}
v_xor_b32 v{vXl + 3}, 0x60, v{vXl}
v_bfe_u32 v{vT}, v{vL}, 2, 2
v_lshl_add_u32 v{vT + 1}, v{vH}, 3, v{vT}
v_mul_u32_u24 v{vT + 1}, 384, v{vT + 1}
v_lshrrev_b32 v{vT}, 1, v{vT}
v_bfe_u32 v{vT + 2}, v{vL}, 4, 1
v_and_b32 v{vT + 3}, 3, v{vL}
v_lshl_add_u32 v{vT + 2}, v{vT + 2}, 2, v{vT + 3}
v_add_u32 v{vT + 5}, 1, v{vT + 2}
v_and_b32 v{vT + 5}, 8, v{vT + 5}
v_lshlrev_b32 v{vT}, 3, v{vT}
''')
for i in range(3):
    A(f'''
    s_mul_i32 s{sT}, s{sH1}, 3
    s_add_u32 s{sT}, s{sT}, {i}
    s_add_u32 s{sT + 1}, s{sH1}, {2 * i}
    s_cmp_eq_u32 s{sB}, 0
    s_cselect_b32 s{sT}, s{sT}, s{sT + 1}
    s_and_b32 s{sT + 1}, s{sT}, 1
    s_lshr_b32 s{sT}, s{sT}, 1
    s_lshl_b32 s{sT}, s{sT}, 7
    s_add_u32 s{sT}, s{sT}, 16384
    s_xor_b32 s{sT + 2}, s{sT + 1}, 1
    s_mul_i32 s{sT + 1}, s{sT + 1}, 7
    v_mad_u32_u24 v{vT + 3}, v{vT + 5}, s{sT + 2}, v{vT + 2}
    v_add_u32 v{vT + 3}, s{sT + 1}, v{vT + 3}
    v_xor_b32 v{vT + 3}, v{vT + 3}, v{vT}
    v_lshl_add_u32 v{vT + 3}, v{vT + 3}, 3, v{vT + 1}
    v_add_u32 v{vWl + i}, s{sT}, v{vT + 3}
    ''')
A(f'''
s_lshl_b32 s{sT + 8}, s{sCG}, 1
s_add_u32 s{sT + 8}, s{sT + 8}, s{sH1}
''')
for i in range(3):
    A(f'''
    s_mul_i32 s{sT}, s{sT + 8}, 3
    s_add_u32 s{sT}, s{sT}, {i}
    s_lshr_b32 s{sT}, s{sT}, 4
    s_cmp_eq_u32 s{sB}, 0
    s_cselect_b32 s{sT}, s{sT}, {i & 2}
    v_mov_b32 v{vT}, 0
    s_cmp_eq_u32 s{sT}, 2
    s_cselect_b64 exec, {sr(sOnesM, 2)}, 0
    v_mov_b32 v{vT}, 1.0
    s_mov_b64 exec, -1
    v_mov_b32 v{vT + 1}, v{vT}
    s_cmp_eq_u32 s{sT}, 1
    s_cselect_b64 exec, {sr(sHi, 2)}, 0
    v_mov_b32 v{vT + 1}, 1.0
    s_mov_b64 exec, -1
    ''')
    for r in range(32):
        A(f'v_mov_b32 v{vAcc + 32 * i + r}, v{vT + 1 if (r & 15) in (12, 13, 14) else vT}')


def p1_read_list(s, F):
    r = [f'ds_read_b128 {vr(F, 4)}, v{vXl + s}']
    for i in range(3):
        for u in range(2):
            r.append(f'ds_read_b64_tr_b16 {vr(F + 8 + 4 * i + 2 * u, 2)}, v{vWl + i} offset:{(16 * s + 4 * u) * 384}')
        if i == 0:
            r.append(f'ds_read_b128 {vr(F + 4, 4)}, v{vXl + s} offset:4096')
    return r


def p1_step(F, var, reads, extra=()):
    reads = list(reads)
    extra = list(extra)
    n = 0
    for i in range(3):
        for a in range(2):
            w, x, acc = vr(F + 8 + 4 * i, 4), vr(F + 4 * a, 4), vr(vAcc + 32 * i + 16 * a, 16)
            p, q = (w, x) if var[i] == 'T' else (x, w)
            A(f'v_mfma_f32_32x32x16_bf16 {acc}, {p}, {q}, {acc}')
            if n < 3:
                for r in reads[3 * n:3 * n + 3]:
                    A(r)
            else:
                for r in extra[4 * (n - 3):4 * (n - 3) + 4]:
                    A(r)
            n += 1


if OPT['pfb']:
    prefetch(OPT['pfb'])
A(f'''
s_mov_b32 s{sC}, 0
s_mov_b32 s{sSlot}, 0
s_cmp_eq_u32 s{sB}, 0
s_cselect_b32 s{sT}, s{sT + 8}, 10
s_waitcnt lgkmcnt(0)
s_barrier
''')
stamp('p1_first')
for r in p1_read_list(0, vFA):
    A(r)
A(f'''
s_or_b32 s{sT + 1}, s{sJI}, s{sWv}
s_cbranch_scc1 L_nosig0
s_and_b32 s{sT + 1}, s2, 31
s_lshl_b32 s{sT + 1}, s{sT + 1}, 2
s_mov_b64 exec, 1
buffer_store_dword v{vOne}, v{vL}, {sr(sDBG, 4)}, s{sT + 1} offen sc1
s_mov_b64 exec, -1
L_nosig0:
s_cmp_eq_u32 s{sT}, 10
s_cbranch_scc1 L_p1_TTN
s_cmp_gt_u32 s{sT}, 10
s_cbranch_scc1 L_p1_NNN
''')
for var in ('TTT', 'TTN', 'NNN'):
    A('.p2align 3')
    A(f'L_p1_{var}:')
    A('s_waitcnt lgkmcnt(0)')
    A(f's_add_u32 s{sC}, s{sC}, 1')
    p1_step(vFA, var, p1_read_list(1, vFB),
            [f's_add_u32 s{sSlot}, s{sSlot}, 1', f's_cmp_eq_u32 s{sSlot}, 3', f's_cselect_b32 s{sSlot}, 0, s{sSlot}',
             f's_cselect_b32 s{sT}, -2, 1', f's_mul_i32 s{sT}, s{sT}, {SLOT}'])
    A('s_waitcnt lgkmcnt(0)')
    A('s_nop 0')
    p1_step(vFB, var, p1_read_list(2, vFA))
    A('s_waitcnt lgkmcnt(0)')
    A('s_nop 0')
    p1_step(vFA, var, p1_read_list(3, vFB), [f'v_add_u32 v{vXl + i}, s{sT}, v{vXl + i}' for i in range(7)] + ['s_nop 0'])
    A('s_waitcnt lgkmcnt(0)')
    A('s_barrier')
    p1_step(vFB, var, p1_read_list(0, vFA))
    A(f's_cmp_eq_u32 s{sC}, 4')
    A(f's_cbranch_scc1 L_p1h_{var}')
    A(f's_cmp_lt_u32 s{sC}, 7')
    A(f's_cbranch_scc1 L_p1_{var}')
    A('s_branch L_p1_done')
    A(f'''
    L_p1h_{var}:
    s_waitcnt vmcnt(0)
    s_branch L_p1_{var}
    ''')
A('L_p1_done:')
stamp('p1_done')
A(f'''
s_lshl_b32 s{sT + 4}, s{sRB1}, 1
s_add_u32 s{sT + 4}, s{sT + 4}, s{sRH}
s_lshl_b32 s{sT + 4}, s{sT + 4}, 1
s_waitcnt lgkmcnt(0)
s_cmp_eq_u32 s{sB}, 0
s_cbranch_scc0 L_epiB
''')
vP = 16
A(f'''
v_and_b32 v{vT}, 0x33, v{vL}
v_bfe_u32 v{vT + 1}, v{vL}, 2, 1
v_bfe_u32 v{vT + 2}, v{vL}, 3, 1
v_lshl_add_u32 v{vT}, v{vT + 1}, 3, v{vT}
v_lshl_add_u32 v{vT}, v{vT + 2}, 2, v{vT}
v_lshlrev_b32 v{vT}, 4, v{vT}
s_mov_b32 s{sT + 6}, {f32(QSCALE)}
s_mov_b32 s{sT + 7}, {f32(QSCALE)}
s_mul_i32 s{sT + 8}, s{sT + 8}, 3
''')
for i in range(3):
    acc, P = vAcc + 32 * i, vP + 16 * i
    A(f'''
    s_add_u32 s{sT}, s{sT + 8}, {i}
    s_and_b32 s{sT + 1}, s{sT}, 15
    s_lshl_b32 s{sT + 1}, s{sT + 1}, 6
    s_add_u32 s{sT + 1}, s{sT + 1}, s{sT + 4}
    s_lshr_b32 s{sT}, s{sT}, 4
    s_cmp_eq_u32 s{sT}, 1
    s_cselect_b64 vcc, -1, 0
    s_cmp_eq_u32 s{sT}, 0
    s_cbranch_scc0 L_eA_kv{i}
    s_lshl_b32 s{sT + 1}, s{sT + 1}, 11
    s_add_u32 s{sT + 2}, s{sT + 1}, 2048
    ''')
    for r in range(0, 32, 2):
        A(f'v_pk_mul_f32 {vr(acc + r, 2)}, {vr(acc + r, 2)}, {sr(sT + 6, 2)}')
    A(f'''
    s_branch L_eA_n{i}
    L_eA_kv{i}:
    s_lshl_b32 s{sT + 1}, s{sT + 1}, 1
    s_add_u32 s{sT + 1}, s{sT + 1}, s{sT}
    s_lshl_b32 s{sT + 1}, s{sT + 1}, 11
    s_add_u32 s{sT + 2}, s{sT + 1}, {WS_KV - 2048 + 4096}
    s_add_u32 s{sT + 1}, s{sT + 1}, {WS_KV - 2048}
    L_eA_n{i}:
    v_cndmask_b32 v{vT + 1}, v{vLin}, v{vT}, vcc
    ''')
    for q in range(4):
        for r in range(4 * q, 4 * q + 4):
            A(f'v_cvt_pk_bf16_f32 v{P + r}, v{acc + 2 * r}, v{acc + 2 * r + 1}')
        A(f'buffer_store_dwordx4 {vr(P + 4 * q, 4)}, v{vT + 1}, {sr(sWS, 4)}, s{sT + 1 + (q >> 1)} offen offset:{1024 * (q & 1)} sc1')
stamp('epi_done')
A(f'''
s_mul_i32 s{sT}, s{sCG}, 3
v_add_u32 v{vT}, s{sT}, v{vL}
v_and_b32 v{vT + 1}, 7, v{vT}
v_lshrrev_b32 v{vT}, 3, v{vT}
v_mul_u32_u24 v{vT + 1}, {FGRP}, v{vT + 1}
v_lshl_add_u32 v{vT + 2}, v{vT}, 11, v{vT + 1}
s_lshl_b32 s{sT}, s{sRB1}, 7
s_add_u32 s{sT}, s{sT}, {WS_FL + F_A}
s_waitcnt vmcnt(0)
s_barrier
s_cmp_eq_u32 s{sWv}, 0
s_cbranch_scc0 L_k0
s_mov_b64 exec, 7
buffer_store_dword v{vOne}, v{vT + 2}, {sr(sWS, 4)}, s{sT} offen sc1
s_mov_b64 exec, -1
''')
stamp('sigA')
A('s_branch L_k0')
pK, pQ, pV, vWF, vX, vU = 16, 32, 48, 160, 168, 200
A('L_epiB:')
wphi_addr(vU, vU + 1)
A(f'''
s_mul_i32 s{sT}, s{sH1}, 1568
s_add_u32 s{sT}, s{sT}, {L_WPHI}
v_add_u32 v{vU}, s{sT}, v{vU}
''')
for q in range(4):
    A(f'ds_read_b64_tr_b16 {vr(vWF + 2 * q, 2)}, v{vU} offset:{8 * q * 56}')
cvt8(pK, vAcc + 32)
cvt8(pK + 8, vAcc + 48)
A(f'''
s_lshl_b32 s{sT + 1}, s{sT + 8}, 6
s_add_u32 s{sT + 1}, s{sT + 1}, s{sT + 4}
s_lshl_b32 s{sT + 1}, s{sT + 1}, 11
s_add_u32 s{sT + 1}, s{sT + 1}, {WS_QB}
s_waitcnt lgkmcnt(0)
''')
for a in range(2):
    A(f'v_mfma_f32_32x32x16_bf16 {vr(vX + 16 * a, 16)}, {vr(vWF, 4)}, {vr(pK + 8 * a, 4)}, 0')
    for i in range(4):
        A(f'v_cvt_pk_bf16_f32 v{pV + 8 * a + i}, v{vAcc + 64 + 16 * a + 2 * i}, v{vAcc + 64 + 16 * a + 2 * i + 1}')
    A(f'v_mfma_f32_32x32x16_bf16 {vr(vX + 16 * a, 16)}, {vr(vWF + 4, 4)}, {vr(pK + 8 * a + 4, 4)}, {vr(vX + 16 * a, 16)}')
    for i in range(4, 8):
        A(f'v_cvt_pk_bf16_f32 v{pV + 8 * a + i}, v{vAcc + 64 + 16 * a + 2 * i}, v{vAcc + 64 + 16 * a + 2 * i + 1}')
cvt8(pQ, vAcc)
cvt8(pQ + 8, vAcc + 16)
for q in range(4):
    A(f'buffer_store_dwordx4 {vr(pQ + 4 * q, 4)}, v{vLin}, {sr(sWS, 4)}, s{sT + 1} offen offset:{1024 * q} sc1')
A(f'''
s_lshl_b32 s{sT}, s{sWv}, 12
s_add_u32 s{sT}, s{sT}, {L_V}
v_add_u32 v{vU}, s{sT}, v{vLin}
''')
for q in range(4):
    A(f'ds_write_b128 v{vU}, {vr(pV + 4 * q, 4)} offset:{1024 * q}')
tiles = [(vX + 16 * a, vAcc + 16 * a, vAcc + 32 + 16 * a, vT + 4 * a) for a in range(2)]
features(tiles)
for X, Ep, En, t in tiles:
    A(f'v_pk_add_f32 {vr(t, 2)}, {vr(Ep, 2)}, {vr(Ep + 2, 2)}')
    A(f'v_pk_add_f32 {vr(t + 2, 2)}, {vr(En, 2)}, {vr(En + 2, 2)}')
for r in range(4, 16, 2):
    for X, Ep, En, t in tiles:
        A(f'v_pk_add_f32 {vr(t, 2)}, {vr(t, 2)}, {vr(Ep + r, 2)}')
        A(f'v_pk_add_f32 {vr(t + 2, 2)}, {vr(t + 2, 2)}, {vr(En + r, 2)}')
for X, Ep, En, t in tiles:
    A(f'v_add_f32 v{t}, v{t}, v{t + 1}')
    A(f'v_add_f32 v{t + 2}, v{t + 2}, v{t + 3}')
A(f'''
v_and_b32 v{vU}, 31, v{vL}
v_bfe_u32 v{vU + 1}, v{vL}, 1, 2
''')
for X, Ep, En, t in tiles:
    A(f'v_permlane32_swap_b32 v{t}, v{t + 2}')
for X, Ep, En, t in tiles:
    A(f'v_add_f32 v{t}, v{t}, v{t + 2}')
for X, Ep, En, t in tiles:
    A(f'v_rcp_f32 v{t}, v{t}')
A(f'''
v_lshlrev_b32 v{vU + 2}, 1, v{vH}
''')
for X, Ep, En, t in tiles:
    A(f'v_mov_b32 v{t + 2}, v{t}')
A(f'''
v_xor_b32 v{vU + 1}, v{vU + 1}, v{vU + 2}
v_lshlrev_b32 v{vU + 1}, 4, v{vU + 1}
''')
for X, Ep, En, t in tiles:
    A(f'v_permlane32_swap_b32 v{t}, v{t + 2}')
A(f'''
v_lshl_add_u32 v{vU}, v{vU}, 6, v{vU + 1}
s_lshl_b32 s{sT}, s{sH1}, 14
s_lshl_b32 s{sT + 1}, s{sRH}, 12
s_add_u32 s{sT}, s{sT}, s{sT + 1}
s_add_u32 s{sT}, s{sT}, {L_PHI}
v_add_u32 v{vU}, s{sT}, v{vU}
v_xor_b32 v{vU + 1}, 16, v{vU}
''')
for a, (X, Ep, En, t) in enumerate(tiles):
    for sg, (E, s_) in enumerate(((Ep, t), (En, t + 2))):
        for r in range(0, 16, 2):
            A(f'v_pk_mul_f32 {vr(E + r, 2)}, {vr(E + r, 2)}, {vr(s_, 2)} op_sel_hi:[1,0]')
        P = X + 8 * sg
        cvt8(P, E)
        A(f'ds_write_b128 v{vU}, {vr(P, 4)} offset:{8192 * sg + 2048 * a}')
        A(f'ds_write_b128 v{vU + 1}, {vr(P + 4, 4)} offset:{8192 * sg + 2048 * a}')
stamp('epi_done')
A(f'''
s_waitcnt lgkmcnt(0)
L_k0:
s_barrier
''')
vQ, vO, vS, vPp, vF, vIdx, vFg, vRd = 16, 24, 40, 72, 88, 120, 121, 122
vEp, vEn, vNp, vNn, vQB, vWF2, vKVF, vSlA, vWoG = 124, 140, 156, 172, 188, 196, 204, 14, 15
vSl, vX2, vOA = 220, vNp, 252
A('L_att:')
stamp('k0')


def kv_issue(c):
    for kh in range(2):
        A(f's_add_u32 m0, s{sM0}, {(c % 4) * 32768 + kh * 16384}')
        A(f's_add_u32 s{sT + 2}, s{sKVo}, {c * 16384 + kh * 131072}')
        for q in range(4):
            A(f'buffer_load_dwordx4 v{vLin}, {sr(sWS, 4)}, s{sT + 2} offen offset:{1024 * q} sc1 lds')


def lds_frag(dst, t, piece):
    off = ((t >> 2) % 4) * 32768 + (t & 3) * 4096 + piece * 1024
    A(f'ds_read_b128 {vr(dst, 4)}, v{vRd + (off >> 16)} offset:{off & 0xffff}')


def set_qpad(m, t):
    A(f'''
    v_and_b32 v{t}, 0xffff0000, v{m}
    v_sub_f32 v{t + 1}, v{m}, v{t}
    v_and_b32 v{t + 2}, 0xffff0000, v{t + 1}
    v_sub_f32 v{t + 1}, v{t + 1}, v{t + 2}
    v_lshrrev_b32 v{t}, 16, v{t}
    s_mov_b64 exec, {sr(sHi, 2)}
    v_or_b32 v{vQ + 6}, v{t}, v{t + 2}
    v_lshrrev_b32 v{vQ + 7}, 16, v{t + 1}
    s_mov_b64 exec, -1
    ''')


def qk(S, K_, half):
    c = vr(S, 16) if half else '0'
    A(f'v_mfma_f32_32x32x16_bf16 {vr(S, 16)}, {vr(K_, 4)}, {vr(vQ + 4 * half, 4)}, {c}')


def pv(V, half):
    A(f'v_smfmac_f32_32x32x32_bf16 {vr(vO, 16)}, {vr(V, 4)}, {vr(vPp + 8 * half, 8)}, v{vIdx}')


A(f'''
s_lshl_b32 s{sT}, s{sRT}, 11
s_add_u32 s{sT}, s{sT}, {L_Q}
v_add_u32 v{vT}, s{sT}, v{vLin}
s_lshl_b32 s{sT}, s{sHH}, 14
v_add_u32 v{vRd}, s{sT}, v{vLin}
ds_read_b128 {vr(vQ, 4)}, v{vT}
ds_read_b128 {vr(vPp, 4)}, v{vLin}
ds_read_b128 {vr(vQ + 4, 4)}, v{vT} offset:1024
ds_read_b128 {vr(vPp + 4, 4)}, v{vLin} offset:1024
''')
lds_frag(vF + 16, 0, 0)
lds_frag(vF + 20, 0, 1)
lds_frag(vF, 1, 0)
lds_frag(vF + 4, 1, 1)
lds_frag(vF + 12, 0, 2)
A(f'''
v_add_u32 v{vRd + 1}, 0x10000, v{vRd}
v_mov_b32 v{vIdx}, 0xdddddddd
s_lshl_b32 s{sM0}, s{sWv}, 12
s_waitcnt lgkmcnt(7)
''')
qk(vS + 16, vPp, 0)
A('s_waitcnt lgkmcnt(5)')
qk(vS + 16, vPp + 4, 1)
A('s_waitcnt lgkmcnt(4)')
qk(vS, vF + 16, 0)
for r in range(16):
    A(f'v_mov_b32 v{vO + r}, 0')
S = vS + 16
A(f'v_max3_f32 v{vT}, v{S}, v{S + 1}, v{S + 2}')
A(f'v_max3_f32 v{vT + 1}, v{S + 3}, v{S + 4}, v{S + 5}')
A(f'v_max3_f32 v{vT}, v{vT}, v{S + 6}, v{S + 7}')
A(f'v_max3_f32 v{vT + 1}, v{vT + 1}, v{S + 8}, v{S + 9}')
A(f'v_max3_f32 v{vT}, v{vT}, v{S + 10}, v{S + 11}')
A(f'v_max3_f32 v{vT + 1}, v{vT + 1}, v{S + 12}, v{S + 13}')
A(f'v_max3_f32 v{vT}, v{vT}, v{S + 14}, v{S + 15}')
A(f'''
v_max_f32 v{vT}, v{vT}, v{vT + 1}
v_mov_b32 v{vT + 1}, v{vT}
v_permlane32_swap_b32 v{vT}, v{vT + 1}
v_max_f32 v{vT}, v{vT}, v{vT + 1}
v_sub_f32 v{vT}, {f32(-float(OPT['moff']) if not OPT['force_fb'] else 200.0)}, v{vT}
''')
set_qpad(vT, vT + 1)
A('s_waitcnt lgkmcnt(3)')
qk(vS, vF + 20, 1)
A(f'''
v_lshrrev_b32 v{vT}, 3, v{vL}
v_mul_u32_u24 v{vT}, 896, v{vT}
v_lshrrev_b32 v{vT + 1}, 4, v{vL}
v_lshlrev_b32 v{vT + 1}, 1, v{vT + 1}
v_and_b32 v{vT + 2}, 7, v{vL}
v_xor_b32 v{vT + 1}, v{vT + 1}, v{vT + 2}
v_lshl_add_u32 v{vWoG}, v{vT + 1}, 4, v{vT}
s_nop 0
''')


def wo_issue(srd_, lds_base, first, n, per_wave, wave_s):
    A(f's_mul_i32 s{sT + 3}, s{wave_s}, {per_wave * 1024}')
    A(f's_mul_i32 s{sT + 4}, s{wave_s}, {per_wave * 7168}')
    A(f's_lshl_b32 s{sT + 5}, s{sCB}, 7')
    A(f's_add_u32 s{sT + 4}, s{sT + 4}, s{sT + 5}')
    for i in range(n):
        if i % 4 == 0:
            A(f's_add_u32 m0, s{sT + 3}, {lds_base + (first + i) * 1024}')
        A(f's_add_u32 s{sT + 5}, s{sT + 4}, {(first + i) * 7168 - (i % 4) * 1024}')
        A(f'buffer_load_dwordx4 v{vWoG}, {sr(srd_, 4)}, s{sT + 5} offen offset:{(i % 4) * 1024} lds')


def guard(tag, cmp_, body):
    A(cmp_)
    A(f's_cbranch_scc0 L_g_{tag}')
    body()
    A(f'L_g_{tag}:')


def o_addr(br):
    A(f"""
    v_bfe_u32 v{vT}, v{vL}, 4, 1
    v_and_b32 v{vOA}, 15, v{vL}
    v_lshlrev_b32 v{vOA}, 4, v{vOA}
    v_lshl_add_u32 v{vOA}, v{vT}, 10, v{vOA}
    v_lshl_add_u32 v{vOA}, v{vH}, 8, v{vOA}
    s_lshl_b32 s{sT + 6}, s{sRB}, 2
    s_add_u32 s{sT + 6}, s{sT + 6}, s{sRT}
    s_lshl_b32 s{sT + 7}, s{sT + 6}, 4
    s_add_u32 s{sT + 7}, s{sT + 7}, s{sH}
    s_and_b32 s{sT + 8}, s{sT + 7}, 127
    s_lshl_b32 s{sT + 7}, s{sT + 7}, 11
    s_lshl_b32 s{sT + 8}, s{sT + 8}, 7
    s_lshr_b32 s{sT + 6}, s{sT + 6}, 3
    s_mul_i32 s{sT + 6}, s{sT + 6}, {FGRP}
    s_add_u32 s{sT + 8}, s{sT + 8}, s{sT + 6}
    s_add_u32 s{sT + 7}, s{sT + 7}, {WS_O + 0x200000 * br}
    s_add_u32 s{sT + 8}, s{sT + 8}, {WS_FL + F_O + 128 * 128 * br}
    """)


def signal(addr):
    A(f"""
    s_mov_b64 exec, 1
    buffer_store_dword v{vOne}, v{vL}, {sr(sWS, 4)}, {addr} offen sc1
    s_mov_b64 exec, -1
    """)


def sample(addr):
    A(f"""
    s_mov_b64 exec, 0xffff
    buffer_load_dword v{vFg}, v{vFl}, {sr(sWS, 4)}, {addr} offen sc1
    s_mov_b64 exec, -1
    """)


def check(tag, addr):
    A('s_mov_b64 exec, 0xffff')
    spin(tag, sWS, addr, vFl, vFg, preloaded=True)
    A('s_mov_b64 exec, -1')


def p3_flag_addr(d):
    A(f"""
    s_lshr_b32 s{sT}, s{sRT}, 1
    s_lshl_b32 s{d}, s{sRB64}, 1
    s_add_u32 s{d}, s{d}, s{sT}
    s_and_b32 s{d}, s{d}, 7
    s_xor_b32 s{sT}, s{sHH}, 1
    s_lshl_b32 s{sT}, s{sT}, 3
    s_add_u32 s{d}, s{d}, s{sT}
    s_lshl_b32 s{d}, s{d}, 11
    s_add_u32 s{d}, s{d}, s{sFG}
    s_add_u32 s{d}, s{d}, {F_O}
    """)


W0 = f's_cmp_eq_u32 s{sWv}, 0'
W03 = f's_cmp_lt_u32 s{sWv}, 4'


def hook_end(k):
    if k:
        A('s_waitcnt vmcnt(0)')
    if k == 0:
        def b():
            A(f"""
            s_lshl_b32 s{sT + 1}, s{sWv}, 10
            s_add_u32 m0, s{sT + 1}, {L_WPHI}
            s_mul_i32 s{sT + 2}, s{sH}, 1568
            s_add_u32 s{sT + 2}, s{sT + 2}, s{sT + 1}
            buffer_load_dwordx4 v{vLin}, {sr(sPHI, 4)}, s{sT + 2} offen lds
            """)
        guard('e0', f's_cmp_lt_u32 s{sWv}, 2', b)
    if k == 2:
        def b():
            check('fb', f's{sT + 9}')
            A(f"""
            v_bfe_u32 v{vT}, v{vL}, 1, 1
            v_and_b32 v{vT + 1}, 1, v{vL}
            v_lshrrev_b32 v{vSlA}, 2, v{vL}
            v_lshlrev_b32 v{vSlA}, 4, v{vSlA}
            v_lshl_add_u32 v{vSlA}, v{vT}, 10, v{vSlA}
            v_lshl_add_u32 v{vSlA}, v{vT + 1}, 3, v{vSlA}
            s_lshr_b32 s{sT}, s{sRB}, 2
            s_lshl_b32 s{sT}, s{sT}, 11
            s_and_b32 s{sT + 1}, s{sRB}, 3
            s_lshl_b32 s{sT + 1}, s{sT + 1}, 8
            s_add_u32 s{sT}, s{sT}, s{sT + 1}
            s_lshl_b32 s{sT + 1}, s{sH}, 17
            s_add_u32 s{sT}, s{sT}, s{sT + 1}
            s_add_u32 s{sT}, s{sT}, {WS_KVP}
            """)
            for p in range(16):
                A(f'buffer_load_dwordx2 {vr(vSl + 2 * p, 2)}, v{vSlA}, {sr(sWS, 4)}, s{sT} offen sc1')
                if p < 15:
                    A(f's_add_u32 s{sT}, s{sT}, 8192')
        guard('e2', W0, b)
    if k == 3:
        def b():
            n = 8
            while n:
                for p in range(n):
                    A(f'v_pk_add_f32 {vr(vSl + 2 * p, 2)}, {vr(vSl + 2 * p, 2)}, {vr(vSl + 2 * (p + n), 2)}')
                n //= 2
            A(f"""
            s_lshl_b32 s{sT}, s{sH}, 4
            s_add_u32 s{sT}, s{sT}, s{sRB}
            s_lshl_b32 s{sT}, s{sT}, 8
            s_add_u32 s{sT}, s{sT}, {WS_KVF}
            v_cvt_pk_bf16_f32 v{vSl}, v{vSl}, v{vSl + 1}
            v_lshlrev_b32 v{vSlA}, 2, v{vL}
            s_bitcmp1_b32 s{sRB}, 0
            s_cselect_b32 exec_hi, 0x00f00000, 0
            s_mov_b32 exec_lo, 0
            v_mov_b32 v{vSl}, 0x3f803f80
            s_mov_b64 exec, -1
            buffer_store_dword v{vSl}, v{vSlA}, {sr(sWS, 4)}, s{sT} offen sc1
            """)
        guard('e3', W0, b)
        wphi_addr(vT + 2, vT + 3)
        A(f'v_add_u32 v{vT + 2}, {L_WPHI}, v{vT + 2}')
        for q in range(4):
            A(f'ds_read_b64_tr_b16 {vr(vWF2 + 2 * q, 2)}, v{vT + 2} offset:{8 * q * 56}')
    if k == 4:
        A(f'v_mfma_f32_32x32x16_bf16 {vr(vX2, 16)}, {vr(vWF2, 4)}, {vr(vQB, 4)}, 0')
        A(f'v_mfma_f32_32x32x16_bf16 {vr(vX2, 16)}, {vr(vWF2 + 4, 4)}, {vr(vQB + 4, 4)}, {vr(vX2, 16)}')
    if k == 5:
        check('fk', f's{sT + 9}')
        A(f's_lshl_b32 s{sT}, s{sH}, 12')
        A(f's_add_u32 s{sT}, s{sT}, {WS_KVF}')
        for q in range(4):
            A(f'buffer_load_dwordx4 {vr(vKVF + 4 * q, 4)}, v{vLin}, {sr(sWS, 4)}, s{sT} offen offset:{1024 * q} sc1')
        for r in range(32):
            A(f'v_mov_b32 v{vNp + r}, 0')
    if k == 6:
        for m in range(2):
            A(f'v_smfmac_f32_32x32x32_bf16 {vr(vNp, 16)}, {vr(vKVF + 4 * m, 4)}, {vr(vEp + 8 * m, 8)}, v{vIdx}')
        for m in range(2):
            A(f'v_smfmac_f32_32x32x32_bf16 {vr(vNn, 16)}, {vr(vKVF + 8 + 4 * m, 4)}, {vr(vEn + 8 * m, 8)}, v{vIdx}')
        o_addr(1)
        ap, an = vT + 4, vT + 6
        A(f"""
        v_mov_b32 v{vT}, {f32(1e-6)}
        v_rcp_f32 v{ap}, v{vNp + 13}
        v_rcp_f32 v{an}, v{vNn + 13}
        v_fmac_f32 v{vT}, v{vNp + 12}, v{ap}
        v_fmac_f32 v{vT}, v{vNn + 12}, v{an}
        v_rcp_f32 v{vT}, v{vT}
        v_mul_f32 v{ap}, v{ap}, v{vT}
        v_mul_f32 v{an}, v{an}, v{vT}
        v_mov_b32 v{vT}, v{ap}
        v_mov_b32 v{vT + 1}, v{an}
        v_permlane32_swap_b32 v{vT}, v{ap}
        v_permlane32_swap_b32 v{vT + 1}, v{an}
        """)
        for r in range(0, 16, 2):
            A(f'v_pk_mul_f32 {vr(vNp + r, 2)}, {vr(vNp + r, 2)}, {vr(ap, 2)} op_sel_hi:[1,0]')
        for r in range(0, 16, 2):
            A(f'v_pk_fma_f32 {vr(vNp + r, 2)}, {vr(vNn + r, 2)}, {vr(an, 2)}, {vr(vNp + r, 2)} op_sel_hi:[1,0,1]')
        cvt8(vEp, vNp)
        A(f"""
        s_mov_b64 exec, {sr(sHi, 2)}
        v_mov_b32 v{vEp + 6}, 0
        v_mov_b32 v{vEp + 7}, 0
        s_mov_b64 exec, -1
        buffer_store_dwordx4 {vr(vEp, 4)}, v{vOA}, {sr(sWS, 4)}, s{sT + 7} offen sc1
        buffer_store_dwordx4 {vr(vEp + 4, 4)}, v{vOA}, {sr(sWS, 4)}, s{sT + 7} offen offset:512 sc1
        """)
        wo_issue(sWOB, L_WOB, 0, 8, 8, sWv)
    if k <= 5:
        kv_issue(k + 2)
    if k == 4:
        features([(vX2, vEp, vEn, vT + 4)])


def hook_mid(t):
    n0 = len(A.lines)
    if t == 2:
        def b():
            A(f"""
            s_mul_i32 s{sT}, s{sCG}, {FGRP}
            s_lshl_b32 s{sT + 1}, s{sRB1}, 7
            s_add_u32 s{sT}, s{sT}, s{sT + 1}
            s_add_u32 s{sT}, s{sT}, {WS_FL + F_B}
            """)
            signal(f's{sT}')
        guard('m2', f's_cmp_lt_u32 s{sWv}, s{sB}', b)
    if t in (3, 7) and OPT['wpf']:
        def b():
            A(f"""
            s_lshl_b32 s{sT}, s{sRT}, 5
            s_add_u32 s{sT}, s{sT}, s{sJ}
            s_lshl_b32 s{sT}, s{sT}, 12
            s_mov_b32 exec_hi, 0
            buffer_load_dword v{vFg}, v{vFl}, {sr(sWOB if t == 3 else sWOA, 4)}, s{sT} offen
            s_mov_b32 exec_hi, -1
            """)
        guard(f'm{t}', f's_cmp_ge_u32 s{sWv}, 4', b)
    if t == 8:
        def b():
            A(f's_add_u32 s{sT + 9}, s{sFG}, {F_B}')
            sample(f's{sT + 9}')
        guard('m8', W0, b)
    if t == 12:
        def b():
            A(f"""
            s_lshl_b32 s{sT}, s{sH}, 6
            s_lshl_b32 s{sT + 1}, s{sRB}, 2
            s_add_u32 s{sT}, s{sT}, s{sT + 1}
            s_add_u32 s{sT}, s{sT}, s{sRT}
            s_lshl_b32 s{sT}, s{sT}, 11
            s_add_u32 s{sT}, s{sT}, {WS_QB}
            buffer_load_dwordx4 {vr(vQB, 4)}, v{vLin}, {sr(sWS, 4)}, s{sT} offen sc1
            buffer_load_dwordx4 {vr(vQB + 4, 4)}, v{vLin}, {sr(sWS, 4)}, s{sT} offen offset:1024 sc1
            """)
        guard('m12', W03, b)
    if t == 15:
        def b():
            A(f"""
            s_lshl_b32 s{sT}, s{sJ}, 7
            s_add_u32 s{sT}, s{sT}, s{sFG}
            s_add_u32 s{sT}, s{sT}, {F_K}
            s_waitcnt vmcnt(8)
            """)
            signal(f's{sT}')
        guard('m15', W0, b)
    if t == 20:
        def b():
            A(f"""
            s_and_b32 s{sT + 9}, s{sJ}, 16
            s_lshl_b32 s{sT + 9}, s{sT + 9}, 7
            s_add_u32 s{sT + 9}, s{sT + 9}, s{sFG}
            s_add_u32 s{sT + 9}, s{sT + 9}, {F_K}
            """)
            sample(f's{sT + 9}')
        guard('m20', W03, b)
    if t == 27:
        def b():
            A('s_waitcnt vmcnt(8)')
            signal(f's{sT + 8}')
            wo_issue(sWOB, L_WOB, 32, 6, 6, sWv)
        guard('m27', W03, b)
    if len(A.lines) != n0:
        A('.p2align 3')


RDPOS = {0: [0, 1, 2, 3], 1: [0, 0, 1, 1], 3: [0, 1, 1, 2]}[OPT['rd']]
A('.p2align 3')
for t in range(32):
    S, Sn = vS + 16 * (t & 1), vS + 16 * ((t + 1) & 1)
    F, Fn = vF + 16 * (t & 1), vF + 16 * ((t + 1) & 1)
    ex = lambda r: A(f'v_exp_f32 v{vPp + r}, v{S + r}')

    def fr(slot):
        for q in range(4):
            if RDPOS[q] == slot:
                tt, piece = [(t + 2, 0), (t + 2, 1), (t, 3), (t + 1, 2)][q]
                if tt < 32:
                    lds_frag(Fn + 4 * q, tt, piece)
    c = t >> 2
    if (t & 3) == 2 and c < 7:
        if OPT['fine']:
            stamp(f'pre{t}')
        if c == 0:
            A('s_waitcnt vmcnt(0)')
        guard(f'end{c}', W03, lambda: hook_end(c))
        if OPT['fine']:
            stamp(f'hk{t}')
        A('.p2align 3')
        A('s_waitcnt lgkmcnt(0)')
        A('s_barrier')
    else:
        A('s_waitcnt lgkmcnt(0)')
        A('s_nop 0')
    if t < 31:
        qk(Sn, F, 0)
    fr(0)
    for r in range(0, 4):
        ex(r)
    if t < 31:
        qk(Sn, F + 4, 1)
    fr(1)
    for r in range(4, 8):
        ex(r)
    if t > 0:
        pv(F + 8, 1)
    fr(2)
    for r in range(8, 12):
        ex(r)
    pv(F + 12, 0)
    fr(3)
    hook_mid(t)
    for r in range(12, 16):
        ex(r)
A('s_waitcnt lgkmcnt(0)')
pv(vF + 8, 1)
stamp('att_done')
A(f"""
s_lshl_b32 s{sT}, s{sRT}, 12
s_add_u32 s{sT}, s{sT}, {L_XCH}
v_add_u32 v{vT + 4}, s{sT}, v{vLin}
""")
p3_flag_addr(sT + 9)
A(f"""
s_cmp_eq_u32 s{sHH}, 0
s_cbranch_scc0 L_tailA
""")


def p3_addr(base):
    vWa = 16
    A(f"""
    v_bfe_u32 v{vT}, v{vL}, 2, 2                 ; r
    v_bfe_u32 v{vT + 1}, v{vL}, 4, 1             ; g&1
    v_and_b32 v{vT + 2}, 3, v{vL}
    v_lshlrev_b32 v{vT + 2}, 3, v{vT + 2}
    v_lshl_add_u32 v{vT + 2}, v{vT}, 7, v{vT + 2}
    v_lshl_add_u32 v{vT + 2}, v{vH}, 11, v{vT + 2}
    v_lshrrev_b32 v{vT}, 1, v{vT}
    v_lshl_add_u32 v{vT + 2}, v{vT}, 5, v{vT + 2}
    v_add_u32 v{vT + 2}, {base}, v{vT + 2}
    v_mul_u32_u24 v{vT + 3}, 576, v{vT + 1}
    v_add_u32 v{vWa}, v{vT + 2}, v{vT + 3}
    v_mul_u32_u24 v{vT + 3}, v{vT + 3}, v{vH}
    v_sub_u32 v{vWa + 4}, v{vWa}, v{vT + 3}
    """)
    for i in range(1, 4):
        A(f'v_xor_b32 v{vWa + i}, {32 * i}, v{vWa}')
        A(f'v_xor_b32 v{vWa + 4 + i}, {32 * i}, v{vWa + 4}')


vWa, vC, vOf, vWo, NPRE = 16, 24, 40, 104, 9
vFg3 = 248


def wo_reads(hd):
    G = vWo + 16 * (hd % NPRE)
    for ct in range(4):
        for u in range(2):
            A(f'ds_read_b64_tr_b16 {vr(G + 4 * ct + 2 * u, 2)}, v{vWa + 4 * u + (ct ^ (2 * (hd & 1)))} offset:{(28 * hd + 8 * u) * 128}')


A(f"""
s_mov_b64 exec, 0xffff
buffer_load_dword v{vFg3}, v{vFl}, {sr(sWS, 4)}, s{sT + 9} offen sc1
s_mov_b64 exec, -1
""")
for q in range(4):
    A(f'ds_write_b128 v{vT + 4}, {vr(vO + 4 * q, 4)} offset:{1024 * q}')
p3_addr(L_WOB)
A(f"""
s_waitcnt vmcnt(1) lgkmcnt(0)
s_barrier
s_cmp_ge_u32 s{sJ}, 28
s_cbranch_scc1 L_fin
s_branch L_p3
""")
A(f"""
L_tailA:
s_setprio 3
""")
o_addr(0)
A('s_barrier')
for q in range(4):
    A(f'ds_read_b128 {vr(vS + 4 * q, 4)}, v{vT + 4} offset:{1024 * q}')
for q in range(4):
    A(f's_waitcnt lgkmcnt({3 - q})')
    A(f'v_pk_add_f32 {vr(vO + 4 * q, 2)}, {vr(vO + 4 * q, 2)}, {vr(vS + 4 * q, 2)}')
    A(f'v_pk_add_f32 {vr(vO + 4 * q + 2, 2)}, {vr(vO + 4 * q + 2, 2)}, {vr(vS + 4 * q + 2, 2)}')
A(f'v_add_f32_e64 v{vT}, abs(v{vO}), abs(v{vO + 1})')
A(f'v_add_f32_e64 v{vT + 1}, abs(v{vO + 2}), abs(v{vO + 3})')
for r in range(4, 16, 2):
    A(f'v_add_f32_e64 v{vT}, v{vT}, abs(v{vO + r})')
    A(f'v_add_f32_e64 v{vT + 1}, v{vT + 1}, abs(v{vO + r + 1})')
A(f"""
v_add_f32 v{vT}, v{vT}, v{vT + 1}
s_mov_b32 s{sT}, 0x7b800000
v_cmp_ngt_f32 vcc, s{sT}, v{vT}
s_cbranch_vccnz L_fallback
L_final:
v_rcp_f32 v{vT + 2}, v{vO + 12}
v_rcp_f32 v{vT + 4}, v{vO + 12}
v_permlane32_swap_b32 v{vT + 4}, v{vT + 2}
""")
for r in range(0, 16, 2):
    A(f'v_pk_mul_f32 {vr(vO + r, 2)}, {vr(vO + r, 2)}, {vr(vT + 2, 2)} op_sel_hi:[1,0]')
cvt8(vS, vO)
A(f"""
s_mov_b64 exec, {sr(sHi, 2)}
v_mov_b32 v{vS + 6}, 0
v_mov_b32 v{vS + 7}, 0
s_mov_b64 exec, -1
buffer_store_dwordx4 {vr(vS, 4)}, v{vOA}, {sr(sWS, 4)}, s{sT + 7} offen sc1
buffer_store_dwordx4 {vr(vS + 4, 4)}, v{vOA}, {sr(sWS, 4)}, s{sT + 7} offen offset:512 sc1
""")
stamp('o_stored')
p3_addr(L_WOA)
A('s_waitcnt vmcnt(0)')
signal(f's{sT + 8}')
stamp('o_sig')
A(f"""
s_cmp_ge_u32 s{sJ}, 28
s_cbranch_scc1 L_fin
""")
wo_issue(sWOA, L_WOA, 0, 14, 14, sRT)
A(f"""
v_mov_b32 v{vT + 1}, {L_RELAY + 4}
v_mov_b32 v{vFg3}, 0
s_mov_b32 s{sSpin}, {OPT['spin'] * 64}
s_mov_b64 exec, 1
s_waitcnt vmcnt(0)
ds_add_u32 v{vT + 1}, v{vOne}
L_cnt:
ds_read_b32 v{vT}, v{vT + 1}
s_sub_u32 s{sSpin}, s{sSpin}, 1
s_waitcnt lgkmcnt(0)
s_cmp_eq_u32 s{sSpin}, 0
s_cbranch_scc1 L_cntx
v_cmp_ne_u32 vcc, 4, v{vT}
s_cbranch_vccnz L_cnt
L_cntx:
s_mov_b64 exec, 0xffff
buffer_load_dword v{vFg3}, v{vFl}, {sr(sWS, 4)}, s{sT + 9} offen sc1
s_mov_b64 exec, -1
""")
stamp('wo_in')
A('L_p3:')
for hd in range(NPRE):
    wo_reads(hd)
A(f'''
s_xor_b32 s{sT + 3}, s{sHH}, 1                 ; branch
s_lshr_b32 s{sT}, s{sRT}, 1
s_lshl_b32 s{sT + 1}, s{sRB64}, 1
s_add_u32 s{sT}, s{sT}, s{sT + 1}
s_lshl_b32 s{sT + 2}, s{sT + 3}, 6
s_add_u32 s{sT}, s{sT}, s{sT + 2}
s_lshl_b32 s{sT}, s{sT}, 15
s_and_b32 s{sT + 2}, s{sRT}, 1
s_lshl_b32 s{sT + 2}, s{sT + 2}, 10
s_add_u32 s{sT}, s{sT}, s{sT + 2}
s_add_u32 s{sT}, s{sT}, {WS_O}
s_mov_b64 exec, 0xffff
s_waitcnt vmcnt(0)
''')
spin('s3', sWS, f's{sT + 9}', vFl, vFg3, preloaded=True)
A('s_mov_b64 exec, -1')
stamp('p3_flag')
for hd in range(16):
    A(f'buffer_load_dwordx4 {vr(vOf + 4 * hd, 4)}, v{vLin}, {sr(sWS, 4)}, s{sT} offen offset:{2048 * (hd & 1)} sc1')
    if hd & 1 and hd < 15:
        A(f's_add_u32 s{sT}, s{sT}, 4096')
vSt, vLd, vOut = vT + 1, vT + 2, vT + 3
A(f'''
s_mul_i32 s{sT}, s{sRT}, 2304
s_lshl_b32 s{sT + 1}, s{sT + 3}, 14
s_add_u32 s{sT}, s{sT}, s{sT + 1}
s_add_u32 s{sT}, s{sT}, {L_XCH}
v_and_b32 v{vT}, 15, v{vL}
v_mul_u32_u24 v{vSt}, 144, v{vT}
v_lshrrev_b32 v{vT}, 4, v{vL}
v_lshl_add_u32 v{vSt}, v{vT}, 3, v{vSt}
v_add_u32 v{vSt}, s{sT}, v{vSt}
v_lshrrev_b32 v{vT}, 3, v{vL}
v_and_b32 v{vT + 4}, 7, v{vL}
v_mul_u32_u24 v{vLd}, 144, v{vT}
v_lshl_add_u32 v{vLd}, v{vT + 4}, 4, v{vLd}
v_add_u32 v{vLd}, s{sT}, v{vLd}
v_mul_u32_u24 v{vOut}, 1792, v{vT}
v_lshl_add_u32 v{vOut}, v{vT + 4}, 4, v{vOut}
s_lshl_b32 s{sT}, s{sRB64}, 2
s_add_u32 s{sT}, s{sT}, s{sRT}
s_mul_i32 s{sT}, s{sT}, {16 * 1792}
s_mul_i32 s{sT + 1}, s{sT + 3}, 896
s_add_u32 s{sT}, s{sT}, s{sT + 1}
s_lshl_b32 s{sT + 1}, s{sCB}, 7
s_add_u32 s{sT}, s{sT}, s{sT + 1}
s_add_u32 s{sT + 1}, s{sT}, {8 * 1792}
''')
for hd in range(16):
    G = vWo + 16 * (hd % NPRE)
    A(f's_waitcnt vmcnt({15 - hd})' + (' lgkmcnt(0)' if hd in (0, NPRE) else ''))
    for ct in range(4):
        c = vr(vC + 4 * ct, 4) if hd else '0'
        A(f'v_mfma_f32_16x16x32_bf16 {vr(vC + 4 * ct, 4)}, {vr(G + 4 * ct, 4)}, {vr(vOf + 4 * hd, 4)}, {c}')
    if hd + NPRE < 16:
        wo_reads(hd + NPRE)
for ct in range(4):
    A(f'v_cvt_pk_bf16_f32 v{vOf + 2 * ct}, v{vC + 4 * ct}, v{vC + 4 * ct + 1}')
    A(f'v_cvt_pk_bf16_f32 v{vOf + 2 * ct + 1}, v{vC + 4 * ct + 2}, v{vC + 4 * ct + 3}')
    A(f'ds_write_b64 v{vSt}, {vr(vOf + 2 * ct, 2)} offset:{32 * ct}')
OUTFL = ['', 'sc1', 'nt', 'sc0 sc1'][OPT['outfl']]
A(f'''
s_waitcnt lgkmcnt(0)
ds_read_b128 {vr(vOf + 8, 4)}, v{vLd}
ds_read_b128 {vr(vOf + 12, 4)}, v{vLd} offset:{8 * 144}
s_waitcnt lgkmcnt(1)
buffer_store_dwordx4 {vr(vOf + 8, 4)}, v{vOut}, {sr(sOUT, 4)}, s{sT} offen {OUTFL}
s_waitcnt lgkmcnt(0)
buffer_store_dwordx4 {vr(vOf + 12, 4)}, v{vOut}, {sr(sOUT, 4)}, s{sT + 1} offen {OUTFL}
''')
stamp('p3_done')
A('L_fin:')
if PROBE:
    A('''
    L_pad:
    s_memrealtime s[94:95]
    s_waitcnt lgkmcnt(0)
    s_sub_u32 s94, s94, s90
    s_cmp_lt_u32 s94, 3000
    s_cbranch_scc1 L_pad
    ''')
if OPT['stamps']:
    A('s_waitcnt vmcnt(0)')
    stamp('end')
    A(f'''
    s_lshl_b32 s{sT}, s2, 3
    s_add_u32 s{sT}, s{sT}, s{sWv}
    s_lshl_b32 s{sT}, s{sT}, 8
    s_add_u32 s{sT}, s{sT}, {WS_ST}
    v_lshlrev_b32 v{vT}, 2, v{vL}
    buffer_store_dword v255, v{vT}, {sr(sWS, 4)}, s{sT} offen
    ''')
A('s_endpgm')
A(f'''
L_fallback:
s_mov_b64 exec, {sr(sHi, 2)}
v_mov_b32 v{vQ + 6}, 0
v_mov_b32 v{vQ + 7}, 0
s_mov_b64 exec, -1
v_mov_b32 v{vT}, 0xff800000
s_lshl_b32 s{sT}, s{sH}, 18
s_add_u32 s{sT}, s{sT}, {WS_KV}
s_mov_b32 s{sT + 1}, 0
L_fb1:
buffer_load_dwordx4 {vr(vF, 4)}, v{vLin}, {sr(sWS, 4)}, s{sT} offen sc1
buffer_load_dwordx4 {vr(vF + 4, 4)}, v{vLin}, {sr(sWS, 4)}, s{sT} offen offset:1024 sc1
s_waitcnt vmcnt(0)
''')
qk(vS, vF, 0)
qk(vS, vF + 4, 1)
for r in range(0, 16, 2):
    A(f'v_max3_f32 v{vT}, v{vT}, v{vS + r}, v{vS + r + 1}')
A(f'''
s_add_u32 s{sT}, s{sT}, 4096
s_add_u32 s{sT + 1}, s{sT + 1}, 1
s_cmp_lt_u32 s{sT + 1}, 64
s_cbranch_scc1 L_fb1
v_mov_b32 v{vT + 1}, v{vT}
v_permlane32_swap_b32 v{vT}, v{vT + 1}
v_max_f32 v{vT}, v{vT}, v{vT + 1}
v_sub_f32 v{vT}, 0, v{vT}
''')
set_qpad(vT, vT + 1)
for r in range(16):
    A(f'v_mov_b32 v{vO + r}, 0')
A(f'''
s_lshl_b32 s{sT}, s{sH}, 18
s_add_u32 s{sT}, s{sT}, {WS_KV}
s_mov_b32 s{sT + 1}, 0
L_fb2:
''')
for q in range(4):
    A(f'buffer_load_dwordx4 {vr(vF + 4 * q, 4)}, v{vLin}, {sr(sWS, 4)}, s{sT} offen offset:{1024 * q} sc1')
A('s_waitcnt vmcnt(0)')
qk(vS, vF, 0)
qk(vS, vF + 4, 1)
for r in range(16):
    A(f'v_exp_f32 v{vPp + r}, v{vS + r}')
pv(vF + 8, 0)
pv(vF + 12, 1)
A(f'''
s_add_u32 s{sT}, s{sT}, 4096
s_add_u32 s{sT + 1}, s{sT + 1}, 1
s_cmp_lt_u32 s{sT + 1}, 64
s_cbranch_scc1 L_fb2
s_nop 11
s_branch L_final
L_end:
s_endpgm
''')

n = A.fix_hazards(verbose=bool(OPT.get('v')))
hdr = open('cdna_kernels/' + NAME + '.s.ref').read().split('; Override launch')[0]
out = hdr + f'''; One persistent launch, 256 workgroups (one per CU); generated by the author's own script.
; @launch grid=(256,1,1) block=(512,1,1) lds=163840
.amdgcn_target "amdgcn-amd-amdhsa--gfx950"
.text
.globl {NAME}_kernel
.p2align 8
.type {NAME}_kernel,@function
{NAME}_kernel:
''' + A.text() + f'''.fill 256, 4, 0xbf800000
.section .rodata,"a"
.p2align 6
.amdhsa_kernel {NAME}_kernel
  .amdhsa_next_free_vgpr 256
  .amdhsa_next_free_sgpr 102
  .amdhsa_accum_offset 256
  .amdhsa_group_segment_fixed_size 0
  .amdhsa_kernarg_size 80
  .amdhsa_user_sgpr_count 2
  .amdhsa_user_sgpr_kernarg_segment_ptr 1
  .amdhsa_system_sgpr_workgroup_id_x 1
.end_amdhsa_kernel
'''
open(sys.argv[1], 'w').write(out)
if OPT['stamps']:
    open(sys.argv[1] + '.stamps', 'w').write('\n'.join(STAMPS + [str(OPT['mix'])]))
print('lines', len(A.lines), 'nops inserted', n)
```

```python
import sys, math, struct
from asmlib import Asm, vr, sr

NAME = 'concat_heads__softmax_full_mha__linear_kernel_hedgehog__prompt'
OPT = dict(rot=0x22, ldnt=0, stamps=0, force_fb=0, spin=1 << 16, moff=24, outfl=1, rd=3, prio=0, mix=1, fine=0, pfa=0, pfb=0, wpf=1, pfc=0, pfl=0, pfd=0, pfnt=0)
PROBE = None
for a in sys.argv[2:]:
    k, v = a.split('=')
    if k == 'probe':
        PROBE = v
    else:
        OPT[k] = int(v, 0)


def f32(x):
    return '0x%08x' % struct.unpack('<I', struct.pack('<f', x))[0]


LOG2E = 1.4426950408889634
QSCALE = LOG2E / math.sqrt(28.0)

WS_QA, WS_KV, WS_QB, WS_KVP, WS_O, WS_FL, WS_KVF, WS_ST, WS_END = (
    0, 0x200000, 0x600000, 0x800000, 0xA00000, 0xE00000, 0xE80000, 0xF00000, 0x1000000)
FGRP = 384 * 128
F_A, F_B, F_K, F_O = 0, 48 * 128, 64 * 128, 96 * 128
sX, sW, sWS, sDBG, sPHI, sWOA, sOUT, sWOB = 24, 28, 32, 36, 40, 44, 48, 96
sWv, sXc, sJ, sB, sRB1, sCG, sH, sRB = 52, 53, 54, 55, 56, 57, 58, 59
sT = 60
sC, sSlot, sKC, sXbase, sWbase, sXo, sWo = 70, 71, 73, 74, 75, 76, 77
sFG = 72
sL = 78
sRT, sHH = 80, 81
sSpin = 82
sCB = 83
sKVo = 84
sRB64 = 85
sHi = 86
sOnesM = 88
sStamp = 90
sM0 = 92
sRH, sH1, sJI = 93, 3, 100
vL, vLin, vH = 1, 2, 3
vT = 4
vFl, vOne = 12, 13
SLOT = 40960
K = 1024
L_Q, L_PHI, L_V, L_WPHI, L_RELAY = 96 * K, 104 * K, 136 * K, 152 * K, 158 * K
L_WOA, L_WOB, L_XCH = 64 * K, 0, 128 * K

A = Asm()
STAMPS = []


def stamp(name):
    if PROBE == name:
        A('s_memrealtime s[90:91]')
        A('s_waitcnt lgkmcnt(0)')
    if not OPT['stamps']:
        return
    if name not in STAMPS:
        STAMPS.append(name)
    i = STAMPS.index(name)
    A(f'''
    s_memrealtime s[{sStamp}:{sStamp + 1}]
    s_memtime s[94:95]
    s_waitcnt lgkmcnt(0)
    v_writelane_b32 v255, s{sStamp}, {i}
    v_writelane_b32 v255, s94, {i + 32}
    ''')


def spin(tag, srd_, addr, vaddr, vdst, preloaded=False):
    A(f's_mov_b32 s{sSpin}, {OPT["spin"]}')
    if preloaded:
        A(f's_branch L_chk_{tag}')
    A(f'''
    L_poll_{tag}:
    buffer_load_dword v{vdst}, v{vaddr}, {sr(srd_, 4)}, {addr} offen sc1
    s_sub_u32 s{sSpin}, s{sSpin}, 1
    s_waitcnt vmcnt(0)
    s_cmp_eq_u32 s{sSpin}, 0
    s_cbranch_scc1 L_pollx_{tag}
    L_chk_{tag}:
    v_cmp_ne_u32 vcc, 1, v{vdst}
    s_cbranch_vccnz L_poll_{tag}
    L_pollx_{tag}:
    ''')


def srd(d, base, nbytes):
    A(f'''
    s_mov_b32 s{d}, s{base}
    s_mov_b32 s{d + 1}, s{base + 1}
    s_mov_b32 s{d + 2}, {nbytes}
    s_mov_b32 s{d + 3}, 0x20000
    ''')


def cvt8(dst, src):
    for i in range(8):
        A(f'v_cvt_pk_bf16_f32 v{dst + i}, v{src + 2 * i}, v{src + 2 * i + 1}')


def features(tiles):
    A(f's_mov_b64 exec, {sr(sHi, 2)}')
    for X, Ep, En, t in tiles:
        for r in range(12, 16):
            A(f'v_mov_b32 v{X + r}, v{X + 11}')
    A('s_mov_b64 exec, -1')
    for X, Ep, En, t in tiles:
        A(f'v_max3_f32 v{t}, v{X}, v{X + 1}, v{X + 2}')
        A(f'v_max3_f32 v{t + 2}, -v{X}, -v{X + 1}, -v{X + 2}')
    for r in range(3, 15, 2):
        for X, Ep, En, t in tiles:
            A(f'v_max3_f32 v{t}, v{t}, v{X + r}, v{X + r + 1}')
            A(f'v_max3_f32 v{t + 2}, v{t + 2}, -v{X + r}, -v{X + r + 1}')
    for X, Ep, En, t in tiles:
        A(f'v_max_f32 v{t}, v{t}, v{X + 15}')
        A(f'v_max_f32_e64 v{t + 2}, v{t + 2}, -v{X + 15}')
    for X, Ep, En, t in tiles:
        A(f'v_permlane32_swap_b32 v{t}, v{t + 2}')
    for X, Ep, En, t in tiles:
        A(f'v_max_f32 v{t}, v{t}, v{t + 2}')
    for X, Ep, En, t in tiles:
        A(f'v_mul_f32_e64 v{t + 2}, -v{t}, s{sL}')
        A(f'v_mul_f32_e64 v{t}, -v{t}, s{sL}')
    for X, Ep, En, t in tiles:
        A(f'v_permlane32_swap_b32 v{t}, v{t + 2}')
    for X, Ep, En, t in tiles:
        for r in range(0, 16, 2):
            A(f'v_pk_fma_f32 {vr(Ep + r, 2)}, {vr(X + r, 2)}, {sr(sL, 2)}, {vr(t, 2)} op_sel_hi:[1,1,0]')
            A(f'v_pk_fma_f32 {vr(En + r, 2)}, {vr(X + r, 2)}, {sr(sL, 2)}, {vr(t + 2, 2)} op_sel_hi:[1,1,0] neg_lo:[1,0,0] neg_hi:[1,0,0]')
    for X, Ep, En, t in tiles:
        for r in range(16):
            A(f'v_exp_f32 v{Ep + r}, v{Ep + r}')
        for r in range(16):
            A(f'v_exp_f32 v{En + r}, v{En + r}')
    A(f's_mov_b64 exec, {sr(sHi, 2)}')
    for X, Ep, En, t in tiles:
        for r in range(12, 16):
            A(f'v_mov_b32 v{Ep + r}, 0')
            A(f'v_mov_b32 v{En + r}, 0')
    A('s_mov_b64 exec, -1')


def wphi_addr(d, t):
    A(f'''
    v_bfe_u32 v{t}, v{vL}, 2, 2
    v_lshl_add_u32 v{t}, v{vH}, 2, v{t}
    v_mul_u32_u24 v{d}, 56, v{t}
    v_bfe_u32 v{t}, v{vL}, 4, 1
    v_lshl_add_u32 v{d}, v{t}, 5, v{d}
    v_and_b32 v{t}, 3, v{vL}
    v_lshl_add_u32 v{d}, v{t}, 3, v{d}
    ''')


def common_setup():
    srd(sWS, 22, WS_END)
    srd(sDBG, 20, 256)
    srd(sPHI, 14, 16 * 1568)
    srd(sOUT, 18, 2048 * 1792)
    srd(sWOA, 8, 448 * 896)
    srd(sWOB, 16, 448 * 896)
    A(f'''
    s_mov_b32 s{sL}, {f32(LOG2E)}
    s_mov_b32 s{sL + 1}, {f32(LOG2E)}
    s_mov_b32 s{sHi}, 0
    s_mov_b32 s{sHi + 1}, -1
    s_mov_b32 s{sOnesM}, 0x10000000
    s_mov_b32 s{sOnesM + 1}, 0x10000000
    s_lshr_b32 s{sH}, s{sJ}, 4
    s_lshl_b32 s{sT}, s{sXc}, 1
    s_add_u32 s{sH}, s{sH}, s{sT}
    s_and_b32 s{sRB}, s{sJ}, 15
    s_and_b32 s{sRT}, s{sWv}, 3
    s_lshr_b32 s{sHH}, s{sWv}, 2
    s_mul_i32 s{sFG}, s{sXc}, {FGRP}
    s_add_u32 s{sFG}, s{sFG}, {WS_FL}
    s_mul_i32 s{sT}, s{sJ}, 37
    s_lshr_b32 s{sT}, s{sT}, 8
    s_mul_i32 s{sT + 1}, s{sT}, 7
    s_sub_u32 s{sCB}, s{sJ}, s{sT + 1}
    s_lshl_b32 s{sRB64}, s{sXc}, 2
    s_add_u32 s{sRB64}, s{sRB64}, s{sT}
    s_lshl_b32 s{sT}, s{sH}, 6
    s_lshl_b32 s{sT + 1}, s{sHH}, 5
    s_add_u32 s{sT + 1}, s{sT + 1}, s{sRT}
    s_add_u32 s{sT + 1}, s{sT + 1}, s{sT}
    s_lshl_b32 s{sKVo}, s{sT + 1}, 12
    s_add_u32 s{sKVo}, s{sKVo}, {WS_KV}
    v_lshlrev_b32 v{vLin}, 4, v{vL}
    v_lshrrev_b32 v{vH}, 5, v{vL}
    v_lshlrev_b32 v{vFl}, 7, v{vL}
    v_mov_b32 v{vOne}, 1
    ''')


sPx, sPw, sPd = 101, 0, 1


def spf_setup():
    A(f"""
    s_and_b32 s{sT}, s{sJ}, 15
    s_lshl_b32 s{sT + 1}, s{sXc}, 4
    s_add_u32 s{sT + 1}, s{sT + 1}, s{sT}
    s_lshl_b32 s{sT + 1}, s{sT + 1}, 2
    s_and_b32 s{sT + 2}, s{sWv}, 3
    s_add_u32 s{sT + 1}, s{sT + 1}, s{sT + 2}
    s_mul_i32 s{sPx}, s{sT + 1}, {4 * 896}
    s_lshr_b32 s{sT + 1}, s{sXc}, 1
    s_lshl_b32 s{sT + 1}, s{sT + 1}, 4
    s_add_u32 s{sT}, s{sT}, s{sT + 1}
    s_mul_i32 s{sT}, s{sT}, 21
    s_and_b32 s{sT + 1}, s{sXc}, 1
    s_mul_i32 s{sT + 1}, s{sT + 1}, 9
    s_mul_i32 s{sT + 2}, s{sT + 2}, 3
    s_add_u32 s{sT}, s{sT}, s{sT + 1}
    s_add_u32 s{sT}, s{sT}, s{sT + 2}
    s_lshl_b32 s{sPw}, s{sT}, 7
    """)


def spf(kc):
    for i in range(4):
        A(f's_buffer_load_dword s{sPd}, {sr(sX, 4)}, s{sPx} offset:{i * 896 + kc * 128}')
    for i in range(3):
        A(f's_buffer_load_dword s{sPd}, {sr(sW, 4)}, s{sPw} offset:{i * 128 + kc * 64 * 2688}')


def digits(v):
    return [int(c, 16) & 7 for c in ('%x' % v)] if v else []


A(f'''
s_cmp_ge_u32 s2, 256
s_cbranch_scc1 L_end
s_load_dwordx16 s[4:19], s[0:1], 0
s_load_dwordx4 s[20:23], s[0:1], 64
''')
if OPT['stamps']:
    A('v_mov_b32 v255, 0')
if PROBE:
    A('s_memrealtime s[90:91]')
stamp('start')
A(f'''
v_lshrrev_b32 v{vT}, 6, v0
v_and_b32 v{vL}, 63, v0
v_readfirstlane_b32 s{sWv}, v{vT}
s_and_b32 s{sXc}, s2, 7
s_lshr_b32 s{sJ}, s2, 3
''')
if OPT['mix']:
    A(f'''
    s_lshr_b32 s{sB}, s{sJ}, 4
    s_and_b32 s{sT}, s{sXc}, 6
    s_lshl_b32 s{sT}, s{sT}, 1
    s_and_b32 s{sRB1}, s{sJ}, 3
    s_add_u32 s{sRB1}, s{sRB1}, s{sT}
    s_and_b32 s{sT}, s{sXc}, 1
    s_lshl_b32 s{sT}, s{sT}, 2
    s_bfe_u32 s{sCG}, s{sJ}, 0x20002
    s_add_u32 s{sCG}, s{sCG}, s{sT}
    ''')
else:
    A(f'''
s_lshr_b32 s{sB}, s{sXc}, 2
s_and_b32 s{sT}, s{sXc}, 2
s_lshl_b32 s{sT}, s{sT}, 2
s_and_b32 s{sRB1}, s{sJ}, 7
s_add_u32 s{sRB1}, s{sRB1}, s{sT}
s_and_b32 s{sT}, s{sXc}, 1
s_lshl_b32 s{sT}, s{sT}, 2
s_lshr_b32 s{sCG}, s{sJ}, 3
s_add_u32 s{sCG}, s{sCG}, s{sT}
''')
A(f'''
s_bitcmp1_b32 s{sXc}, 0
s_cselect_b32 s{sJI}, 7, 4
s_lshr_b32 s{sT}, s{sJ}, 2
s_xor_b32 s{sJI}, s{sJI}, s{sT}
s_cmp_lt_u32 s{sWv}, 4
s_cbranch_scc1 L_comp
''')
vXg0, vXg1, vWg = 16, 17, 18
LDNT = 'nt ' if OPT['ldnt'] else ''
A(f'''
s_setprio 3
s_and_b32 s{sRT}, s{sWv}, 3
s_mul_i32 s{sXbase}, s{sRB1}, {128 * 896}
s_cmp_eq_u32 s{sB}, 0
s_cselect_b32 s{sT}, 3, 1
s_cselect_b32 s{sT + 1}, 1, 8
s_mul_i32 s{sT}, s{sT}, 112
s_mul_i32 s{sT + 1}, s{sT + 1}, 112
s_mul_i32 s{sWbase}, s{sCG}, s{sT}
s_mul_i32 s{sT + 2}, s{sRT}, {32 * 896}
s_add_u32 s{sXbase}, s{sXbase}, s{sT + 2}
s_mul_i32 s{sT + 2}, s{sRT}, {16 * 2688}
s_add_u32 s{sWbase}, s{sWbase}, s{sT + 2}
v_lshrrev_b32 v{vT}, 3, v{vL}
v_mul_u32_u24 v{vT + 1}, 896, v{vT}
v_lshrrev_b32 v{vT + 2}, 4, v{vL}
v_and_b32 v{vT + 3}, 7, v{vL}
v_xor_b32 v{vT + 2}, v{vT + 2}, v{vT + 3}
v_lshl_add_u32 v{vXg0}, v{vT + 2}, 4, v{vT + 1}
v_xor_b32 v{vXg1}, 64, v{vXg0}
v_add_u32 v{vXg1}, {8 * 896 - 1024}, v{vXg1}
v_and_b32 v{vT + 5}, 7, v{vL}
''')
for i in range(3):
    A(f'''
    v_add_u32 v{vT + 1}, {8 * i}, v{vT}
    v_mul_u32_u24 v{vT + 2}, 11, v{vT + 1}
    v_lshrrev_b32 v{vT + 2}, 5, v{vT + 2}
    v_mul_u32_u24 v{vT + 3}, 3, v{vT + 2}
    v_sub_u32 v{vT + 1}, v{vT + 1}, v{vT + 3}
    v_mul_u32_u24 v{vT + 1}, s{sT + 1}, v{vT + 1}
    v_and_b32 v{vT + 3}, 2, v{vT + 2}
    v_lshlrev_b32 v{vT + 3}, 1, v{vT + 3}
    v_xor_b32 v{vT + 3}, v{vT + 3}, v{vT + 5}
    v_lshl_add_u32 v{vT + 1}, v{vT + 3}, 4, v{vT + 1}
    v_add_u32 v{vT + 3}, 1, v{vT + 3}
    v_and_b32 v{vT + 3}, 8, v{vT + 3}
    v_lshl_add_u32 v{vT + 1}, v{vT + 3}, 27, v{vT + 1}
    v_mul_u32_u24 v{vT + 2}, 2688, v{vT + 2}
    ''')
    if i:
        A(f'v_subrev_u32 v{vT + 2}, {1024 * i}, v{vT + 2}')
    A(f'v_add_u32 v{vWg + i}, v{vT + 2}, v{vT + 1}')
if OPT['rot']:
    A(f'''
    s_mul_i32 s{sKC}, s{sCG}, {OPT['rot'] & 15}
    s_mul_i32 s{sT + 2}, s{sRB1}, {OPT['rot'] >> 4}
    s_add_u32 s{sKC}, s{sKC}, s{sT + 2}
    s_mul_i32 s{sT + 2}, s{sKC}, 37
    s_lshr_b32 s{sT + 2}, s{sT + 2}, 8
    s_mul_i32 s{sT + 2}, s{sT + 2}, 7
    s_sub_u32 s{sKC}, s{sKC}, s{sT + 2}
    ''')
else:
    A(f's_mov_b32 s{sKC}, 0')
A(f'''
s_lshl_b32 s{sT + 4}, s{sRT}, 12
s_mul_i32 s{sT + 5}, s{sRT}, 6144
s_add_u32 s{sT + 5}, s{sT + 5}, 16384
s_mov_b32 s{sSlot}, 0
s_mov_b32 s{sC}, 0
s_mov_b32 s{sX + 2}, {2048 * 896}
s_mov_b32 s{sX + 3}, 0x20000
s_mov_b32 s{sW + 2}, {448 * 2688}
s_mov_b32 s{sW + 3}, 0x20000
s_waitcnt lgkmcnt(0)
s_cmp_eq_u32 s{sB}, 0
s_cselect_b32 s{sX}, s4, s10
s_cselect_b32 s{sX + 1}, s5, s11
s_cselect_b32 s{sW}, s6, s12
s_cselect_b32 s{sW + 1}, s7, s13
s_cmp_eq_u32 s{sJI}, 0
s_cbranch_scc1 L_zero
L_ld:
s_lshl_b32 s{sXo}, s{sKC}, 7
s_add_u32 s{sXo}, s{sXo}, s{sXbase}
s_add_u32 m0, s{sSlot}, s{sT + 4}
s_add_u32 s{sT + 6}, s{sXo}, {16 * 896 - 2048}
buffer_load_dwordx4 v{vXg0}, {sr(sX, 4)}, s{sXo} offen {LDNT}lds
buffer_load_dwordx4 v{vXg1}, {sr(sX, 4)}, s{sXo} offen offset:1024 {LDNT}lds
buffer_load_dwordx4 v{vXg0}, {sr(sX, 4)}, s{sT + 6} offen offset:2048 {LDNT}lds
buffer_load_dwordx4 v{vXg1}, {sr(sX, 4)}, s{sT + 6} offen offset:3072 {LDNT}lds
s_mul_i32 s{sWo}, s{sKC}, {64 * 2688}
s_add_u32 m0, s{sSlot}, s{sT + 5}
s_add_u32 s{sWo}, s{sWo}, s{sWbase}
buffer_load_dwordx4 v{vWg}, {sr(sW, 4)}, s{sWo} offen {LDNT}lds
buffer_load_dwordx4 v{vWg + 1}, {sr(sW, 4)}, s{sWo} offen offset:1024 {LDNT}lds
buffer_load_dwordx4 v{vWg + 2}, {sr(sW, 4)}, s{sWo} offen offset:2048 {LDNT}lds
s_add_u32 m0, m0, 3072
s_add_u32 s{sWo}, s{sWo}, {8 * 2688}
s_cmp_eq_u32 s{sC}, 0
s_cbranch_scc1 L_ld0
s_waitcnt vmcnt(7)
s_barrier
''')
if OPT['pfd']:
    A(f's_cmp_gt_u32 s{sC}, {6 - OPT["pfd"]}')
    A('s_cbranch_scc1 L_ldb')
    A(f's_add_u32 s{sPx}, s{sPx}, 128')
    A(f's_add_u32 s{sPw}, s{sPw}, {64 * 2688}')
    spf(OPT['pfd'])
A(f'''
L_ldb:
buffer_load_dwordx4 v{vWg}, {sr(sW, 4)}, s{sWo} offen {LDNT}lds
buffer_load_dwordx4 v{vWg + 1}, {sr(sW, 4)}, s{sWo} offen offset:1024 {LDNT}lds
buffer_load_dwordx4 v{vWg + 2}, {sr(sW, 4)}, s{sWo} offen offset:2048 {LDNT}lds
s_add_u32 s{sKC}, s{sKC}, 1
s_cmp_eq_u32 s{sKC}, 7
s_cselect_b32 s{sKC}, 0, s{sKC}
s_add_u32 s{sSlot}, s{sSlot}, {SLOT}
s_cmp_eq_u32 s{sSlot}, {3 * SLOT}
s_cselect_b32 s{sSlot}, 0, s{sSlot}
s_add_u32 s{sC}, s{sC}, 1
s_cmp_lt_u32 s{sC}, 7
s_cbranch_scc1 L_ld
s_branch L_ld1
L_ld0:
''')
if OPT['pfl'] or OPT['pfd']:
    spf_setup()
    for kc in digits(OPT['pfl']):
        spf(kc)
A(f'''
s_branch L_ldb
L_zero:
s_mov_b32 s{sWS}, s22
s_mov_b32 s{sWS + 1}, s23
s_mov_b32 s{sWS + 2}, {WS_END}
s_mov_b32 s{sWS + 3}, 0x20000
s_mul_i32 s{sT}, s{sXc}, {FGRP}
s_and_b32 s{sT + 1}, s{sJ}, 3
s_lshl_b32 s{sT + 1}, s{sT + 1}, 2
s_add_u32 s{sT + 1}, s{sT + 1}, s{sRT}
s_mul_i32 s{sT + 1}, s{sT + 1}, 3072
s_add_u32 s{sT}, s{sT}, s{sT + 1}
s_add_u32 s{sT}, s{sT}, {WS_FL}
v_lshlrev_b32 v{vLin}, 4, v{vL}
v_mov_b32 v{vT}, 0
v_mov_b32 v{vT + 1}, 0
v_mov_b32 v{vT + 2}, 0
v_mov_b32 v{vT + 3}, 0
buffer_store_dwordx4 {vr(vT, 4)}, v{vLin}, {sr(sWS, 4)}, s{sT} offen sc1
buffer_store_dwordx4 {vr(vT, 4)}, v{vLin}, {sr(sWS, 4)}, s{sT} offen offset:1024 sc1
buffer_store_dwordx4 {vr(vT, 4)}, v{vLin}, {sr(sWS, 4)}, s{sT} offen offset:2048 sc1
s_branch L_ld
L_ld1:
''')
common_setup()
A(f'''
s_cmp_eq_u32 s{sWv}, 4
s_cbranch_scc0 L_ld2
v_lshlrev_b32 v{vT + 1}, 2, v{vL}
s_mov_b32 exec_hi, 0
''')
spin('init', sDBG, '0', vT + 1, vT)
A(f'''
s_mov_b64 exec, -1
L_ld2:
s_waitcnt vmcnt(0) lgkmcnt(0)
s_barrier
s_barrier
s_cmp_eq_u32 s{sB}, 0
s_cbranch_scc0 L_ld3
s_barrier
L_ld3:
v_mov_b32 v{vT + 1}, {L_RELAY}
s_cmp_eq_u32 s{sWv}, 4
s_cbranch_scc0 L_relay
s_lshl_b32 s{sT + 1}, 1, s{sRB}
s_or_b32 exec_lo, s{sT + 1}, 0xffff0000
s_mov_b32 exec_hi, 0xffff
''')
spin('s1', sWS, f's{sFG}', vFl, vT)
A(f'''
s_mov_b64 exec, -1
ds_write_b32 v{vT + 1}, v{vOne}
s_branch L_go
L_relay:
s_mov_b32 s{sSpin}, {OPT['spin'] * 16}
L_relay1:
ds_read_b32 v{vT}, v{vT + 1}
s_sub_u32 s{sSpin}, s{sSpin}, 1
s_waitcnt lgkmcnt(0)
s_cmp_eq_u32 s{sSpin}, 0
s_cbranch_scc1 L_go
v_cmp_ne_u32 vcc, 1, v{vT}
s_cbranch_vccnz L_relay1
L_go:
''')
stamp('s1_seen')
A(f'''
s_lshl_b32 s{sT}, s{sH}, 6
s_lshl_b32 s{sT + 1}, s{sRB}, 2
s_add_u32 s{sT + 1}, s{sT + 1}, s{sRT}
s_add_u32 s{sT + 1}, s{sT + 1}, s{sT}
s_lshl_b32 s{sT + 1}, s{sT + 1}, 11
s_lshl_b32 s{sT}, s{sRT}, 11
s_add_u32 m0, s{sT}, {L_Q}
s_lshl_b32 s{sM0}, s{sRT}, 12
buffer_load_dwordx4 v{vLin}, {sr(sWS, 4)}, s{sT + 1} offen sc1 lds
buffer_load_dwordx4 v{vLin}, {sr(sWS, 4)}, s{sT + 1} offen offset:1024 sc1 lds
''')
for c in range(2):
    for kh in range(2):
        A(f's_add_u32 m0, s{sM0}, {c * 32768 + kh * 16384}')
        A(f's_add_u32 s{sT + 2}, s{sKVo}, {(c * 16384 + (kh - 1) * 131072) & 0xffffffff}')
        for q in range(4):
            A(f'buffer_load_dwordx4 v{vLin}, {sr(sWS, 4)}, s{sT + 2} offen offset:{1024 * q} sc1 lds')
A(f'''
s_setprio 0
s_waitcnt vmcnt(8)
s_barrier
s_cmp_eq_u32 s{sB}, 0
s_cbranch_scc1 L_att
''')
vKa, vKb, vKc = 128, 160, 192
A(f'''
v_bfe_u32 v{vT}, v{vL}, 2, 2
v_lshl_add_u32 v{vT + 1}, v{vH}, 2, v{vT}      ; 4h + r
v_lshrrev_b32 v{vT + 2}, 1, v{vT + 1}          ; 2h + (r>>1)
v_bfe_u32 v{vT + 3}, v{vL}, 4, 1
v_and_b32 v{vT}, 2, v{vL}
v_or_b32 v{vT + 3}, v{vT + 3}, v{vT}           ; 2*a1 + a2
v_xor_b32 v{vT + 2}, v{vT + 2}, v{vT + 3}
v_lshlrev_b32 v{vT + 2}, 4, v{vT + 2}
v_lshl_add_u32 v{vT + 1}, v{vT + 1}, 6, v{vT + 2}
v_and_b32 v{vT}, 1, v{vL}
v_lshl_add_u32 v{vT + 1}, v{vT}, 3, v{vT + 1}
s_lshl_b32 s{sT}, s{sRT}, 13
s_add_u32 s{sT}, s{sT}, {L_PHI}
v_add_u32 v{vT + 1}, s{sT}, v{vT + 1}
s_lshr_b32 s{sT + 2}, s{sRT}, 1
s_lshl_b32 s{sT}, s{sT + 2}, 13
s_add_u32 s{sT}, s{sT}, {L_V}
v_add_u32 v{vT + 2}, s{sT}, v{vLin}
''')


def kv_reads(st):
    A(f'ds_read_b64_tr_b16 {vr(vKa + 4 * st, 2)}, v{vT + 1} offset:{(16 * st) * 64}')
    A(f'ds_read_b64_tr_b16 {vr(vKa + 4 * st + 2, 2)}, v{vT + 1} offset:{(16 * st + 8) * 64}')
    A(f'ds_read_b128 {vr(vKb + 4 * st, 4)}, v{vT + 2} offset:{st * 1024}')


for st in range(4):
    kv_reads(st)
for st in range(8):
    A(f's_waitcnt lgkmcnt({min(9, 3 * (7 - st))})')
    A(f'v_mfma_f32_32x32x16_bf16 {vr(vKc, 16)}, {vr(vKa + 4 * st, 4)}, {vr(vKb + 4 * st, 4)}, {vr(vKc, 16) if st else 0}')
    if st + 4 < 8:
        kv_reads(st + 4)
A(f'''
s_lshl_b32 s{sT}, s{sCG}, 1
s_add_u32 s{sT}, s{sT}, s{sT + 2}
s_lshl_b32 s{sT}, s{sT}, 4
s_add_u32 s{sT}, s{sT}, s{sRB1}
s_lshl_b32 s{sT}, s{sT}, 1
s_and_b32 s{sT + 1}, s{sRT}, 1
s_add_u32 s{sT}, s{sT}, s{sT + 1}
s_lshl_b32 s{sT}, s{sT}, 12
s_add_u32 s{sT}, s{sT}, {WS_KVP}
''')
for q in range(4):
    A(f'buffer_store_dwordx4 {vr(vKc + 4 * q, 4)}, v{vLin}, {sr(sWS, 4)}, s{sT} offen offset:{1024 * q} sc1')
A('s_branch L_att')

vXl, vWl = 16, 20
vFA, vFB = 24, 44
vAcc = 64
A(f'''
L_comp:
s_and_b32 s{sRH}, s{sWv}, 1
s_lshr_b32 s{sH1}, s{sWv}, 1
''')


vPf, sPf = 23, 101


def prefetch_setup():
    A(f"""
    s_and_b32 s{sT}, s{sJ}, 15
    v_lshrrev_b32 v{vT}, 4, v{vL}
    v_and_b32 v{vT + 1}, 15, v{vL}
    s_mov_b32 s{sX + 3}, 0x20000
    s_cmp_eq_u32 s{sRH}, 0
    s_cbranch_scc0 L_pfw
    v_mul_u32_u24 v{vT + 1}, 896, v{vT + 1}
    v_lshl_add_u32 v{vPf}, v{vT}, 7, v{vT + 1}
    s_lshl_b32 s{sT + 1}, s{sXc}, 4
    s_add_u32 s{sT}, s{sT}, s{sT + 1}
    s_mul_i32 s{sPf}, s{sT}, {16 * 896}
    s_mov_b32 s{sW}, 128
    s_mov_b32 s{sX + 2}, {2048 * 896}
    s_cmp_eq_u32 s{sB}, 0
    s_waitcnt lgkmcnt(0)
    s_cselect_b32 s{sX}, s4, s10
    s_cselect_b32 s{sX + 1}, s5, s11
    s_branch L_pfi
    L_pfw:
    v_min_u32 v{vT + 1}, 10, v{vT + 1}
    v_mul_u32_u24 v{vT}, {64 * 2688}, v{vT}
    v_lshl_add_u32 v{vPf}, v{vT + 1}, 7, v{vT}
    s_lshr_b32 s{sT + 1}, s{sXc}, 1
    s_lshl_b32 s{sT + 1}, s{sT + 1}, 4
    s_add_u32 s{sT}, s{sT}, s{sT + 1}
    s_mul_i32 s{sT}, s{sT}, 2688
    s_and_b32 s{sT + 1}, s{sXc}, 1
    s_mul_i32 s{sT + 1}, s{sT + 1}, 1280
    s_add_u32 s{sPf}, s{sT}, s{sT + 1}
    s_mov_b32 s{sW}, {64 * 2688}
    s_mov_b32 s{sX + 2}, {448 * 2688}
    s_cmp_eq_u32 s{sB}, 0
    s_waitcnt lgkmcnt(0)
    s_cselect_b32 s{sX}, s6, s12
    s_cselect_b32 s{sX + 1}, s7, s13
    L_pfi:
    """)


def prefetch(code):
    k0, n0, k1, n1 = (code >> 12) & 15, (code >> 8) & 15, (code >> 4) & 15, code & 15
    A(f"""
    s_cmp_eq_u32 s{sH1}, 0
    s_cselect_b32 s{sT}, {k0}, {k1}
    s_cselect_b32 s{sT + 1}, {64 - 16 * n0}, {64 - 16 * n1}
    s_mul_i32 s{sT}, s{sT}, s{sW}
    s_add_u32 s{sT}, s{sT}, s{sPf}
    s_lshr_b64 exec, -1, s{sT + 1}
    buffer_load_dword v15, v{vPf}, {sr(sX, 4)}, s{sT} offen {'nt' if OPT['pfnt'] else ''}
    s_mov_b64 exec, -1
    """)


if OPT['pfa'] or OPT['pfb']:
    prefetch_setup()
if OPT['pfa']:
    prefetch(OPT['pfa'])
A('s_waitcnt lgkmcnt(0)')
if OPT['pfc']:
    A(f'''
    s_cmp_eq_u32 s{sB}, 0
    s_cselect_b32 s{sX}, s4, s10
    s_cselect_b32 s{sX + 1}, s5, s11
    s_cselect_b32 s{sW}, s6, s12
    s_cselect_b32 s{sW + 1}, s7, s13
    s_mov_b32 s{sX + 2}, {2048 * 896}
    s_mov_b32 s{sX + 3}, 0x20000
    s_mov_b32 s{sW + 2}, {448 * 2688}
    s_mov_b32 s{sW + 3}, 0x20000
    ''')
    spf_setup()
    for kc in digits(OPT['pfc']):
        spf(kc)
common_setup()
A(f'''
s_cmp_eq_u32 s{sB}, 0
s_cbranch_scc1 L_nophi
s_lshl_b32 s{sT}, s{sWv}, 10
s_add_u32 m0, s{sT}, {L_WPHI}
s_mul_i32 s{sT + 1}, s{sCG}, 3136
s_add_u32 s{sT}, s{sT}, s{sT + 1}
buffer_load_dwordx4 v{vLin}, {sr(sPHI, 4)}, s{sT} offen lds
L_nophi:
s_cmp_eq_u32 s{sWv}, 1
s_cbranch_scc0 L_nopf
s_getpc_b64 s[{sT}:{sT + 1}]
L_pc:
s_sub_u32 s{sT}, s{sT}, L_pc-L_ld
s_subb_u32 s{sT + 1}, s{sT + 1}, 0
s_lshl_b32 s{sT + 2}, s{sJ}, 10
s_cmp_lt_u32 s{sT + 2}, L_end-L_ld
s_cbranch_scc0 L_nopf
s_add_u32 s{sT}, s{sT}, s{sT + 2}
s_addc_u32 s{sT + 1}, s{sT + 1}, 0
global_load_dword v14, v{vLin}, s[{sT}:{sT + 1}]
L_nopf:
s_cmp_eq_u32 s{sWv}, 0
s_cbranch_scc0 L_noinit
v_mov_b32 v{vT}, 0
v_mov_b32 v{vT + 1}, {L_RELAY}
ds_write_b32 v{vT + 1}, v{vT}
ds_write_b32 v{vT + 1}, v{vT} offset:4
''')
A(f'''
L_noinit:
v_and_b32 v{vT}, 31, v{vL}
v_bfe_u32 v{vT + 1}, v{vL}, 1, 3
v_xor_b32 v{vT + 1}, v{vT + 1}, v{vH}
v_lshlrev_b32 v{vT + 1}, 4, v{vT + 1}
s_lshl_b32 s{sT}, s{sRH}, 6
v_add_u32 v{vT}, s{sT}, v{vT}
v_lshl_add_u32 v{vXl}, v{vT}, 7, v{vT + 1}
v_xor_b32 v{vXl + 1}, 32, v{vXl}
v_xor_b32 v{vXl + 2}, 64, v{vXl}
v_xor_b32 v{vXl + 3}, 0x60, v{vXl}
v_bfe_u32 v{vT}, v{vL}, 2, 2
v_lshl_add_u32 v{vT + 1}, v{vH}, 3, v{vT}
v_mul_u32_u24 v{vT + 1}, 384, v{vT + 1}
v_lshrrev_b32 v{vT}, 1, v{vT}
v_bfe_u32 v{vT + 2}, v{vL}, 4, 1
v_and_b32 v{vT + 3}, 3, v{vL}
v_lshl_add_u32 v{vT + 2}, v{vT + 2}, 2, v{vT + 3}
v_add_u32 v{vT + 5}, 1, v{vT + 2}
v_and_b32 v{vT + 5}, 8, v{vT + 5}
v_lshlrev_b32 v{vT}, 3, v{vT}
''')
for i in range(3):
    A(f'''
    s_mul_i32 s{sT}, s{sH1}, 3
    s_add_u32 s{sT}, s{sT}, {i}
    s_add_u32 s{sT + 1}, s{sH1}, {2 * i}
    s_cmp_eq_u32 s{sB}, 0
    s_cselect_b32 s{sT}, s{sT}, s{sT + 1}
    s_and_b32 s{sT + 1}, s{sT}, 1
    s_lshr_b32 s{sT}, s{sT}, 1
    s_lshl_b32 s{sT}, s{sT}, 7
    s_add_u32 s{sT}, s{sT}, 16384
    s_xor_b32 s{sT + 2}, s{sT + 1}, 1
    s_mul_i32 s{sT + 1}, s{sT + 1}, 7
    v_mad_u32_u24 v{vT + 3}, v{vT + 5}, s{sT + 2}, v{vT + 2}
    v_add_u32 v{vT + 3}, s{sT + 1}, v{vT + 3}
    v_xor_b32 v{vT + 3}, v{vT + 3}, v{vT}
    v_lshl_add_u32 v{vT + 3}, v{vT + 3}, 3, v{vT + 1}
    v_add_u32 v{vWl + i}, s{sT}, v{vT + 3}
    ''')
A(f'''
s_lshl_b32 s{sT + 8}, s{sCG}, 1
s_add_u32 s{sT + 8}, s{sT + 8}, s{sH1}
''')
for i in range(3):
    A(f'''
    s_mul_i32 s{sT}, s{sT + 8}, 3
    s_add_u32 s{sT}, s{sT}, {i}
    s_lshr_b32 s{sT}, s{sT}, 4
    s_cmp_eq_u32 s{sB}, 0
    s_cselect_b32 s{sT}, s{sT}, {i & 2}
    v_mov_b32 v{vT}, 0
    s_cmp_eq_u32 s{sT}, 2
    s_cselect_b64 exec, {sr(sOnesM, 2)}, 0
    v_mov_b32 v{vT}, 1.0
    s_mov_b64 exec, -1
    v_mov_b32 v{vT + 1}, v{vT}
    s_cmp_eq_u32 s{sT}, 1
    s_cselect_b64 exec, {sr(sHi, 2)}, 0
    v_mov_b32 v{vT + 1}, 1.0
    s_mov_b64 exec, -1
    ''')
    for r in range(32):
        A(f'v_mov_b32 v{vAcc + 32 * i + r}, v{vT + 1 if (r & 15) in (12, 13, 14) else vT}')


def p1_read_list(s, F):
    r = [f'ds_read_b128 {vr(F, 4)}, v{vXl + s}']
    for i in range(3):
        for u in range(2):
            r.append(f'ds_read_b64_tr_b16 {vr(F + 8 + 4 * i + 2 * u, 2)}, v{vWl + i} offset:{(16 * s + 4 * u) * 384}')
        if i == 0:
            r.append(f'ds_read_b128 {vr(F + 4, 4)}, v{vXl + s} offset:4096')
    return r


def p1_step(F, var, reads, extra=()):
    reads = list(reads)
    extra = list(extra)
    n = 0
    for i in range(3):
        for a in range(2):
            w, x, acc = vr(F + 8 + 4 * i, 4), vr(F + 4 * a, 4), vr(vAcc + 32 * i + 16 * a, 16)
            p, q = (w, x) if var[i] == 'T' else (x, w)
            A(f'v_mfma_f32_32x32x16_bf16 {acc}, {p}, {q}, {acc}')
            if n < 3:
                for r in reads[3 * n:3 * n + 3]:
                    A(r)
            else:
                for r in extra[4 * (n - 3):4 * (n - 3) + 4]:
                    A(r)
            n += 1


if OPT['pfb']:
    prefetch(OPT['pfb'])
A(f'''
s_mov_b32 s{sC}, 0
s_mov_b32 s{sSlot}, 0
s_cmp_eq_u32 s{sB}, 0
s_cselect_b32 s{sT}, s{sT + 8}, 10
s_waitcnt lgkmcnt(0)
s_barrier
''')
stamp('p1_first')
for r in p1_read_list(0, vFA):
    A(r)
A(f'''
s_or_b32 s{sT + 1}, s{sJI}, s{sWv}
s_cbranch_scc1 L_nosig0
s_and_b32 s{sT + 1}, s2, 31
s_lshl_b32 s{sT + 1}, s{sT + 1}, 2
s_mov_b64 exec, 1
buffer_store_dword v{vOne}, v{vL}, {sr(sDBG, 4)}, s{sT + 1} offen sc1
s_mov_b64 exec, -1
L_nosig0:
s_cmp_eq_u32 s{sT}, 10
s_cbranch_scc1 L_p1_TTN
s_cmp_gt_u32 s{sT}, 10
s_cbranch_scc1 L_p1_NNN
''')
for var in ('TTT', 'TTN', 'NNN'):
    A('.p2align 3')
    A(f'L_p1_{var}:')
    A('s_waitcnt lgkmcnt(0)')
    A(f's_add_u32 s{sC}, s{sC}, 1')
    p1_step(vFA, var, p1_read_list(1, vFB),
            [f's_add_u32 s{sSlot}, s{sSlot}, 1', f's_cmp_eq_u32 s{sSlot}, 3', f's_cselect_b32 s{sSlot}, 0, s{sSlot}',
             f's_cselect_b32 s{sT}, -2, 1', f's_mul_i32 s{sT}, s{sT}, {SLOT}'])
    A('s_waitcnt lgkmcnt(0)')
    A('s_nop 0')
    p1_step(vFB, var, p1_read_list(2, vFA))
    A('s_waitcnt lgkmcnt(0)')
    A('s_nop 0')
    p1_step(vFA, var, p1_read_list(3, vFB), [f'v_add_u32 v{vXl + i}, s{sT}, v{vXl + i}' for i in range(7)] + ['s_nop 0'])
    A('s_waitcnt lgkmcnt(0)')
    A('s_barrier')
    p1_step(vFB, var, p1_read_list(0, vFA))
    A(f's_cmp_eq_u32 s{sC}, 4')
    A(f's_cbranch_scc1 L_p1h_{var}')
    A(f's_cmp_lt_u32 s{sC}, 7')
    A(f's_cbranch_scc1 L_p1_{var}')
    A('s_branch L_p1_done')
    A(f'''
    L_p1h_{var}:
    s_waitcnt vmcnt(0)
    s_branch L_p1_{var}
    ''')
A('L_p1_done:')
stamp('p1_done')
A(f'''
s_lshl_b32 s{sT + 4}, s{sRB1}, 1
s_add_u32 s{sT + 4}, s{sT + 4}, s{sRH}
s_lshl_b32 s{sT + 4}, s{sT + 4}, 1
s_waitcnt lgkmcnt(0)
s_cmp_eq_u32 s{sB}, 0
s_cbranch_scc0 L_epiB
''')
vP = 16
A(f'''
v_and_b32 v{vT}, 0x33, v{vL}
v_bfe_u32 v{vT + 1}, v{vL}, 2, 1
v_bfe_u32 v{vT + 2}, v{vL}, 3, 1
v_lshl_add_u32 v{vT}, v{vT + 1}, 3, v{vT}
v_lshl_add_u32 v{vT}, v{vT + 2}, 2, v{vT}
v_lshlrev_b32 v{vT}, 4, v{vT}
s_mov_b32 s{sT + 6}, {f32(QSCALE)}
s_mov_b32 s{sT + 7}, {f32(QSCALE)}
s_mul_i32 s{sT + 8}, s{sT + 8}, 3
''')
for i in range(3):
    acc, P = vAcc + 32 * i, vP + 16 * i
    A(f'''
    s_add_u32 s{sT}, s{sT + 8}, {i}
    s_and_b32 s{sT + 1}, s{sT}, 15
    s_lshl_b32 s{sT + 1}, s{sT + 1}, 6
    s_add_u32 s{sT + 1}, s{sT + 1}, s{sT + 4}
    s_lshr_b32 s{sT}, s{sT}, 4
    s_cmp_eq_u32 s{sT}, 1
    s_cselect_b64 vcc, -1, 0
    s_cmp_eq_u32 s{sT}, 0
    s_cbranch_scc0 L_eA_kv{i}
    s_lshl_b32 s{sT + 1}, s{sT + 1}, 11
    s_add_u32 s{sT + 2}, s{sT + 1}, 2048
    ''')
    for r in range(0, 32, 2):
        A(f'v_pk_mul_f32 {vr(acc + r, 2)}, {vr(acc + r, 2)}, {sr(sT + 6, 2)}')
    A(f'''
    s_branch L_eA_n{i}
    L_eA_kv{i}:
    s_lshl_b32 s{sT + 1}, s{sT + 1}, 1
    s_add_u32 s{sT + 1}, s{sT + 1}, s{sT}
    s_lshl_b32 s{sT + 1}, s{sT + 1}, 11
    s_add_u32 s{sT + 2}, s{sT + 1}, {WS_KV - 2048 + 4096}
    s_add_u32 s{sT + 1}, s{sT + 1}, {WS_KV - 2048}
    L_eA_n{i}:
    v_cndmask_b32 v{vT + 1}, v{vLin}, v{vT}, vcc
    ''')
    for q in range(4):
        for r in range(4 * q, 4 * q + 4):
            A(f'v_cvt_pk_bf16_f32 v{P + r}, v{acc + 2 * r}, v{acc + 2 * r + 1}')
        A(f'buffer_store_dwordx4 {vr(P + 4 * q, 4)}, v{vT + 1}, {sr(sWS, 4)}, s{sT + 1 + (q >> 1)} offen offset:{1024 * (q & 1)} sc1')
stamp('epi_done')
A(f'''
s_mul_i32 s{sT}, s{sCG}, 3
v_add_u32 v{vT}, s{sT}, v{vL}
v_and_b32 v{vT + 1}, 7, v{vT}
v_lshrrev_b32 v{vT}, 3, v{vT}
v_mul_u32_u24 v{vT + 1}, {FGRP}, v{vT + 1}
v_lshl_add_u32 v{vT + 2}, v{vT}, 11, v{vT + 1}
s_lshl_b32 s{sT}, s{sRB1}, 7
s_add_u32 s{sT}, s{sT}, {WS_FL + F_A}
s_waitcnt vmcnt(0)
s_barrier
s_cmp_eq_u32 s{sWv}, 0
s_cbranch_scc0 L_k0
s_mov_b64 exec, 7
buffer_store_dword v{vOne}, v{vT + 2}, {sr(sWS, 4)}, s{sT} offen sc1
s_mov_b64 exec, -1
''')
stamp('sigA')
A('s_branch L_k0')
pK, pQ, pV, vWF, vX, vU = 16, 32, 48, 160, 168, 200
A('L_epiB:')
wphi_addr(vU, vU + 1)
A(f'''
s_mul_i32 s{sT}, s{sH1}, 1568
s_add_u32 s{sT}, s{sT}, {L_WPHI}
v_add_u32 v{vU}, s{sT}, v{vU}
''')
for q in range(4):
    A(f'ds_read_b64_tr_b16 {vr(vWF + 2 * q, 2)}, v{vU} offset:{8 * q * 56}')
cvt8(pK, vAcc + 32)
cvt8(pK + 8, vAcc + 48)
A(f'''
s_lshl_b32 s{sT + 1}, s{sT + 8}, 6
s_add_u32 s{sT + 1}, s{sT + 1}, s{sT + 4}
s_lshl_b32 s{sT + 1}, s{sT + 1}, 11
s_add_u32 s{sT + 1}, s{sT + 1}, {WS_QB}
s_waitcnt lgkmcnt(0)
''')
for a in range(2):
    A(f'v_mfma_f32_32x32x16_bf16 {vr(vX + 16 * a, 16)}, {vr(vWF, 4)}, {vr(pK + 8 * a, 4)}, 0')
    for i in range(4):
        A(f'v_cvt_pk_bf16_f32 v{pV + 8 * a + i}, v{vAcc + 64 + 16 * a + 2 * i}, v{vAcc + 64 + 16 * a + 2 * i + 1}')
    A(f'v_mfma_f32_32x32x16_bf16 {vr(vX + 16 * a, 16)}, {vr(vWF + 4, 4)}, {vr(pK + 8 * a + 4, 4)}, {vr(vX + 16 * a, 16)}')
    for i in range(4, 8):
        A(f'v_cvt_pk_bf16_f32 v{pV + 8 * a + i}, v{vAcc + 64 + 16 * a + 2 * i}, v{vAcc + 64 + 16 * a + 2 * i + 1}')
cvt8(pQ, vAcc)
cvt8(pQ + 8, vAcc + 16)
for q in range(4):
    A(f'buffer_store_dwordx4 {vr(pQ + 4 * q, 4)}, v{vLin}, {sr(sWS, 4)}, s{sT + 1} offen offset:{1024 * q} sc1')
A(f'''
s_lshl_b32 s{sT}, s{sWv}, 12
s_add_u32 s{sT}, s{sT}, {L_V}
v_add_u32 v{vU}, s{sT}, v{vLin}
''')
for q in range(4):
    A(f'ds_write_b128 v{vU}, {vr(pV + 4 * q, 4)} offset:{1024 * q}')
tiles = [(vX + 16 * a, vAcc + 16 * a, vAcc + 32 + 16 * a, vT + 4 * a) for a in range(2)]
features(tiles)
for X, Ep, En, t in tiles:
    A(f'v_pk_add_f32 {vr(t, 2)}, {vr(Ep, 2)}, {vr(Ep + 2, 2)}')
    A(f'v_pk_add_f32 {vr(t + 2, 2)}, {vr(En, 2)}, {vr(En + 2, 2)}')
for r in range(4, 16, 2):
    for X, Ep, En, t in tiles:
        A(f'v_pk_add_f32 {vr(t, 2)}, {vr(t, 2)}, {vr(Ep + r, 2)}')
        A(f'v_pk_add_f32 {vr(t + 2, 2)}, {vr(t + 2, 2)}, {vr(En + r, 2)}')
for X, Ep, En, t in tiles:
    A(f'v_add_f32 v{t}, v{t}, v{t + 1}')
    A(f'v_add_f32 v{t + 2}, v{t + 2}, v{t + 3}')
A(f'''
v_and_b32 v{vU}, 31, v{vL}
v_bfe_u32 v{vU + 1}, v{vL}, 1, 2
''')
for X, Ep, En, t in tiles:
    A(f'v_permlane32_swap_b32 v{t}, v{t + 2}')
for X, Ep, En, t in tiles:
    A(f'v_add_f32 v{t}, v{t}, v{t + 2}')
for X, Ep, En, t in tiles:
    A(f'v_rcp_f32 v{t}, v{t}')
A(f'''
v_lshlrev_b32 v{vU + 2}, 1, v{vH}
''')
for X, Ep, En, t in tiles:
    A(f'v_mov_b32 v{t + 2}, v{t}')
A(f'''
v_xor_b32 v{vU + 1}, v{vU + 1}, v{vU + 2}
v_lshlrev_b32 v{vU + 1}, 4, v{vU + 1}
''')
for X, Ep, En, t in tiles:
    A(f'v_permlane32_swap_b32 v{t}, v{t + 2}')
A(f'''
v_lshl_add_u32 v{vU}, v{vU}, 6, v{vU + 1}
s_lshl_b32 s{sT}, s{sH1}, 14
s_lshl_b32 s{sT + 1}, s{sRH}, 12
s_add_u32 s{sT}, s{sT}, s{sT + 1}
s_add_u32 s{sT}, s{sT}, {L_PHI}
v_add_u32 v{vU}, s{sT}, v{vU}
v_xor_b32 v{vU + 1}, 16, v{vU}
''')
for a, (X, Ep, En, t) in enumerate(tiles):
    for sg, (E, s_) in enumerate(((Ep, t), (En, t + 2))):
        for r in range(0, 16, 2):
            A(f'v_pk_mul_f32 {vr(E + r, 2)}, {vr(E + r, 2)}, {vr(s_, 2)} op_sel_hi:[1,0]')
        P = X + 8 * sg
        cvt8(P, E)
        A(f'ds_write_b128 v{vU}, {vr(P, 4)} offset:{8192 * sg + 2048 * a}')
        A(f'ds_write_b128 v{vU + 1}, {vr(P + 4, 4)} offset:{8192 * sg + 2048 * a}')
stamp('epi_done')
A(f'''
s_waitcnt lgkmcnt(0)
L_k0:
s_barrier
''')
vQ, vO, vS, vPp, vF, vIdx, vFg, vRd = 16, 24, 40, 72, 88, 120, 121, 122
vEp, vEn, vNp, vNn, vQB, vWF2, vKVF, vSlA, vWoG = 124, 140, 156, 172, 188, 196, 204, 14, 15
vSl, vX2, vOA = 220, vNp, 252
A('L_att:')
stamp('k0')


def kv_issue(c):
    for kh in range(2):
        A(f's_add_u32 m0, s{sM0}, {(c % 4) * 32768 + kh * 16384}')
        A(f's_add_u32 s{sT + 2}, s{sKVo}, {c * 16384 + kh * 131072}')
        for q in range(4):
            A(f'buffer_load_dwordx4 v{vLin}, {sr(sWS, 4)}, s{sT + 2} offen offset:{1024 * q} sc1 lds')


def lds_frag(dst, t, piece):
    off = ((t >> 2) % 4) * 32768 + (t & 3) * 4096 + piece * 1024
    A(f'ds_read_b128 {vr(dst, 4)}, v{vRd + (off >> 16)} offset:{off & 0xffff}')


def set_qpad(m, t):
    A(f'''
    v_and_b32 v{t}, 0xffff0000, v{m}
    v_sub_f32 v{t + 1}, v{m}, v{t}
    v_and_b32 v{t + 2}, 0xffff0000, v{t + 1}
    v_sub_f32 v{t + 1}, v{t + 1}, v{t + 2}
    v_lshrrev_b32 v{t}, 16, v{t}
    s_mov_b64 exec, {sr(sHi, 2)}
    v_or_b32 v{vQ + 6}, v{t}, v{t + 2}
    v_lshrrev_b32 v{vQ + 7}, 16, v{t + 1}
    s_mov_b64 exec, -1
    ''')


def qk(S, K_, half):
    c = vr(S, 16) if half else '0'
    A(f'v_mfma_f32_32x32x16_bf16 {vr(S, 16)}, {vr(K_, 4)}, {vr(vQ + 4 * half, 4)}, {c}')


def pv(V, half):
    A(f'v_smfmac_f32_32x32x32_bf16 {vr(vO, 16)}, {vr(V, 4)}, {vr(vPp + 8 * half, 8)}, v{vIdx}')


A(f'''
s_lshl_b32 s{sT}, s{sRT}, 11
s_add_u32 s{sT}, s{sT}, {L_Q}
v_add_u32 v{vT}, s{sT}, v{vLin}
s_lshl_b32 s{sT}, s{sHH}, 14
v_add_u32 v{vRd}, s{sT}, v{vLin}
ds_read_b128 {vr(vQ, 4)}, v{vT}
ds_read_b128 {vr(vPp, 4)}, v{vLin}
ds_read_b128 {vr(vQ + 4, 4)}, v{vT} offset:1024
ds_read_b128 {vr(vPp + 4, 4)}, v{vLin} offset:1024
''')
lds_frag(vF + 16, 0, 0)
lds_frag(vF + 20, 0, 1)
lds_frag(vF, 1, 0)
lds_frag(vF + 4, 1, 1)
lds_frag(vF + 12, 0, 2)
A(f'''
v_add_u32 v{vRd + 1}, 0x10000, v{vRd}
v_mov_b32 v{vIdx}, 0xdddddddd
s_lshl_b32 s{sM0}, s{sWv}, 12
s_waitcnt lgkmcnt(7)
''')
qk(vS + 16, vPp, 0)
A('s_waitcnt lgkmcnt(5)')
qk(vS + 16, vPp + 4, 1)
A('s_waitcnt lgkmcnt(4)')
qk(vS, vF + 16, 0)
for r in range(16):
    A(f'v_mov_b32 v{vO + r}, 0')
S = vS + 16
A(f'v_max3_f32 v{vT}, v{S}, v{S + 1}, v{S + 2}')
A(f'v_max3_f32 v{vT + 1}, v{S + 3}, v{S + 4}, v{S + 5}')
A(f'v_max3_f32 v{vT}, v{vT}, v{S + 6}, v{S + 7}')
A(f'v_max3_f32 v{vT + 1}, v{vT + 1}, v{S + 8}, v{S + 9}')
A(f'v_max3_f32 v{vT}, v{vT}, v{S + 10}, v{S + 11}')
A(f'v_max3_f32 v{vT + 1}, v{vT + 1}, v{S + 12}, v{S + 13}')
A(f'v_max3_f32 v{vT}, v{vT}, v{S + 14}, v{S + 15}')
A(f'''
v_max_f32 v{vT}, v{vT}, v{vT + 1}
v_mov_b32 v{vT + 1}, v{vT}
v_permlane32_swap_b32 v{vT}, v{vT + 1}
v_max_f32 v{vT}, v{vT}, v{vT + 1}
v_sub_f32 v{vT}, {f32(-float(OPT['moff']) if not OPT['force_fb'] else 200.0)}, v{vT}
''')
set_qpad(vT, vT + 1)
A('s_waitcnt lgkmcnt(3)')
qk(vS, vF + 20, 1)
A(f'''
v_lshrrev_b32 v{vT}, 3, v{vL}
v_mul_u32_u24 v{vT}, 896, v{vT}
v_lshrrev_b32 v{vT + 1}, 4, v{vL}
v_lshlrev_b32 v{vT + 1}, 1, v{vT + 1}
v_and_b32 v{vT + 2}, 7, v{vL}
v_xor_b32 v{vT + 1}, v{vT + 1}, v{vT + 2}
v_lshl_add_u32 v{vWoG}, v{vT + 1}, 4, v{vT}
s_nop 0
''')


def wo_issue(srd_, lds_base, first, n, per_wave, wave_s):
    A(f's_mul_i32 s{sT + 3}, s{wave_s}, {per_wave * 1024}')
    A(f's_mul_i32 s{sT + 4}, s{wave_s}, {per_wave * 7168}')
    A(f's_lshl_b32 s{sT + 5}, s{sCB}, 7')
    A(f's_add_u32 s{sT + 4}, s{sT + 4}, s{sT + 5}')
    for i in range(n):
        if i % 4 == 0:
            A(f's_add_u32 m0, s{sT + 3}, {lds_base + (first + i) * 1024}')
        A(f's_add_u32 s{sT + 5}, s{sT + 4}, {(first + i) * 7168 - (i % 4) * 1024}')
        A(f'buffer_load_dwordx4 v{vWoG}, {sr(srd_, 4)}, s{sT + 5} offen offset:{(i % 4) * 1024} lds')


def guard(tag, cmp_, body):
    A(cmp_)
    A(f's_cbranch_scc0 L_g_{tag}')
    body()
    A(f'L_g_{tag}:')


def o_addr(br):
    A(f"""
    v_bfe_u32 v{vT}, v{vL}, 4, 1
    v_and_b32 v{vOA}, 15, v{vL}
    v_lshlrev_b32 v{vOA}, 4, v{vOA}
    v_lshl_add_u32 v{vOA}, v{vT}, 10, v{vOA}
    v_lshl_add_u32 v{vOA}, v{vH}, 8, v{vOA}
    s_lshl_b32 s{sT + 6}, s{sRB}, 2
    s_add_u32 s{sT + 6}, s{sT + 6}, s{sRT}
    s_lshl_b32 s{sT + 7}, s{sT + 6}, 4
    s_add_u32 s{sT + 7}, s{sT + 7}, s{sH}
    s_and_b32 s{sT + 8}, s{sT + 7}, 127
    s_lshl_b32 s{sT + 7}, s{sT + 7}, 11
    s_lshl_b32 s{sT + 8}, s{sT + 8}, 7
    s_lshr_b32 s{sT + 6}, s{sT + 6}, 3
    s_mul_i32 s{sT + 6}, s{sT + 6}, {FGRP}
    s_add_u32 s{sT + 8}, s{sT + 8}, s{sT + 6}
    s_add_u32 s{sT + 7}, s{sT + 7}, {WS_O + 0x200000 * br}
    s_add_u32 s{sT + 8}, s{sT + 8}, {WS_FL + F_O + 128 * 128 * br}
    """)


def signal(addr):
    A(f"""
    s_mov_b64 exec, 1
    buffer_store_dword v{vOne}, v{vL}, {sr(sWS, 4)}, {addr} offen sc1
    s_mov_b64 exec, -1
    """)


def sample(addr):
    A(f"""
    s_mov_b64 exec, 0xffff
    buffer_load_dword v{vFg}, v{vFl}, {sr(sWS, 4)}, {addr} offen sc1
    s_mov_b64 exec, -1
    """)


def check(tag, addr):
    A('s_mov_b64 exec, 0xffff')
    spin(tag, sWS, addr, vFl, vFg, preloaded=True)
    A('s_mov_b64 exec, -1')


def p3_flag_addr(d):
    A(f"""
    s_lshr_b32 s{sT}, s{sRT}, 1
    s_lshl_b32 s{d}, s{sRB64}, 1
    s_add_u32 s{d}, s{d}, s{sT}
    s_and_b32 s{d}, s{d}, 7
    s_xor_b32 s{sT}, s{sHH}, 1
    s_lshl_b32 s{sT}, s{sT}, 3
    s_add_u32 s{d}, s{d}, s{sT}
    s_lshl_b32 s{d}, s{d}, 11
    s_add_u32 s{d}, s{d}, s{sFG}
    s_add_u32 s{d}, s{d}, {F_O}
    """)


W0 = f's_cmp_eq_u32 s{sWv}, 0'
W03 = f's_cmp_lt_u32 s{sWv}, 4'


def hook_end(k):
    if k:
        A('s_waitcnt vmcnt(0)')
    if k == 0:
        def b():
            A(f"""
            s_lshl_b32 s{sT + 1}, s{sWv}, 10
            s_add_u32 m0, s{sT + 1}, {L_WPHI}
            s_mul_i32 s{sT + 2}, s{sH}, 1568
            s_add_u32 s{sT + 2}, s{sT + 2}, s{sT + 1}
            buffer_load_dwordx4 v{vLin}, {sr(sPHI, 4)}, s{sT + 2} offen lds
            """)
        guard('e0', f's_cmp_lt_u32 s{sWv}, 2', b)
    if k == 2:
        def b():
            check('fb', f's{sT + 9}')
            A(f"""
            v_bfe_u32 v{vT}, v{vL}, 1, 1
            v_and_b32 v{vT + 1}, 1, v{vL}
            v_lshrrev_b32 v{vSlA}, 2, v{vL}
            v_lshlrev_b32 v{vSlA}, 4, v{vSlA}
            v_lshl_add_u32 v{vSlA}, v{vT}, 10, v{vSlA}
            v_lshl_add_u32 v{vSlA}, v{vT + 1}, 3, v{vSlA}
            s_lshr_b32 s{sT}, s{sRB}, 2
            s_lshl_b32 s{sT}, s{sT}, 11
            s_and_b32 s{sT + 1}, s{sRB}, 3
            s_lshl_b32 s{sT + 1}, s{sT + 1}, 8
            s_add_u32 s{sT}, s{sT}, s{sT + 1}
            s_lshl_b32 s{sT + 1}, s{sH}, 17
            s_add_u32 s{sT}, s{sT}, s{sT + 1}
            s_add_u32 s{sT}, s{sT}, {WS_KVP}
            """)
            for p in range(16):
                A(f'buffer_load_dwordx2 {vr(vSl + 2 * p, 2)}, v{vSlA}, {sr(sWS, 4)}, s{sT} offen sc1')
                if p < 15:
                    A(f's_add_u32 s{sT}, s{sT}, 8192')
        guard('e2', W0, b)
    if k == 3:
        def b():
            n = 8
            while n:
                for p in range(n):
                    A(f'v_pk_add_f32 {vr(vSl + 2 * p, 2)}, {vr(vSl + 2 * p, 2)}, {vr(vSl + 2 * (p + n), 2)}')
                n //= 2
            A(f"""
            s_lshl_b32 s{sT}, s{sH}, 4
            s_add_u32 s{sT}, s{sT}, s{sRB}
            s_lshl_b32 s{sT}, s{sT}, 8
            s_add_u32 s{sT}, s{sT}, {WS_KVF}
            v_cvt_pk_bf16_f32 v{vSl}, v{vSl}, v{vSl + 1}
            v_lshlrev_b32 v{vSlA}, 2, v{vL}
            s_bitcmp1_b32 s{sRB}, 0
            s_cselect_b32 exec_hi, 0x00f00000, 0
            s_mov_b32 exec_lo, 0
            v_mov_b32 v{vSl}, 0x3f803f80
            s_mov_b64 exec, -1
            buffer_store_dword v{vSl}, v{vSlA}, {sr(sWS, 4)}, s{sT} offen sc1
            """)
        guard('e3', W0, b)
        wphi_addr(vT + 2, vT + 3)
        A(f'v_add_u32 v{vT + 2}, {L_WPHI}, v{vT + 2}')
        for q in range(4):
            A(f'ds_read_b64_tr_b16 {vr(vWF2 + 2 * q, 2)}, v{vT + 2} offset:{8 * q * 56}')
    if k == 4:
        A(f'v_mfma_f32_32x32x16_bf16 {vr(vX2, 16)}, {vr(vWF2, 4)}, {vr(vQB, 4)}, 0')
        A(f'v_mfma_f32_32x32x16_bf16 {vr(vX2, 16)}, {vr(vWF2 + 4, 4)}, {vr(vQB + 4, 4)}, {vr(vX2, 16)}')
    if k == 5:
        check('fk', f's{sT + 9}')
        A(f's_lshl_b32 s{sT}, s{sH}, 12')
        A(f's_add_u32 s{sT}, s{sT}, {WS_KVF}')
        for q in range(4):
            A(f'buffer_load_dwordx4 {vr(vKVF + 4 * q, 4)}, v{vLin}, {sr(sWS, 4)}, s{sT} offen offset:{1024 * q} sc1')
        for r in range(32):
            A(f'v_mov_b32 v{vNp + r}, 0')
    if k == 6:
        for m in range(2):
            A(f'v_smfmac_f32_32x32x32_bf16 {vr(vNp, 16)}, {vr(vKVF + 4 * m, 4)}, {vr(vEp + 8 * m, 8)}, v{vIdx}')
        for m in range(2):
            A(f'v_smfmac_f32_32x32x32_bf16 {vr(vNn, 16)}, {vr(vKVF + 8 + 4 * m, 4)}, {vr(vEn + 8 * m, 8)}, v{vIdx}')
        o_addr(1)
        ap, an = vT + 4, vT + 6
        A(f"""
        v_mov_b32 v{vT}, {f32(1e-6)}
        v_rcp_f32 v{ap}, v{vNp + 13}
        v_rcp_f32 v{an}, v{vNn + 13}
        v_fmac_f32 v{vT}, v{vNp + 12}, v{ap}
        v_fmac_f32 v{vT}, v{vNn + 12}, v{an}
        v_rcp_f32 v{vT}, v{vT}
        v_mul_f32 v{ap}, v{ap}, v{vT}
        v_mul_f32 v{an}, v{an}, v{vT}
        v_mov_b32 v{vT}, v{ap}
        v_mov_b32 v{vT + 1}, v{an}
        v_permlane32_swap_b32 v{vT}, v{ap}
        v_permlane32_swap_b32 v{vT + 1}, v{an}
        """)
        for r in range(0, 16, 2):
            A(f'v_pk_mul_f32 {vr(vNp + r, 2)}, {vr(vNp + r, 2)}, {vr(ap, 2)} op_sel_hi:[1,0]')
        for r in range(0, 16, 2):
            A(f'v_pk_fma_f32 {vr(vNp + r, 2)}, {vr(vNn + r, 2)}, {vr(an, 2)}, {vr(vNp + r, 2)} op_sel_hi:[1,0,1]')
        cvt8(vEp, vNp)
        A(f"""
        s_mov_b64 exec, {sr(sHi, 2)}
        v_mov_b32 v{vEp + 6}, 0
        v_mov_b32 v{vEp + 7}, 0
        s_mov_b64 exec, -1
        buffer_store_dwordx4 {vr(vEp, 4)}, v{vOA}, {sr(sWS, 4)}, s{sT + 7} offen sc1
        buffer_store_dwordx4 {vr(vEp + 4, 4)}, v{vOA}, {sr(sWS, 4)}, s{sT + 7} offen offset:512 sc1
        """)
        wo_issue(sWOB, L_WOB, 0, 8, 8, sWv)
    if k <= 5:
        kv_issue(k + 2)
    if k == 4:
        features([(vX2, vEp, vEn, vT + 4)])


def hook_mid(t):
    n0 = len(A.lines)
    if t == 2:
        def b():
            A(f"""
            s_mul_i32 s{sT}, s{sCG}, {FGRP}
            s_lshl_b32 s{sT + 1}, s{sRB1}, 7
            s_add_u32 s{sT}, s{sT}, s{sT + 1}
            s_add_u32 s{sT}, s{sT}, {WS_FL + F_B}
            """)
            signal(f's{sT}')
        guard('m2', f's_cmp_lt_u32 s{sWv}, s{sB}', b)
    if t in (3, 7) and OPT['wpf']:
        def b():
            A(f"""
            s_lshl_b32 s{sT}, s{sRT}, 5
            s_add_u32 s{sT}, s{sT}, s{sJ}
            s_lshl_b32 s{sT}, s{sT}, 12
            s_mov_b32 exec_hi, 0
            buffer_load_dword v{vFg}, v{vFl}, {sr(sWOB if t == 3 else sWOA, 4)}, s{sT} offen
            s_mov_b32 exec_hi, -1
            """)
        guard(f'm{t}', f's_cmp_ge_u32 s{sWv}, 4', b)
    if t == 8:
        def b():
            A(f's_add_u32 s{sT + 9}, s{sFG}, {F_B}')
            sample(f's{sT + 9}')
        guard('m8', W0, b)
    if t == 12:
        def b():
            A(f"""
            s_lshl_b32 s{sT}, s{sH}, 6
            s_lshl_b32 s{sT + 1}, s{sRB}, 2
            s_add_u32 s{sT}, s{sT}, s{sT + 1}
            s_add_u32 s{sT}, s{sT}, s{sRT}
            s_lshl_b32 s{sT}, s{sT}, 11
            s_add_u32 s{sT}, s{sT}, {WS_QB}
            buffer_load_dwordx4 {vr(vQB, 4)}, v{vLin}, {sr(sWS, 4)}, s{sT} offen sc1
            buffer_load_dwordx4 {vr(vQB + 4, 4)}, v{vLin}, {sr(sWS, 4)}, s{sT} offen offset:1024 sc1
            """)
        guard('m12', W03, b)
    if t == 15:
        def b():
            A(f"""
            s_lshl_b32 s{sT}, s{sJ}, 7
            s_add_u32 s{sT}, s{sT}, s{sFG}
            s_add_u32 s{sT}, s{sT}, {F_K}
            s_waitcnt vmcnt(8)
            """)
            signal(f's{sT}')
        guard('m15', W0, b)
    if t == 20:
        def b():
            A(f"""
            s_and_b32 s{sT + 9}, s{sJ}, 16
            s_lshl_b32 s{sT + 9}, s{sT + 9}, 7
            s_add_u32 s{sT + 9}, s{sT + 9}, s{sFG}
            s_add_u32 s{sT + 9}, s{sT + 9}, {F_K}
            """)
            sample(f's{sT + 9}')
        guard('m20', W03, b)
    if t == 27:
        def b():
            A('s_waitcnt vmcnt(8)')
            signal(f's{sT + 8}')
            wo_issue(sWOB, L_WOB, 32, 6, 6, sWv)
        guard('m27', W03, b)
    if len(A.lines) != n0:
        A('.p2align 3')


RDPOS = {0: [0, 1, 2, 3], 1: [0, 0, 1, 1], 3: [0, 1, 1, 2]}[OPT['rd']]
A('.p2align 3')
for t in range(32):
    S, Sn = vS + 16 * (t & 1), vS + 16 * ((t + 1) & 1)
    F, Fn = vF + 16 * (t & 1), vF + 16 * ((t + 1) & 1)
    ex = lambda r: A(f'v_exp_f32 v{vPp + r}, v{S + r}')

    def fr(slot):
        for q in range(4):
            if RDPOS[q] == slot:
                tt, piece = [(t + 2, 0), (t + 2, 1), (t, 3), (t + 1, 2)][q]
                if tt < 32:
                    lds_frag(Fn + 4 * q, tt, piece)
    c = t >> 2
    if (t & 3) == 2 and c < 7:
        if OPT['fine']:
            stamp(f'pre{t}')
        if c == 0:
            A('s_waitcnt vmcnt(0)')
        guard(f'end{c}', W03, lambda: hook_end(c))
        if OPT['fine']:
            stamp(f'hk{t}')
        A('.p2align 3')
        A('s_waitcnt lgkmcnt(0)')
        A('s_barrier')
    else:
        A('s_waitcnt lgkmcnt(0)')
        A('s_nop 0')
    if t < 31:
        qk(Sn, F, 0)
    fr(0)
    for r in range(0, 4):
        ex(r)
    if t < 31:
        qk(Sn, F + 4, 1)
    fr(1)
    for r in range(4, 8):
        ex(r)
    if t > 0:
        pv(F + 8, 1)
    fr(2)
    for r in range(8, 12):
        ex(r)
    pv(F + 12, 0)
    fr(3)
    hook_mid(t)
    for r in range(12, 16):
        ex(r)
A('s_waitcnt lgkmcnt(0)')
pv(vF + 8, 1)
stamp('att_done')
A(f"""
s_lshl_b32 s{sT}, s{sRT}, 12
s_add_u32 s{sT}, s{sT}, {L_XCH}
v_add_u32 v{vT + 4}, s{sT}, v{vLin}
""")
p3_flag_addr(sT + 9)
A(f"""
s_cmp_eq_u32 s{sHH}, 0
s_cbranch_scc0 L_tailA
""")


def p3_addr(base):
    vWa = 16
    A(f"""
    v_bfe_u32 v{vT}, v{vL}, 2, 2                 ; r
    v_bfe_u32 v{vT + 1}, v{vL}, 4, 1             ; g&1
    v_and_b32 v{vT + 2}, 3, v{vL}
    v_lshlrev_b32 v{vT + 2}, 3, v{vT + 2}
    v_lshl_add_u32 v{vT + 2}, v{vT}, 7, v{vT + 2}
    v_lshl_add_u32 v{vT + 2}, v{vH}, 11, v{vT + 2}
    v_lshrrev_b32 v{vT}, 1, v{vT}
    v_lshl_add_u32 v{vT + 2}, v{vT}, 5, v{vT + 2}
    v_add_u32 v{vT + 2}, {base}, v{vT + 2}
    v_mul_u32_u24 v{vT + 3}, 576, v{vT + 1}
    v_add_u32 v{vWa}, v{vT + 2}, v{vT + 3}
    v_mul_u32_u24 v{vT + 3}, v{vT + 3}, v{vH}
    v_sub_u32 v{vWa + 4}, v{vWa}, v{vT + 3}
    """)
    for i in range(1, 4):
        A(f'v_xor_b32 v{vWa + i}, {32 * i}, v{vWa}')
        A(f'v_xor_b32 v{vWa + 4 + i}, {32 * i}, v{vWa + 4}')


vWa, vC, vOf, vWo, NPRE = 16, 24, 40, 104, 9
vFg3 = 248


def wo_reads(hd):
    G = vWo + 16 * (hd % NPRE)
    for ct in range(4):
        for u in range(2):
            A(f'ds_read_b64_tr_b16 {vr(G + 4 * ct + 2 * u, 2)}, v{vWa + 4 * u + (ct ^ (2 * (hd & 1)))} offset:{(28 * hd + 8 * u) * 128}')


A(f"""
s_mov_b64 exec, 0xffff
buffer_load_dword v{vFg3}, v{vFl}, {sr(sWS, 4)}, s{sT + 9} offen sc1
s_mov_b64 exec, -1
""")
for q in range(4):
    A(f'ds_write_b128 v{vT + 4}, {vr(vO + 4 * q, 4)} offset:{1024 * q}')
p3_addr(L_WOB)
A(f"""
s_waitcnt vmcnt(1) lgkmcnt(0)
s_barrier
s_cmp_ge_u32 s{sJ}, 28
s_cbranch_scc1 L_fin
s_branch L_p3
""")
A(f"""
L_tailA:
s_setprio 3
""")
o_addr(0)
A('s_barrier')
for q in range(4):
    A(f'ds_read_b128 {vr(vS + 4 * q, 4)}, v{vT + 4} offset:{1024 * q}')
for q in range(4):
    A(f's_waitcnt lgkmcnt({3 - q})')
    A(f'v_pk_add_f32 {vr(vO + 4 * q, 2)}, {vr(vO + 4 * q, 2)}, {vr(vS + 4 * q, 2)}')
    A(f'v_pk_add_f32 {vr(vO + 4 * q + 2, 2)}, {vr(vO + 4 * q + 2, 2)}, {vr(vS + 4 * q + 2, 2)}')
A(f'v_add_f32_e64 v{vT}, abs(v{vO}), abs(v{vO + 1})')
A(f'v_add_f32_e64 v{vT + 1}, abs(v{vO + 2}), abs(v{vO + 3})')
for r in range(4, 16, 2):
    A(f'v_add_f32_e64 v{vT}, v{vT}, abs(v{vO + r})')
    A(f'v_add_f32_e64 v{vT + 1}, v{vT + 1}, abs(v{vO + r + 1})')
A(f"""
v_add_f32 v{vT}, v{vT}, v{vT + 1}
s_mov_b32 s{sT}, 0x7b800000
v_cmp_ngt_f32 vcc, s{sT}, v{vT}
s_cbranch_vccnz L_fallback
L_final:
v_rcp_f32 v{vT + 2}, v{vO + 12}
v_rcp_f32 v{vT + 4}, v{vO + 12}
v_permlane32_swap_b32 v{vT + 4}, v{vT + 2}
""")
for r in range(0, 16, 2):
    A(f'v_pk_mul_f32 {vr(vO + r, 2)}, {vr(vO + r, 2)}, {vr(vT + 2, 2)} op_sel_hi:[1,0]')
cvt8(vS, vO)
A(f"""
s_mov_b64 exec, {sr(sHi, 2)}
v_mov_b32 v{vS + 6}, 0
v_mov_b32 v{vS + 7}, 0
s_mov_b64 exec, -1
buffer_store_dwordx4 {vr(vS, 4)}, v{vOA}, {sr(sWS, 4)}, s{sT + 7} offen sc1
buffer_store_dwordx4 {vr(vS + 4, 4)}, v{vOA}, {sr(sWS, 4)}, s{sT + 7} offen offset:512 sc1
""")
stamp('o_stored')
p3_addr(L_WOA)
A('s_waitcnt vmcnt(0)')
signal(f's{sT + 8}')
stamp('o_sig')
A(f"""
s_cmp_ge_u32 s{sJ}, 28
s_cbranch_scc1 L_fin
""")
wo_issue(sWOA, L_WOA, 0, 14, 14, sRT)
A(f"""
v_mov_b32 v{vT + 1}, {L_RELAY + 4}
v_mov_b32 v{vFg3}, 0
s_mov_b32 s{sSpin}, {OPT['spin'] * 64}
s_mov_b64 exec, 1
s_waitcnt vmcnt(0)
ds_add_u32 v{vT + 1}, v{vOne}
L_cnt:
ds_read_b32 v{vT}, v{vT + 1}
s_sub_u32 s{sSpin}, s{sSpin}, 1
s_waitcnt lgkmcnt(0)
s_cmp_eq_u32 s{sSpin}, 0
s_cbranch_scc1 L_cntx
v_cmp_ne_u32 vcc, 4, v{vT}
s_cbranch_vccnz L_cnt
L_cntx:
s_mov_b64 exec, 0xffff
buffer_load_dword v{vFg3}, v{vFl}, {sr(sWS, 4)}, s{sT + 9} offen sc1
s_mov_b64 exec, -1
""")
stamp('wo_in')
A('L_p3:')
for hd in range(NPRE):
    wo_reads(hd)
A(f'''
s_xor_b32 s{sT + 3}, s{sHH}, 1                 ; branch
s_lshr_b32 s{sT}, s{sRT}, 1
s_lshl_b32 s{sT + 1}, s{sRB64}, 1
s_add_u32 s{sT}, s{sT}, s{sT + 1}
s_lshl_b32 s{sT + 2}, s{sT + 3}, 6
s_add_u32 s{sT}, s{sT}, s{sT + 2}
s_lshl_b32 s{sT}, s{sT}, 15
s_and_b32 s{sT + 2}, s{sRT}, 1
s_lshl_b32 s{sT + 2}, s{sT + 2}, 10
s_add_u32 s{sT}, s{sT}, s{sT + 2}
s_add_u32 s{sT}, s{sT}, {WS_O}
s_mov_b64 exec, 0xffff
s_waitcnt vmcnt(0)
''')
spin('s3', sWS, f's{sT + 9}', vFl, vFg3, preloaded=True)
A('s_mov_b64 exec, -1')
stamp('p3_flag')
for hd in range(16):
    A(f'buffer_load_dwordx4 {vr(vOf + 4 * hd, 4)}, v{vLin}, {sr(sWS, 4)}, s{sT} offen offset:{2048 * (hd & 1)} sc1')
    if hd & 1 and hd < 15:
        A(f's_add_u32 s{sT}, s{sT}, 4096')
vSt, vLd, vOut = vT + 1, vT + 2, vT + 3
A(f'''
s_mul_i32 s{sT}, s{sRT}, 2304
s_lshl_b32 s{sT + 1}, s{sT + 3}, 14
s_add_u32 s{sT}, s{sT}, s{sT + 1}
s_add_u32 s{sT}, s{sT}, {L_XCH}
v_and_b32 v{vT}, 15, v{vL}
v_mul_u32_u24 v{vSt}, 144, v{vT}
v_lshrrev_b32 v{vT}, 4, v{vL}
v_lshl_add_u32 v{vSt}, v{vT}, 3, v{vSt}
v_add_u32 v{vSt}, s{sT}, v{vSt}
v_lshrrev_b32 v{vT}, 3, v{vL}
v_and_b32 v{vT + 4}, 7, v{vL}
v_mul_u32_u24 v{vLd}, 144, v{vT}
v_lshl_add_u32 v{vLd}, v{vT + 4}, 4, v{vLd}
v_add_u32 v{vLd}, s{sT}, v{vLd}
v_mul_u32_u24 v{vOut}, 1792, v{vT}
v_lshl_add_u32 v{vOut}, v{vT + 4}, 4, v{vOut}
s_lshl_b32 s{sT}, s{sRB64}, 2
s_add_u32 s{sT}, s{sT}, s{sRT}
s_mul_i32 s{sT}, s{sT}, {16 * 1792}
s_mul_i32 s{sT + 1}, s{sT + 3}, 896
s_add_u32 s{sT}, s{sT}, s{sT + 1}
s_lshl_b32 s{sT + 1}, s{sCB}, 7
s_add_u32 s{sT}, s{sT}, s{sT + 1}
s_add_u32 s{sT + 1}, s{sT}, {8 * 1792}
''')
for hd in range(16):
    G = vWo + 16 * (hd % NPRE)
    A(f's_waitcnt vmcnt({15 - hd})' + (' lgkmcnt(0)' if hd in (0, NPRE) else ''))
    for ct in range(4):
        c = vr(vC + 4 * ct, 4) if hd else '0'
        A(f'v_mfma_f32_16x16x32_bf16 {vr(vC + 4 * ct, 4)}, {vr(G + 4 * ct, 4)}, {vr(vOf + 4 * hd, 4)}, {c}')
    if hd + NPRE < 16:
        wo_reads(hd + NPRE)
for ct in range(4):
    A(f'v_cvt_pk_bf16_f32 v{vOf + 2 * ct}, v{vC + 4 * ct}, v{vC + 4 * ct + 1}')
    A(f'v_cvt_pk_bf16_f32 v{vOf + 2 * ct + 1}, v{vC + 4 * ct + 2}, v{vC + 4 * ct + 3}')
    A(f'ds_write_b64 v{vSt}, {vr(vOf + 2 * ct, 2)} offset:{32 * ct}')
OUTFL = ['', 'sc1', 'nt', 'sc0 sc1'][OPT['outfl']]
A(f'''
s_waitcnt lgkmcnt(0)
ds_read_b128 {vr(vOf + 8, 4)}, v{vLd}
ds_read_b128 {vr(vOf + 12, 4)}, v{vLd} offset:{8 * 144}
s_waitcnt lgkmcnt(1)
buffer_store_dwordx4 {vr(vOf + 8, 4)}, v{vOut}, {sr(sOUT, 4)}, s{sT} offen {OUTFL}
s_waitcnt lgkmcnt(0)
buffer_store_dwordx4 {vr(vOf + 12, 4)}, v{vOut}, {sr(sOUT, 4)}, s{sT + 1} offen {OUTFL}
''')
stamp('p3_done')
A('L_fin:')
if PROBE:
    if 'px' in OPT:
        A(f's_cmp_eq_u32 s{sXc}, {OPT["px"]}')
        A('s_cbranch_scc0 L_end')
    A('''
    L_pad:
    s_memrealtime s[94:95]
    s_waitcnt lgkmcnt(0)
    s_sub_u32 s94, s94, s90
    s_cmp_lt_u32 s94, 3000
    s_cbranch_scc1 L_pad
    ''')
if OPT['stamps']:
    A('s_waitcnt vmcnt(0)')
    stamp('end')
    A(f'''
    s_lshl_b32 s{sT}, s2, 3
    s_add_u32 s{sT}, s{sT}, s{sWv}
    s_lshl_b32 s{sT}, s{sT}, 8
    s_add_u32 s{sT}, s{sT}, {WS_ST}
    v_lshlrev_b32 v{vT}, 2, v{vL}
    buffer_store_dword v255, v{vT}, {sr(sWS, 4)}, s{sT} offen
    ''')
A('s_endpgm')
A(f'''
L_fallback:
s_mov_b64 exec, {sr(sHi, 2)}
v_mov_b32 v{vQ + 6}, 0
v_mov_b32 v{vQ + 7}, 0
s_mov_b64 exec, -1
v_mov_b32 v{vT}, 0xff800000
s_lshl_b32 s{sT}, s{sH}, 18
s_add_u32 s{sT}, s{sT}, {WS_KV}
s_mov_b32 s{sT + 1}, 0
L_fb1:
buffer_load_dwordx4 {vr(vF, 4)}, v{vLin}, {sr(sWS, 4)}, s{sT} offen sc1
buffer_load_dwordx4 {vr(vF + 4, 4)}, v{vLin}, {sr(sWS, 4)}, s{sT} offen offset:1024 sc1
s_waitcnt vmcnt(0)
''')
qk(vS, vF, 0)
qk(vS, vF + 4, 1)
for r in range(0, 16, 2):
    A(f'v_max3_f32 v{vT}, v{vT}, v{vS + r}, v{vS + r + 1}')
A(f'''
s_add_u32 s{sT}, s{sT}, 4096
s_add_u32 s{sT + 1}, s{sT + 1}, 1
s_cmp_lt_u32 s{sT + 1}, 64
s_cbranch_scc1 L_fb1
v_mov_b32 v{vT + 1}, v{vT}
v_permlane32_swap_b32 v{vT}, v{vT + 1}
v_max_f32 v{vT}, v{vT}, v{vT + 1}
v_sub_f32 v{vT}, 0, v{vT}
''')
set_qpad(vT, vT + 1)
for r in range(16):
    A(f'v_mov_b32 v{vO + r}, 0')
A(f'''
s_lshl_b32 s{sT}, s{sH}, 18
s_add_u32 s{sT}, s{sT}, {WS_KV}
s_mov_b32 s{sT + 1}, 0
L_fb2:
''')
for q in range(4):
    A(f'buffer_load_dwordx4 {vr(vF + 4 * q, 4)}, v{vLin}, {sr(sWS, 4)}, s{sT} offen offset:{1024 * q} sc1')
A('s_waitcnt vmcnt(0)')
qk(vS, vF, 0)
qk(vS, vF + 4, 1)
for r in range(16):
    A(f'v_exp_f32 v{vPp + r}, v{vS + r}')
pv(vF + 8, 0)
pv(vF + 12, 1)
A(f'''
s_add_u32 s{sT}, s{sT}, 4096
s_add_u32 s{sT + 1}, s{sT + 1}, 1
s_cmp_lt_u32 s{sT + 1}, 64
s_cbranch_scc1 L_fb2
s_nop 11
s_branch L_final
L_end:
s_endpgm
''')

n = A.fix_hazards(verbose=bool(OPT.get('v')))
hdr = open('cdna_kernels/' + NAME + '.s.ref').read().split('; Override launch')[0]
out = hdr + f'''; One persistent launch, 256 workgroups (one per CU); generated by the author's own script.
; @launch grid=(256,1,1) block=(512,1,1) lds=163840
.amdgcn_target "amdgcn-amd-amdhsa--gfx950"
.text
.globl {NAME}_kernel
.p2align 8
.type {NAME}_kernel,@function
{NAME}_kernel:
''' + A.text() + f'''.fill 256, 4, 0xbf800000
.section .rodata,"a"
.p2align 6
.amdhsa_kernel {NAME}_kernel
  .amdhsa_next_free_vgpr 256
  .amdhsa_next_free_sgpr 102
  .amdhsa_accum_offset 256
  .amdhsa_group_segment_fixed_size 0
  .amdhsa_kernarg_size 80
  .amdhsa_user_sgpr_count 2
  .amdhsa_user_sgpr_kernarg_segment_ptr 1
  .amdhsa_system_sgpr_workgroup_id_x 1
.end_amdhsa_kernel
'''
open(sys.argv[1], 'w').write(out)
if OPT['stamps']:
    open(sys.argv[1] + '.stamps', 'w').write('\n'.join(STAMPS + [str(OPT['mix'])]))
print('lines', len(A.lines), 'nops inserted', n)
```

```python
import sys, math, struct
from asmlib import Asm, vr, sr

NAME = 'concat_heads__softmax_full_mha__linear_kernel_hedgehog__prompt'
OPT = dict(stamps=0, force_fb=0, spin=1 << 16, moff=24, outfl=1, fine=0, pair=1, half=1, hrot=1, unroll=1, pre=1)
PROBE = None
for a in sys.argv[2:]:
    k, v = a.split('=')
    if k == 'probe':
        PROBE = v
    else:
        OPT[k] = int(v, 0)


def f32(x):
    return '0x%08x' % struct.unpack('<I', struct.pack('<f', x))[0]


LOG2E = 1.4426950408889634
QSCALE = LOG2E / math.sqrt(28.0)

WS_QA, WS_KV, WS_QB, WS_KVP, WS_O, WS_FL, WS_KVF, WS_ST, WS_END = (
    0, 0x200000, 0x600000, 0x800000, 0xA00000, 0xE00000, 0xE80000, 0xF00000, 0x1000000)
FGRP = 384 * 128
F_A, F_B, F_K, F_O = 0, 48 * 128, 64 * 128, 96 * 128
sX, sW, sWS, sDBG, sPHI, sWOA, sOUT, sWOB = 24, 28, 32, 36, 40, 44, 48, 96
sWv, sXc, sJ, sB, sRB1, sCG, sH, sRB = 52, 53, 54, 55, 56, 57, 58, 59
sT = 60
sC, sSlot, sFG, sKC, sXbase, sWbase, sXo, sWo = 70, 71, 72, 73, 74, 75, 76, 77
sL = 78
sRT, sHH, sSpin, sCB, sKVo, sRB64 = 80, 81, 82, 83, 84, 85
sHi = 86
sOnesM = 88
sStamp = 90
sM0, sRH, sH1, sJI = 92, 93, 3, 100
sPar = sRH
vL, vLin, vH = 1, 2, 3
vT = 4
vFl, vOne, vOA, vWoG = 12, 13, 14, 15
vFg = 248
SLOT = 40960
K = 1024
L_Q, L_PHI, L_V, L_WPHI, L_WPHI2, L_RELAY = 96 * K, 104 * K, 136 * K, 152 * K, 156 * K, 158 * K
L_WOA, L_WOB, L_XCH, L_STG = 0, 96 * K, 64 * K, 80 * K

A = Asm()
STAMPS = []


def stamp(name):
    if PROBE == name:
        A('s_memrealtime s[90:91]')
        A('s_waitcnt lgkmcnt(0)')
    if not OPT['stamps']:
        return
    if name not in STAMPS:
        STAMPS.append(name)
    i = STAMPS.index(name)
    A(f'''
    s_memrealtime s[{sStamp}:{sStamp + 1}]
    s_memtime s[94:95]
    s_waitcnt lgkmcnt(0)
    v_writelane_b32 v255, s{sStamp}, {i}
    v_writelane_b32 v255, s94, {i + 32}
    ''')


def spin(tag, srd_, addr, vaddr, vdst, preloaded=False):
    A(f's_mov_b32 s{sSpin}, {OPT["spin"]}')
    if preloaded:
        A(f's_branch L_chk_{tag}')
    A(f'''
    L_poll_{tag}:
    buffer_load_dword v{vdst}, v{vaddr}, {sr(srd_, 4)}, {addr} offen sc1
    s_sub_u32 s{sSpin}, s{sSpin}, 1
    s_waitcnt vmcnt(0)
    s_cmp_eq_u32 s{sSpin}, 0
    s_cbranch_scc1 L_pollx_{tag}
    L_chk_{tag}:
    v_cmp_ne_u32 vcc, 1, v{vdst}
    s_cbranch_vccnz L_poll_{tag}
    L_pollx_{tag}:
    ''')


def poll16(tag, addr):
    A('s_mov_b64 exec, 0xffff')
    spin(tag, sWS, addr, vFl, vFg)
    A('s_mov_b64 exec, -1')


def signal(addr):
    A(f'''
    s_mov_b64 exec, 1
    buffer_store_dword v{vOne}, v{vL}, {sr(sWS, 4)}, {addr} offen sc1
    s_mov_b64 exec, -1
    ''')


def guard(tag, cmp_, body):
    A(cmp_)
    A(f's_cbranch_scc0 L_g_{tag}')
    body()
    A(f'L_g_{tag}:')


def srd(d, base, nbytes):
    A(f'''
    s_mov_b32 s{d}, s{base}
    s_mov_b32 s{d + 1}, s{base + 1}
    s_mov_b32 s{d + 2}, {nbytes}
    s_mov_b32 s{d + 3}, 0x20000
    ''')


def cvt8(dst, src):
    for i in range(8):
        A(f'v_cvt_pk_bf16_f32 v{dst + i}, v{src + 2 * i}, v{src + 2 * i + 1}')


def features(tiles, part=3):
    if part & 1:
        A(f's_mov_b64 exec, {sr(sHi, 2)}')
        for X, Ep, En, t in tiles:
            for r in range(12, 16):
                A(f'v_mov_b32 v{X + r}, v{X + 11}')
        A('s_mov_b64 exec, -1')
        for X, Ep, En, t in tiles:
            A(f'v_max3_f32 v{t}, v{X}, v{X + 1}, v{X + 2}')
            A(f'v_max3_f32 v{t + 2}, -v{X}, -v{X + 1}, -v{X + 2}')
        for r in range(3, 15, 2):
            for X, Ep, En, t in tiles:
                A(f'v_max3_f32 v{t}, v{t}, v{X + r}, v{X + r + 1}')
                A(f'v_max3_f32 v{t + 2}, v{t + 2}, -v{X + r}, -v{X + r + 1}')
        for X, Ep, En, t in tiles:
            A(f'v_max_f32 v{t}, v{t}, v{X + 15}')
            A(f'v_max_f32_e64 v{t + 2}, v{t + 2}, -v{X + 15}')
        for X, Ep, En, t in tiles:
            A(f'v_permlane32_swap_b32 v{t}, v{t + 2}')
        for X, Ep, En, t in tiles:
            A(f'v_max_f32 v{t}, v{t}, v{t + 2}')
        for X, Ep, En, t in tiles:
            A(f'v_mul_f32_e64 v{t + 2}, -v{t}, s{sL}')
            A(f'v_mul_f32_e64 v{t}, -v{t}, s{sL}')
        for X, Ep, En, t in tiles:
            A(f'v_permlane32_swap_b32 v{t}, v{t + 2}')
        for X, Ep, En, t in tiles:
            for r in range(0, 16, 2):
                A(f'v_pk_fma_f32 {vr(Ep + r, 2)}, {vr(X + r, 2)}, {sr(sL, 2)}, {vr(t, 2)} op_sel_hi:[1,1,0]')
                A(f'v_pk_fma_f32 {vr(En + r, 2)}, {vr(X + r, 2)}, {sr(sL, 2)}, {vr(t + 2, 2)} op_sel_hi:[1,1,0] neg_lo:[1,0,0] neg_hi:[1,0,0]')
    if not part & 2:
        return
    for X, Ep, En, t in tiles:
        for r in range(16):
            A(f'v_exp_f32 v{Ep + r}, v{Ep + r}')
        for r in range(16):
            A(f'v_exp_f32 v{En + r}, v{En + r}')
    A(f's_mov_b64 exec, {sr(sHi, 2)}')
    for X, Ep, En, t in tiles:
        for r in range(12, 16):
            A(f'v_mov_b32 v{Ep + r}, 0')
            A(f'v_mov_b32 v{En + r}, 0')
    A('s_mov_b64 exec, -1')


def wphi_addr(d, t):
    A(f'''
    v_bfe_u32 v{t}, v{vL}, 2, 2
    v_lshl_add_u32 v{t}, v{vH}, 2, v{t}
    v_mul_u32_u24 v{d}, 56, v{t}
    v_bfe_u32 v{t}, v{vL}, 4, 1
    v_lshl_add_u32 v{d}, v{t}, 5, v{d}
    v_and_b32 v{t}, 3, v{vL}
    v_lshl_add_u32 v{d}, v{t}, 3, v{d}
    ''')


def common_setup():
    srd(sWS, 22, WS_END)
    srd(sDBG, 20, 256)
    srd(sPHI, 14, 16 * 1568)
    srd(sOUT, 18, 2048 * 1792)
    A(f'''
    s_mov_b32 s{sL}, {f32(LOG2E)}
    s_mov_b32 s{sL + 1}, {f32(LOG2E)}
    s_mov_b32 s{sHi}, 0
    s_mov_b32 s{sHi + 1}, -1
    s_lshr_b32 s{sH}, s{sJ}, 4
    s_lshl_b32 s{sT}, s{sXc}, 1
    s_add_u32 s{sH}, s{sH}, s{sT}
    s_and_b32 s{sRB}, s{sJ}, 15
    s_and_b32 s{sRT}, s{sWv}, 3
    s_lshr_b32 s{sHH}, s{sWv}, 2
    s_mul_i32 s{sFG}, s{sXc}, {FGRP}
    s_add_u32 s{sFG}, s{sFG}, {WS_FL}
    s_mul_i32 s{sT}, s{sJ}, 37
    s_lshr_b32 s{sT}, s{sT}, 8
    s_mul_i32 s{sT + 1}, s{sT}, 7
    s_sub_u32 s{sCB}, s{sJ}, s{sT + 1}
    s_lshl_b32 s{sRB64}, s{sXc}, 2
    s_add_u32 s{sRB64}, s{sRB64}, s{sT}
    v_lshlrev_b32 v{vLin}, 4, v{vL}
    v_lshrrev_b32 v{vH}, 5, v{vL}
    v_lshlrev_b32 v{vFl}, 7, v{vL}
    v_mov_b32 v{vOne}, 1
    ''')


def o_addr(br, s_rt):
    A(f'''
    v_bfe_u32 v{vT}, v{vL}, 4, 1
    v_and_b32 v{vOA}, 15, v{vL}
    v_lshlrev_b32 v{vOA}, 4, v{vOA}
    v_lshl_add_u32 v{vOA}, v{vT}, 10, v{vOA}
    v_lshl_add_u32 v{vOA}, v{vH}, 8, v{vOA}
    s_lshl_b32 s{sT + 6}, s{sRB}, 2
    s_add_u32 s{sT + 6}, s{sT + 6}, s{s_rt}
    s_lshl_b32 s{sT + 7}, s{sT + 6}, 4
    s_add_u32 s{sT + 7}, s{sT + 7}, s{sH}
    s_and_b32 s{sT + 8}, s{sT + 7}, 127
    s_lshl_b32 s{sT + 7}, s{sT + 7}, 11
    s_lshl_b32 s{sT + 8}, s{sT + 8}, 7
    s_lshr_b32 s{sT + 6}, s{sT + 6}, 3
    s_mul_i32 s{sT + 6}, s{sT + 6}, {FGRP}
    s_add_u32 s{sT + 8}, s{sT + 8}, s{sT + 6}
    s_add_u32 s{sT + 7}, s{sT + 7}, {WS_O + 0x200000 * br}
    s_add_u32 s{sT + 8}, s{sT + 8}, {WS_FL + F_O + 128 * 128 * br}
    ''')


vWa, vC, vOf, vWo, NPRE = 16, 24, 40, 104, 8
HROT = 8 * 28 * 128


def p3_addr(base):
    A(f'''
    v_bfe_u32 v{vT}, v{vL}, 2, 2                 ; r
    v_bfe_u32 v{vT + 1}, v{vL}, 4, 1             ; g&1
    v_and_b32 v{vT + 2}, 3, v{vL}
    v_lshlrev_b32 v{vT + 2}, 3, v{vT + 2}
    v_lshl_add_u32 v{vT + 2}, v{vT}, 7, v{vT + 2}
    v_lshl_add_u32 v{vT + 2}, v{vH}, 11, v{vT + 2}
    v_lshrrev_b32 v{vT}, 1, v{vT}
    v_lshl_add_u32 v{vT + 2}, v{vT}, 5, v{vT + 2}
    s_and_b32 s{sT}, s{sCB}, {OPT['hrot']}
    s_mul_i32 s{sT}, s{sT}, {HROT}
    s_add_u32 s{sT}, s{sT}, {base}
    v_add_u32 v{vT + 2}, s{sT}, v{vT + 2}
    v_mul_u32_u24 v{vT + 3}, 576, v{vT + 1}
    v_add_u32 v{vWa}, v{vT + 2}, v{vT + 3}
    v_mul_u32_u24 v{vT + 3}, v{vT + 3}, v{vH}
    v_sub_u32 v{vWa + 4}, v{vWa}, v{vT + 3}
    ''')
    for i in range(1, 4):
        A(f'v_xor_b32 v{vWa + i}, {32 * i}, v{vWa}')
        A(f'v_xor_b32 v{vWa + 4 + i}, {32 * i}, v{vWa + 4}')


def wo_reads(hd):
    G = vWo + 16 * hd
    for ct in range(4):
        for u in range(2):
            A(f'ds_read_b64_tr_b16 {vr(G + 4 * ct + 2 * u, 2)}, v{vWa + 4 * u + (ct ^ (2 * (hd & 1)))} offset:{(28 * hd + 8 * u) * 128}')


def wo_issue(srd_, lds_base, first, n):
    A(f's_mul_i32 s{sT + 3}, s{sRT}, {n * 1024}')
    A(f's_mul_i32 s{sT + 4}, s{sRT}, {n * 7168}')
    A(f's_lshl_b32 s{sT + 5}, s{sCB}, 7')
    A(f's_add_u32 s{sT + 4}, s{sT + 4}, s{sT + 5}')
    for i in range(n):
        if i % 4 == 0:
            A(f's_add_u32 m0, s{sT + 3}, {lds_base + (first + i) * 1024}')
        A(f's_add_u32 s{sT + 5}, s{sT + 4}, {(first + i) * 7168 - (i % 4) * 1024}')
        A(f'buffer_load_dwordx4 v{vWoG}, {sr(srd_, 4)}, s{sT + 5} offen offset:{(i % 4) * 1024} lds')


def kv_issue(c):
    for kh in range(2):
        A(f's_add_u32 m0, s{sM0}, {((c + 1) % 3) * 32768 + kh * 16384}')
        A(f's_add_u32 s{sT + 2}, s{sKVo}, {c * 16384 + kh * 131072}')
        for q in range(4):
            A(f'buffer_load_dwordx4 v{vLin}, {sr(sWS, 4)}, s{sT + 2} offen offset:{1024 * q} sc1 lds')


A(f'''
s_cmp_ge_u32 s2, 256
s_cbranch_scc1 L_end
s_load_dwordx16 s[4:19], s[0:1], 0
s_load_dwordx4 s[20:23], s[0:1], 64
''')
if OPT['stamps']:
    A('v_mov_b32 v255, 0')
if PROBE:
    A('s_memrealtime s[90:91]')
stamp('start')
A(f'''
v_lshrrev_b32 v{vT}, 6, v0
v_and_b32 v{vL}, 63, v0
v_readfirstlane_b32 s{sWv}, v{vT}
s_and_b32 s{sXc}, s2, 7
s_lshr_b32 s{sJ}, s2, 3
s_lshr_b32 s{sB}, s{sJ}, 4
s_and_b32 s{sT}, s{sXc}, 6
s_lshl_b32 s{sT}, s{sT}, 1
s_and_b32 s{sRB1}, s{sJ}, 3
s_add_u32 s{sRB1}, s{sRB1}, s{sT}
s_and_b32 s{sT}, s{sXc}, 1
s_cselect_b32 s{sJI}, 7, 4
s_lshl_b32 s{sT}, s{sT}, 2
s_bfe_u32 s{sCG}, s{sJ}, 0x20002
s_add_u32 s{sCG}, s{sCG}, s{sT}
s_lshr_b32 s{sT}, s{sJ}, 2
s_xor_b32 s{sJI}, s{sJI}, s{sT}
s_cmp_lt_u32 s{sWv}, 4
s_cbranch_scc1 L_comp
''')
vXg0, vXg1, vWg = 16, 17, 18
A(f'''
s_setprio 3
s_and_b32 s{sRT}, s{sWv}, 3
s_cmp_eq_u32 s{sB}, 0
s_cselect_b32 s{sT}, 3, 1
s_cselect_b32 s{sT + 1}, 1, 8
s_mul_i32 s{sT}, s{sT}, 112
s_mul_i32 s{sT + 1}, s{sT + 1}, 112
s_mul_i32 s{sWbase}, s{sCG}, s{sT}
v_lshrrev_b32 v{vT}, 3, v{vL}
v_mul_u32_u24 v{vT + 1}, 896, v{vT}
v_lshrrev_b32 v{vT + 2}, 4, v{vL}
v_and_b32 v{vT + 5}, 7, v{vL}
v_xor_b32 v{vT + 2}, v{vT + 2}, v{vT + 5}
v_lshl_add_u32 v{vXg0}, v{vT + 2}, 4, v{vT + 1}
v_xor_b32 v{vXg1}, 64, v{vXg0}
v_add_u32 v{vXg1}, {8 * 896 - 1024}, v{vXg1}
''')
for i in range(3):
    A(f'''
    v_add_u32 v{vT + 1}, {8 * i}, v{vT}
    v_mul_u32_u24 v{vT + 2}, 11, v{vT + 1}
    v_lshrrev_b32 v{vT + 2}, 5, v{vT + 2}
    v_mul_u32_u24 v{vT + 3}, 3, v{vT + 2}
    v_sub_u32 v{vT + 1}, v{vT + 1}, v{vT + 3}
    v_mul_u32_u24 v{vT + 1}, s{sT + 1}, v{vT + 1}
    v_and_b32 v{vT + 3}, 2, v{vT + 2}
    v_lshlrev_b32 v{vT + 3}, 1, v{vT + 3}
    v_xor_b32 v{vT + 3}, v{vT + 3}, v{vT + 5}
    v_lshl_add_u32 v{vT + 1}, v{vT + 3}, 4, v{vT + 1}
    v_add_u32 v{vT + 3}, 1, v{vT + 3}
    v_and_b32 v{vT + 3}, 8, v{vT + 3}
    v_lshl_add_u32 v{vT + 1}, v{vT + 3}, 27, v{vT + 1}
    v_mul_u32_u24 v{vT + 2}, 2688, v{vT + 2}
    ''')
    if i:
        A(f'v_subrev_u32 v{vT + 2}, {1024 * i}, v{vT + 2}')
    A(f'v_add_u32 v{vWg + i}, v{vT + 2}, v{vT + 1}')
A(f'''
s_xor_b32 s{sPar}, s{sCG}, s{sRB1}
s_bfe_u32 s{sPar}, s{sPar}, {0x10001 if OPT['pair'] else 0x1001f}
s_mov_b32 s{sKC}, s{sPar}
s_lshl_b32 s{sT + 4}, s{sRT}, 1
s_and_b32 s{sT}, s{sCG}, {OPT['half']}
s_cselect_b32 s{sT + 7}, -1, 1
s_add_u32 s{sT + 4}, s{sT + 4}, s{sT}
s_lshl_b32 s{sT}, s{sRB1}, 3
s_add_u32 s{sT}, s{sT}, s{sT + 4}
s_mul_i32 s{sXbase}, s{sT}, {16 * 896}
s_lshl_b32 s{sT + 4}, s{sT + 4}, 11
s_mul_i32 s{sT + 7}, s{sT + 7}, {16 * 896}
s_xor_b32 s{sT + 6}, s{sT + 4}, 2048
s_lshl_b32 s{sT + 5}, s{sRT}, 1
s_and_b32 s{sT}, s{sRB1}, {OPT['half']}
s_cselect_b32 s{sT + 8}, -1, 1
s_add_u32 s{sT + 5}, s{sT + 5}, s{sT}
s_mul_i32 s{sT}, s{sT + 5}, {8 * 2688}
s_add_u32 s{sWbase}, s{sWbase}, s{sT}
s_add_u32 s{sT + 9}, s{sT + 5}, s{sT + 8}
s_mul_i32 s{sT + 8}, s{sT + 8}, {8 * 2688}
s_mul_i32 s{sT + 5}, s{sT + 5}, 3072
s_mul_i32 s{sT + 9}, s{sT + 9}, 3072
s_add_u32 s{sT + 5}, s{sT + 5}, 16384
s_add_u32 s{sT + 9}, s{sT + 9}, 16384
s_mov_b32 s{sSlot}, 0
s_mov_b32 s{sC}, 0
s_mov_b32 s{sX + 2}, {2048 * 896}
s_mov_b32 s{sX + 3}, 0x20000
s_mov_b32 s{sW + 2}, {448 * 2688}
s_mov_b32 s{sW + 3}, 0x20000
s_waitcnt lgkmcnt(0)
s_cmp_eq_u32 s{sB}, 0
s_cselect_b32 s{sX}, s4, s10
s_cselect_b32 s{sX + 1}, s5, s11
s_cselect_b32 s{sW}, s6, s12
s_cselect_b32 s{sW + 1}, s7, s13
s_cmp_eq_u32 s{sJI}, 0
s_cbranch_scc1 L_zero
L_ld:
s_lshl_b32 s{sXo}, s{sKC}, 7
s_add_u32 m0, s{sSlot}, s{sT + 4}
s_add_u32 s{sXo}, s{sXo}, s{sXbase}
buffer_load_dwordx4 v{vXg0}, {sr(sX, 4)}, s{sXo} offen lds
buffer_load_dwordx4 v{vXg1}, {sr(sX, 4)}, s{sXo} offen offset:1024 lds
s_mul_i32 s{sWo}, s{sKC}, {64 * 2688}
s_add_u32 m0, s{sSlot}, s{sT + 5}
s_add_u32 s{sWo}, s{sWo}, s{sWbase}
buffer_load_dwordx4 v{vWg}, {sr(sW, 4)}, s{sWo} offen lds
buffer_load_dwordx4 v{vWg + 1}, {sr(sW, 4)}, s{sWo} offen offset:1024 lds
buffer_load_dwordx4 v{vWg + 2}, {sr(sW, 4)}, s{sWo} offen offset:2048 lds
s_add_u32 m0, s{sSlot}, s{sT + 6}
s_add_u32 s{sXo}, s{sXo}, s{sT + 7}
buffer_load_dwordx4 v{vXg0}, {sr(sX, 4)}, s{sXo} offen lds
buffer_load_dwordx4 v{vXg1}, {sr(sX, 4)}, s{sXo} offen offset:1024 lds
s_add_u32 m0, s{sSlot}, s{sT + 9}
s_add_u32 s{sWo}, s{sWo}, s{sT + 8}
s_cmp_eq_u32 s{sC}, 0
s_cbranch_scc1 L_ldb
s_waitcnt vmcnt(7)
s_barrier
L_ldb:
buffer_load_dwordx4 v{vWg}, {sr(sW, 4)}, s{sWo} offen lds
buffer_load_dwordx4 v{vWg + 1}, {sr(sW, 4)}, s{sWo} offen offset:1024 lds
buffer_load_dwordx4 v{vWg + 2}, {sr(sW, 4)}, s{sWo} offen offset:2048 lds
s_add_u32 s{sSlot}, s{sSlot}, {SLOT}
s_cmp_eq_u32 s{sSlot}, {3 * SLOT}
s_cselect_b32 s{sSlot}, 0, s{sSlot}
s_add_u32 s{sC}, s{sC}, 1
s_xor_b32 s{sKC}, s{sC}, s{sPar}
s_min_u32 s{sKC}, s{sKC}, 6
s_cmp_lt_u32 s{sC}, 7
s_cbranch_scc1 L_ld
s_branch L_ld1
L_zero:
''')
srd(sWS, 22, WS_END)
A(f'''
s_mul_i32 s{sT}, s{sXc}, {FGRP}
s_and_b32 s{sT + 1}, s{sJ}, 3
s_lshl_b32 s{sT + 1}, s{sT + 1}, 2
s_add_u32 s{sT + 1}, s{sT + 1}, s{sRT}
s_mul_i32 s{sT + 1}, s{sT + 1}, 3072
s_add_u32 s{sT}, s{sT}, s{sT + 1}
s_add_u32 s{sT}, s{sT}, {WS_FL}
v_lshlrev_b32 v{vLin}, 4, v{vL}
v_mov_b32 v{vT}, 0
v_mov_b32 v{vT + 1}, 0
v_mov_b32 v{vT + 2}, 0
v_mov_b32 v{vT + 3}, 0
buffer_store_dwordx4 {vr(vT, 4)}, v{vLin}, {sr(sWS, 4)}, s{sT} offen sc1
buffer_store_dwordx4 {vr(vT, 4)}, v{vLin}, {sr(sWS, 4)}, s{sT} offen offset:1024 sc1
buffer_store_dwordx4 {vr(vT, 4)}, v{vLin}, {sr(sWS, 4)}, s{sT} offen offset:2048 sc1
s_branch L_ld
L_ld1:
''')
common_setup()
srd(sWOA, 8, 448 * 896)
srd(sWOB, 16, 448 * 896)
A(f'''
s_cmp_lt_u32 s{sRT}, 2
s_cbranch_scc0 L_ld2
s_lshl_b32 s{sT + 1}, s{sRT}, 10
s_add_u32 m0, s{sT + 1}, {L_WPHI2}
s_mul_i32 s{sT + 2}, s{sH}, 1568
s_add_u32 s{sT + 2}, s{sT + 2}, s{sT + 1}
buffer_load_dwordx4 v{vLin}, {sr(sPHI, 4)}, s{sT + 2} offen lds
s_cmp_eq_u32 s{sWv}, 4
s_cbranch_scc0 L_ld2
v_lshlrev_b32 v{vT + 1}, 2, v{vL}
s_mov_b32 exec_hi, 0
''')
spin('init', sDBG, '0', vT + 1, vT)
A(f'''
s_mov_b64 exec, -1
L_ld2:
s_waitcnt vmcnt(0)
s_barrier
s_lshr_b32 s{sT}, s{sRT}, 1
s_lshl_b32 s{sT + 1}, s{sJ}, 1
s_add_u32 s{sT}, s{sT}, s{sT + 1}
s_mul_i32 s{sT}, s{sT}, {49 * 128}
s_mov_b32 exec_hi, 0x1ffff
s_bitcmp1_b32 s{sRT}, 0
s_cbranch_scc1 L_wpf1
buffer_load_dword v{vFg}, v{vFl}, {sr(sWOA, 4)}, s{sT} offen
s_branch L_wpf2
L_wpf1:
buffer_load_dword v{vFg}, v{vFl}, {sr(sWOB, 4)}, s{sT} offen
L_wpf2:
s_mov_b32 exec_hi, -1
v_lshrrev_b32 v{vT}, 3, v{vL}
v_mul_u32_u24 v{vT}, 896, v{vT}
v_lshrrev_b32 v{vT + 1}, 4, v{vL}
v_lshlrev_b32 v{vT + 1}, 1, v{vT + 1}
v_and_b32 v{vT + 2}, 7, v{vL}
v_xor_b32 v{vT + 1}, v{vT + 1}, v{vT + 2}
v_lshl_add_u32 v{vWoG}, v{vT + 1}, 4, v{vT}
s_lshl_b32 s{sT}, s{sH}, 6
s_add_u32 s{sT}, s{sT}, s{sRT}
s_lshl_b32 s{sKVo}, s{sT}, 12
s_add_u32 s{sKVo}, s{sKVo}, {WS_KV}
s_lshl_b32 s{sT + 1}, s{sRB}, 2
s_add_u32 s{sT + 9}, s{sT + 1}, s{sT}
s_lshl_b32 s{sT + 9}, s{sT + 9}, 11
s_lshl_b32 s{sM0}, s{sRT}, 12
''')
vEp, vEn, vNp, vNn, vQB, vWF2, vKVF, vSl, vSlA, vIdxS = 32, 48, 64, 80, 96, 24, 104, 120, 249, 250
vX2 = 152
vKa, vKb, vKc = 128, 160, 192
p3_addr(L_WOB)
o_addr(1, sRT)
wphi_addr(vT + 4, vT + 3)
A(f'''
v_add_u32 v{vT + 4}, {L_WPHI2}, v{vT + 4}
v_bfe_u32 v{vT}, v{vL}, 1, 1
v_and_b32 v{vT + 1}, 1, v{vL}
v_lshrrev_b32 v{vSlA}, 2, v{vL}
v_lshlrev_b32 v{vSlA}, 4, v{vSlA}
v_lshl_add_u32 v{vSlA}, v{vT}, 10, v{vSlA}
v_lshl_add_u32 v{vSlA}, v{vT + 1}, 3, v{vSlA}
v_mov_b32 v{vIdxS}, 0xdddddddd
v_bfe_u32 v{vT}, v{vL}, 2, 2
v_lshl_add_u32 v{vT + 1}, v{vH}, 2, v{vT}      ; 4h + r
v_lshrrev_b32 v{vT + 2}, 1, v{vT + 1}          ; 2h + (r>>1)
v_bfe_u32 v{vT + 3}, v{vL}, 4, 1
v_and_b32 v{vT}, 2, v{vL}
v_or_b32 v{vT + 3}, v{vT + 3}, v{vT}           ; 2*a1 + a2
v_xor_b32 v{vT + 2}, v{vT + 2}, v{vT + 3}
v_lshlrev_b32 v{vT + 2}, 4, v{vT + 2}
v_lshl_add_u32 v{vT + 1}, v{vT + 1}, 6, v{vT + 2}
v_and_b32 v{vT}, 1, v{vL}
v_lshl_add_u32 v{vT + 1}, v{vT}, 3, v{vT + 1}
s_lshl_b32 s{sT}, s{sRT}, 13
s_add_u32 s{sT}, s{sT}, {L_PHI}
v_add_u32 v{vT + 1}, s{sT}, v{vT + 1}
s_lshr_b32 s{sT + 2}, s{sRT}, 1
s_lshl_b32 s{sT}, s{sT + 2}, 13
s_add_u32 s{sT}, s{sT}, {L_V}
v_add_u32 v{vT + 2}, s{sT}, v{vLin}
''')
for r in range(32):
    A(f'v_mov_b32 v{vNp + r}, 0')
for q in range(4):
    A(f'ds_read_b64_tr_b16 {vr(vWF2 + 2 * q, 2)}, v{vT + 4} offset:{8 * q * 56}')
A('''
s_barrier
s_waitcnt lgkmcnt(0)
s_barrier
''')


def kv_reads(st):
    A(f'ds_read_b64_tr_b16 {vr(vKa + 4 * st, 2)}, v{vT + 1} offset:{(16 * st) * 64}')
    A(f'ds_read_b64_tr_b16 {vr(vKa + 4 * st + 2, 2)}, v{vT + 1} offset:{(16 * st + 8) * 64}')
    A(f'ds_read_b128 {vr(vKb + 4 * st, 4)}, v{vT + 2} offset:{st * 1024}')


def b():
    for st in range(4):
        kv_reads(st)
    for st in range(8):
        A(f's_waitcnt lgkmcnt({min(9, 3 * (7 - st))})')
        A(f'v_mfma_f32_32x32x16_bf16 {vr(vKc, 16)}, {vr(vKa + 4 * st, 4)}, {vr(vKb + 4 * st, 4)}, {vr(vKc, 16) if st else 0}')
        if st + 4 < 8:
            kv_reads(st + 4)
    A(f'''
    s_lshl_b32 s{sT}, s{sCG}, 1
    s_add_u32 s{sT}, s{sT}, s{sT + 2}
    s_lshl_b32 s{sT}, s{sT}, 4
    s_add_u32 s{sT}, s{sT}, s{sRB1}
    s_lshl_b32 s{sT}, s{sT}, 1
    s_and_b32 s{sT + 1}, s{sRT}, 1
    s_add_u32 s{sT}, s{sT}, s{sT + 1}
    s_lshl_b32 s{sT}, s{sT}, 12
    s_add_u32 s{sT}, s{sT}, {WS_KVP}
    ''')
    for q in range(4):
        A(f'buffer_store_dwordx4 {vr(vKc + 4 * q, 4)}, v{vLin}, {sr(sWS, 4)}, s{sT} offen offset:{1024 * q} sc1')


guard('kvst', f's_cmp_eq_u32 s{sB}, 1', b)
A(f'''
v_mov_b32 v{vT + 1}, {L_RELAY}
s_cmp_eq_u32 s{sWv}, 4
s_cbranch_scc0 L_relay
s_lshl_b32 s{sT + 1}, 1, s{sRB}
s_or_b32 exec_lo, s{sT + 1}, 0xffff0000
s_mov_b32 exec_hi, 0xffff
''')
spin('s1', sWS, f's{sFG}', vFl, vT)
A(f'''
s_mov_b64 exec, -1
ds_write_b32 v{vT + 1}, v{vOne}
s_branch L_go
L_relay:
s_mov_b32 s{sSpin}, {OPT['spin'] * 16}
L_relay1:
ds_read_b32 v{vT}, v{vT + 1}
s_sub_u32 s{sSpin}, s{sSpin}, 1
s_waitcnt lgkmcnt(0)
s_cmp_eq_u32 s{sSpin}, 0
s_cbranch_scc1 L_go
v_cmp_ne_u32 vcc, 1, v{vT}
s_cbranch_vccnz L_relay1
L_go:
''')
stamp('s1_seen')
A(f'''
s_lshl_b32 s{sT}, s{sRT}, 11
s_add_u32 m0, s{sT}, {L_Q}
s_nop 0
buffer_load_dwordx4 v{vLin}, {sr(sWS, 4)}, s{sT + 9} offen sc1 lds
buffer_load_dwordx4 v{vLin}, {sr(sWS, 4)}, s{sT + 9} offen offset:1024 sc1 lds
''')
kv_issue(0)
kv_issue(1)
A(f'''
s_waitcnt vmcnt(8)
s_barrier
''')


def fs(name):
    if OPT['fine'] == 3:
        stamp(name)


def nxt(k):
    fs(f'{k - 1}z')
    A('s_barrier')
    fs(f'{k}a')
    A('s_waitcnt vmcnt(0)')


W4 = f's_cmp_eq_u32 s{sRT}, 0'


def b():
    A(f'''
    s_mul_i32 s{sT}, s{sCG}, {FGRP}
    s_lshl_b32 s{sT + 1}, s{sRB1}, 7
    s_add_u32 s{sT}, s{sT}, s{sT + 1}
    s_add_u32 s{sT}, s{sT}, {WS_FL + F_B}
    ''')
    signal(f's{sT}')


guard('sfb', f's_cmp_lt_u32 s{sRT}, s{sB}', b)
kv_issue(2)
wo_issue(sWOB, L_WOB, 28, 7)
A('s_waitcnt vmcnt(15)')
nxt(1)
kv_issue(3)
A(f's_add_u32 s{sT}, s{sFG}, {F_B}')
poll16('fb', f's{sT}')
A(f'''
s_add_u32 s{sT}, s{sT + 9}, {WS_QB}
buffer_load_dwordx4 {vr(vQB, 4)}, v{vLin}, {sr(sWS, 4)}, s{sT} offen sc1
buffer_load_dwordx4 {vr(vQB + 4, 4)}, v{vLin}, {sr(sWS, 4)}, s{sT} offen offset:1024 sc1
''')


def b():
    A(f'''
    s_lshr_b32 s{sT}, s{sRB}, 2
    s_lshl_b32 s{sT}, s{sT}, 11
    s_and_b32 s{sT + 1}, s{sRB}, 3
    s_lshl_b32 s{sT + 1}, s{sT + 1}, 8
    s_add_u32 s{sT}, s{sT}, s{sT + 1}
    s_lshl_b32 s{sT + 1}, s{sH}, 17
    s_add_u32 s{sT}, s{sT}, s{sT + 1}
    s_add_u32 s{sT}, s{sT}, {WS_KVP}
    ''')
    for p in range(16):
        A(f'buffer_load_dwordx2 {vr(vSl + 2 * p, 2)}, v{vSlA}, {sr(sWS, 4)}, s{sT} offen sc1')
        if p < 15:
            A(f's_add_u32 s{sT}, s{sT}, 8192')


guard('sl1', W4, b)
nxt(2)
A(f'v_mfma_f32_32x32x16_bf16 {vr(vX2, 16)}, {vr(vWF2, 4)}, {vr(vQB, 4)}, 0')
A(f'v_mfma_f32_32x32x16_bf16 {vr(vX2, 16)}, {vr(vWF2 + 4, 4)}, {vr(vQB + 4, 4)}, {vr(vX2, 16)}')


def b():
    n = 8
    while n:
        for p in range(n):
            A(f'v_pk_add_f32 {vr(vSl + 2 * p, 2)}, {vr(vSl + 2 * p, 2)}, {vr(vSl + 2 * (p + n), 2)}')
        n //= 2
    A(f'''
    s_lshl_b32 s{sT}, s{sH}, 4
    s_add_u32 s{sT}, s{sT}, s{sRB}
    s_lshl_b32 s{sT}, s{sT}, 8
    s_add_u32 s{sT}, s{sT}, {WS_KVF}
    v_cvt_pk_bf16_f32 v{vSl}, v{vSl}, v{vSl + 1}
    v_lshlrev_b32 v{vSlA}, 2, v{vL}
    s_bitcmp1_b32 s{sRB}, 0
    s_cselect_b32 exec_hi, 0x00f00000, 0
    s_mov_b32 exec_lo, 0
    v_mov_b32 v{vSl}, 0x3f803f80
    s_mov_b64 exec, -1
    buffer_store_dword v{vSl}, v{vSlA}, {sr(sWS, 4)}, s{sT} offen sc1
    ''')


guard('sl2', W4, b)
kv_issue(4)
nxt(3)


def b():
    A(f'''
    s_lshl_b32 s{sT}, s{sJ}, 7
    s_add_u32 s{sT}, s{sT}, s{sFG}
    s_add_u32 s{sT}, s{sT}, {F_K}
    ''')
    signal(f's{sT}')


guard('sfk', W4, b)
kv_issue(5)
features([(vX2, vEp, vEn, vT + 4)], 1)
wo_issue(sWOB, L_WOB, 0, 7)
nxt(4)
kv_issue(6)
A(f'''
s_and_b32 s{sT}, s{sJ}, 16
s_lshl_b32 s{sT}, s{sT}, 7
s_add_u32 s{sT}, s{sT}, s{sFG}
s_add_u32 s{sT}, s{sT}, {F_K}
s_mov_b64 exec, 0xffff
buffer_load_dword v{vFg}, v{vFl}, {sr(sWS, 4)}, s{sT} offen sc1
s_mov_b64 exec, -1
''')
features([(vX2, vEp, vEn, vT + 4)], 2)
A('s_waitcnt vmcnt(0)')
A('s_mov_b64 exec, 0xffff')
spin('fk', sWS, f's{sT}', vFl, vFg, preloaded=True)
A('s_mov_b64 exec, -1')
A(f's_lshl_b32 s{sT}, s{sH}, 12')
A(f's_add_u32 s{sT}, s{sT}, {WS_KVF}')
for q in range(4):
    A(f'buffer_load_dwordx4 {vr(vKVF + 4 * q, 4)}, v{vLin}, {sr(sWS, 4)}, s{sT} offen offset:{1024 * q} sc1')
nxt(5)
for m in range(2):
    A(f'v_smfmac_f32_32x32x32_bf16 {vr(vNp, 16)}, {vr(vKVF + 4 * m, 4)}, {vr(vEp + 8 * m, 8)}, v{vIdxS}')
for m in range(2):
    A(f'v_smfmac_f32_32x32x32_bf16 {vr(vNn, 16)}, {vr(vKVF + 8 + 4 * m, 4)}, {vr(vEn + 8 * m, 8)}, v{vIdxS}')
kv_issue(7)
ap, an = vT + 4, vT + 6
A(f'''
v_mov_b32 v{vT}, {f32(1e-6)}
v_rcp_f32 v{ap}, v{vNp + 13}
v_rcp_f32 v{an}, v{vNn + 13}
v_fmac_f32 v{vT}, v{vNp + 12}, v{ap}
v_fmac_f32 v{vT}, v{vNn + 12}, v{an}
v_rcp_f32 v{vT}, v{vT}
v_mul_f32 v{ap}, v{ap}, v{vT}
v_mul_f32 v{an}, v{an}, v{vT}
v_mov_b32 v{vT}, v{ap}
v_mov_b32 v{vT + 1}, v{an}
v_permlane32_swap_b32 v{vT}, v{ap}
v_permlane32_swap_b32 v{vT + 1}, v{an}
''')
for r in range(0, 16, 2):
    A(f'v_pk_mul_f32 {vr(vNp + r, 2)}, {vr(vNp + r, 2)}, {vr(ap, 2)} op_sel_hi:[1,0]')
for r in range(0, 16, 2):
    A(f'v_pk_fma_f32 {vr(vNp + r, 2)}, {vr(vNn + r, 2)}, {vr(an, 2)}, {vr(vNp + r, 2)} op_sel_hi:[1,0,1]')
cvt8(vEn, vNp)
A(f'''
s_mov_b64 exec, {sr(sHi, 2)}
v_mov_b32 v{vEn + 6}, 0
v_mov_b32 v{vEn + 7}, 0
s_mov_b64 exec, -1
buffer_store_dwordx4 {vr(vEn, 4)}, v{vOA}, {sr(sWS, 4)}, s{sT + 7} offen sc1
buffer_store_dwordx4 {vr(vEn + 4, 4)}, v{vOA}, {sr(sWS, 4)}, s{sT + 7} offen offset:512 sc1
''')
nxt(6)
signal(f's{sT + 8}')
stamp('o_sig')
wo_issue(sWOA, L_WOA, 0, 8)
A('s_setprio 0')
if OPT['pre']:
    for hd in range(NPRE // 2):
        wo_reads(hd)
        A('s_waitcnt lgkmcnt(0)')
nxt(7)
wo_issue(sWOA, L_WOA, 32, 6)
if OPT['pre']:
    for hd in range(NPRE // 2, NPRE):
        wo_reads(hd)
        A('s_waitcnt lgkmcnt(0)')
A(f'''
s_waitcnt vmcnt(0)
s_barrier
s_cmp_lt_u32 s{sJ}, 28
s_cbranch_scc1 L_p3
s_branch L_fin
''')

if OPT.get('pad'):
    A(f'.fill {OPT["pad"] // 4}, 4, 0xbf800000')
vXl, vWl = 16, 20
vFA, vFB = 24, 44
vAcc = 64
A(f'''
L_comp:
s_and_b32 s{sRH}, s{sWv}, 1
s_lshr_b32 s{sH1}, s{sWv}, 1
s_mov_b32 s{sOnesM}, 0x10000000
s_mov_b32 s{sOnesM + 1}, 0x10000000
s_waitcnt lgkmcnt(0)
''')
common_setup()
A(f'''
s_cmp_eq_u32 s{sB}, 0
s_cbranch_scc1 L_nophi
s_lshl_b32 s{sT}, s{sWv}, 10
s_add_u32 m0, s{sT}, {L_WPHI}
s_mul_i32 s{sT + 1}, s{sCG}, 3136
s_add_u32 s{sT}, s{sT}, s{sT + 1}
buffer_load_dwordx4 v{vLin}, {sr(sPHI, 4)}, s{sT} offen lds
L_nophi:
s_cmp_eq_u32 s{sWv}, 1
s_cbranch_scc0 L_nopf
s_getpc_b64 s[{sT}:{sT + 1}]
L_pc:
s_sub_u32 s{sT}, s{sT}, L_pc-L_ld
s_subb_u32 s{sT + 1}, s{sT + 1}, 0
s_lshl_b32 s{sT + 2}, s{sJ}, 10
s_cmp_lt_u32 s{sT + 2}, L_end-L_ld
s_cbranch_scc0 L_nopf
s_add_u32 s{sT}, s{sT}, s{sT + 2}
s_addc_u32 s{sT + 1}, s{sT + 1}, 0
global_load_dword v{vFg}, v{vLin}, s[{sT}:{sT + 1}]
L_nopf:
s_cmp_eq_u32 s{sWv}, 0
s_cbranch_scc0 L_noinit
v_mov_b32 v{vT}, 0
v_lshlrev_b32 v{vT + 1}, 2, v{vL}
v_add_u32 v{vT + 1}, {L_RELAY}, v{vT + 1}
ds_write_b32 v{vT + 1}, v{vT}
L_noinit:
v_and_b32 v{vT}, 31, v{vL}
v_bfe_u32 v{vT + 1}, v{vL}, 1, 3
v_xor_b32 v{vT + 1}, v{vT + 1}, v{vH}
v_lshlrev_b32 v{vT + 1}, 4, v{vT + 1}
s_lshl_b32 s{sT}, s{sRH}, 6
v_add_u32 v{vT}, s{sT}, v{vT}
v_lshl_add_u32 v{vXl}, v{vT}, 7, v{vT + 1}
v_xor_b32 v{vXl + 1}, 32, v{vXl}
v_xor_b32 v{vXl + 2}, 64, v{vXl}
v_xor_b32 v{vXl + 3}, 0x60, v{vXl}
v_bfe_u32 v{vT}, v{vL}, 2, 2
v_lshl_add_u32 v{vT + 1}, v{vH}, 3, v{vT}
v_mul_u32_u24 v{vT + 1}, 384, v{vT + 1}
v_lshrrev_b32 v{vT}, 1, v{vT}
v_bfe_u32 v{vT + 2}, v{vL}, 4, 1
v_and_b32 v{vT + 3}, 3, v{vL}
v_lshl_add_u32 v{vT + 2}, v{vT + 2}, 2, v{vT + 3}
v_add_u32 v{vT + 5}, 1, v{vT + 2}
v_and_b32 v{vT + 5}, 8, v{vT + 5}
v_lshlrev_b32 v{vT}, 3, v{vT}
''')
for i in range(3):
    A(f'''
    s_mul_i32 s{sT}, s{sH1}, 3
    s_add_u32 s{sT}, s{sT}, {i}
    s_add_u32 s{sT + 1}, s{sH1}, {2 * i}
    s_cmp_eq_u32 s{sB}, 0
    s_cselect_b32 s{sT}, s{sT}, s{sT + 1}
    s_and_b32 s{sT + 1}, s{sT}, 1
    s_lshr_b32 s{sT}, s{sT}, 1
    s_lshl_b32 s{sT}, s{sT}, 7
    s_add_u32 s{sT}, s{sT}, 16384
    s_xor_b32 s{sT + 2}, s{sT + 1}, 1
    s_mul_i32 s{sT + 1}, s{sT + 1}, 7
    v_mad_u32_u24 v{vT + 3}, v{vT + 5}, s{sT + 2}, v{vT + 2}
    v_add_u32 v{vT + 3}, s{sT + 1}, v{vT + 3}
    v_xor_b32 v{vT + 3}, v{vT + 3}, v{vT}
    v_lshl_add_u32 v{vT + 3}, v{vT + 3}, 3, v{vT + 1}
    v_add_u32 v{vWl + i}, s{sT}, v{vT + 3}
    ''')
A(f'''
s_lshl_b32 s{sT + 8}, s{sCG}, 1
s_add_u32 s{sT + 8}, s{sT + 8}, s{sH1}
''')
for i in range(3):
    A(f'''
    s_mul_i32 s{sT}, s{sT + 8}, 3
    s_add_u32 s{sT}, s{sT}, {i}
    s_lshr_b32 s{sT}, s{sT}, 4
    s_cmp_eq_u32 s{sB}, 0
    s_cselect_b32 s{sT}, s{sT}, {i & 2}
    v_mov_b32 v{vT}, 0
    s_cmp_eq_u32 s{sT}, 2
    s_cselect_b64 exec, {sr(sOnesM, 2)}, 0
    v_mov_b32 v{vT}, 1.0
    s_mov_b64 exec, -1
    v_mov_b32 v{vT + 1}, v{vT}
    s_cmp_eq_u32 s{sT}, 1
    s_cselect_b64 exec, {sr(sHi, 2)}, 0
    v_mov_b32 v{vT + 1}, 1.0
    s_mov_b64 exec, -1
    ''')
    for r in range(32):
        A(f'v_mov_b32 v{vAcc + 32 * i + r}, v{vT + 1 if (r & 15) in (12, 13, 14) else vT}')


def p1_read_list(s, F):
    r = [f'ds_read_b128 {vr(F, 4)}, v{vXl + s}']
    for i in range(3):
        for u in range(2):
            r.append(f'ds_read_b64_tr_b16 {vr(F + 8 + 4 * i + 2 * u, 2)}, v{vWl + i} offset:{(16 * s + 4 * u) * 384}')
        if i == 0:
            r.append(f'ds_read_b128 {vr(F + 4, 4)}, v{vXl + s} offset:4096')
    return r


def p1_step(F, var, reads, extra=()):
    reads = list(reads)
    extra = list(extra)
    n = 0
    for i in range(3):
        for a in range(2):
            w, x, acc = vr(F + 8 + 4 * i, 4), vr(F + 4 * a, 4), vr(vAcc + 32 * i + 16 * a, 16)
            p, q = (w, x) if var[i] == 'T' else (x, w)
            A(f'v_mfma_f32_32x32x16_bf16 {acc}, {p}, {q}, {acc}')
            if n < 3:
                for r in reads[3 * n:3 * n + 3]:
                    A(r)
            else:
                for r in extra[4 * (n - 3):4 * (n - 3) + 4]:
                    A(r)
            n += 1


A(f'''
s_mov_b32 s{sC}, 0
s_mov_b32 s{sSlot}, 0
s_cmp_eq_u32 s{sB}, 0
s_cselect_b32 s{sT}, s{sT + 8}, 10
s_waitcnt lgkmcnt(0)
s_barrier
''')
stamp('p1_first')
for r in p1_read_list(0, vFA):
    A(r)
A(f'''
s_or_b32 s{sT + 1}, s{sJI}, s{sWv}
s_cbranch_scc1 L_nosig0
s_and_b32 s{sT + 1}, s2, 31
s_lshl_b32 s{sT + 1}, s{sT + 1}, 2
s_mov_b64 exec, 1
buffer_store_dword v{vOne}, v{vL}, {sr(sDBG, 4)}, s{sT + 1} offen sc1
s_mov_b64 exec, -1
L_nosig0:
s_cmp_eq_u32 s{sT}, 10
s_cbranch_scc1 L_p1_TTN
s_cmp_gt_u32 s{sT}, 10
s_cbranch_scc1 L_p1_NNN
''')
for var in ('TTT', 'TTN', 'NNN'):
    A('.p2align 3')
    A(f'L_p1_{var}:')
    A('s_waitcnt lgkmcnt(0)')
    A(f's_add_u32 s{sC}, s{sC}, 1')
    p1_step(vFA, var, p1_read_list(1, vFB),
            [f's_add_u32 s{sSlot}, s{sSlot}, 1', f's_cmp_eq_u32 s{sSlot}, 3', f's_cselect_b32 s{sSlot}, 0, s{sSlot}',
             f's_cselect_b32 s{sT}, -2, 1', f's_mul_i32 s{sT}, s{sT}, {SLOT}'])
    A('s_waitcnt lgkmcnt(0)')
    A('s_nop 0')
    p1_step(vFB, var, p1_read_list(2, vFA))
    A('s_waitcnt lgkmcnt(0)')
    A('s_nop 0')
    p1_step(vFA, var, p1_read_list(3, vFB), [f'v_add_u32 v{vXl + i}, s{sT}, v{vXl + i}' for i in range(7)] + ['s_nop 0'])
    A('s_waitcnt lgkmcnt(0)')
    A('s_barrier')
    p1_step(vFB, var, p1_read_list(0, vFA))
    A(f's_cmp_eq_u32 s{sC}, 4')
    A(f's_cbranch_scc1 L_p1h_{var}')
    A(f's_cmp_lt_u32 s{sC}, 7')
    A(f's_cbranch_scc1 L_p1_{var}')
    A('s_branch L_p1_done')
    A(f'''
    L_p1h_{var}:
    s_waitcnt vmcnt(0)
    s_branch L_p1_{var}
    ''')
A('L_p1_done:')
stamp('p1_done')
A(f'''
s_lshl_b32 s{sT + 4}, s{sRB1}, 1
s_add_u32 s{sT + 4}, s{sT + 4}, s{sRH}
s_lshl_b32 s{sT + 4}, s{sT + 4}, 1
s_waitcnt lgkmcnt(0)
s_cmp_eq_u32 s{sB}, 0
s_cbranch_scc0 L_epiB
''')
vP = 16
A(f'''
v_and_b32 v{vT}, 0x33, v{vL}
v_bfe_u32 v{vT + 1}, v{vL}, 2, 1
v_bfe_u32 v{vT + 2}, v{vL}, 3, 1
v_lshl_add_u32 v{vT}, v{vT + 1}, 3, v{vT}
v_lshl_add_u32 v{vT}, v{vT + 2}, 2, v{vT}
v_lshlrev_b32 v{vT}, 4, v{vT}
s_mov_b32 s{sT + 6}, {f32(QSCALE)}
s_mov_b32 s{sT + 7}, {f32(QSCALE)}
s_mul_i32 s{sT + 8}, s{sT + 8}, 3
''')
for i in range(3):
    acc, P = vAcc + 32 * i, vP + 16 * i
    A(f'''
    s_add_u32 s{sT}, s{sT + 8}, {i}
    s_and_b32 s{sT + 1}, s{sT}, 15
    s_lshl_b32 s{sT + 1}, s{sT + 1}, 6
    s_add_u32 s{sT + 1}, s{sT + 1}, s{sT + 4}
    s_lshr_b32 s{sT}, s{sT}, 4
    s_cmp_eq_u32 s{sT}, 1
    s_cselect_b64 vcc, -1, 0
    s_cmp_eq_u32 s{sT}, 0
    s_cbranch_scc0 L_eA_kv{i}
    s_lshl_b32 s{sT + 1}, s{sT + 1}, 11
    s_add_u32 s{sT + 2}, s{sT + 1}, 2048
    ''')
    for r in range(0, 32, 2):
        A(f'v_pk_mul_f32 {vr(acc + r, 2)}, {vr(acc + r, 2)}, {sr(sT + 6, 2)}')
    A(f'''
    s_branch L_eA_n{i}
    L_eA_kv{i}:
    s_lshl_b32 s{sT + 1}, s{sT + 1}, 1
    s_add_u32 s{sT + 1}, s{sT + 1}, s{sT}
    s_lshl_b32 s{sT + 1}, s{sT + 1}, 11
    s_add_u32 s{sT + 2}, s{sT + 1}, {WS_KV - 2048 + 4096}
    s_add_u32 s{sT + 1}, s{sT + 1}, {WS_KV - 2048}
    L_eA_n{i}:
    v_cndmask_b32 v{vT + 1}, v{vLin}, v{vT}, vcc
    ''')
    for q in range(4):
        for r in range(4 * q, 4 * q + 4):
            A(f'v_cvt_pk_bf16_f32 v{P + r}, v{acc + 2 * r}, v{acc + 2 * r + 1}')
        A(f'buffer_store_dwordx4 {vr(P + 4 * q, 4)}, v{vT + 1}, {sr(sWS, 4)}, s{sT + 1 + (q >> 1)} offen offset:{1024 * (q & 1)} sc1')
stamp('epi_done')
A(f'''
s_mul_i32 s{sT}, s{sCG}, 3
v_add_u32 v{vT}, s{sT}, v{vL}
v_and_b32 v{vT + 1}, 7, v{vT}
v_lshrrev_b32 v{vT}, 3, v{vT}
v_mul_u32_u24 v{vT + 1}, {FGRP}, v{vT + 1}
v_lshl_add_u32 v{vT + 2}, v{vT}, 11, v{vT + 1}
s_lshl_b32 s{sT}, s{sRB1}, 7
s_add_u32 s{sT}, s{sT}, {WS_FL + F_A}
s_waitcnt vmcnt(0)
s_barrier
s_cmp_eq_u32 s{sWv}, 0
s_cbranch_scc0 L_k0
s_mov_b64 exec, 7
buffer_store_dword v{vOne}, v{vT + 2}, {sr(sWS, 4)}, s{sT} offen sc1
s_mov_b64 exec, -1
''')
stamp('sigA')
A('s_branch L_k0')
pK, pQ, pV, vWF, vX, vU = 16, 32, 48, 160, 168, 200
A('L_epiB:')
wphi_addr(vU, vU + 1)
A(f'''
s_mul_i32 s{sT}, s{sH1}, 1568
s_add_u32 s{sT}, s{sT}, {L_WPHI}
v_add_u32 v{vU}, s{sT}, v{vU}
''')
for q in range(4):
    A(f'ds_read_b64_tr_b16 {vr(vWF + 2 * q, 2)}, v{vU} offset:{8 * q * 56}')
cvt8(pK, vAcc + 32)
cvt8(pK + 8, vAcc + 48)
A(f'''
s_lshl_b32 s{sT + 1}, s{sT + 8}, 6
s_add_u32 s{sT + 1}, s{sT + 1}, s{sT + 4}
s_lshl_b32 s{sT + 1}, s{sT + 1}, 11
s_add_u32 s{sT + 1}, s{sT + 1}, {WS_QB}
s_waitcnt lgkmcnt(0)
''')
for a in range(2):
    A(f'v_mfma_f32_32x32x16_bf16 {vr(vX + 16 * a, 16)}, {vr(vWF, 4)}, {vr(pK + 8 * a, 4)}, 0')
    for i in range(4):
        A(f'v_cvt_pk_bf16_f32 v{pV + 8 * a + i}, v{vAcc + 64 + 16 * a + 2 * i}, v{vAcc + 64 + 16 * a + 2 * i + 1}')
    A(f'v_mfma_f32_32x32x16_bf16 {vr(vX + 16 * a, 16)}, {vr(vWF + 4, 4)}, {vr(pK + 8 * a + 4, 4)}, {vr(vX + 16 * a, 16)}')
    for i in range(4, 8):
        A(f'v_cvt_pk_bf16_f32 v{pV + 8 * a + i}, v{vAcc + 64 + 16 * a + 2 * i}, v{vAcc + 64 + 16 * a + 2 * i + 1}')
cvt8(pQ, vAcc)
cvt8(pQ + 8, vAcc + 16)
A(f'''
s_lshl_b32 s{sT}, s{sWv}, 12
s_add_u32 s{sT}, s{sT}, {L_V}
v_add_u32 v{vU}, s{sT}, v{vLin}
''')
for q in range(4):
    A(f'ds_write_b128 v{vU}, {vr(pV + 4 * q, 4)} offset:{1024 * q}')
tiles = [(vX + 16 * a, vAcc + 16 * a, vAcc + 32 + 16 * a, vT + 4 * a) for a in range(2)]
features(tiles)
for q in range(4):
    A(f'buffer_store_dwordx4 {vr(pQ + 4 * q, 4)}, v{vLin}, {sr(sWS, 4)}, s{sT + 1} offen offset:{1024 * q} sc1')
for X, Ep, En, t in tiles:
    A(f'v_pk_add_f32 {vr(t, 2)}, {vr(Ep, 2)}, {vr(Ep + 2, 2)}')
    A(f'v_pk_add_f32 {vr(t + 2, 2)}, {vr(En, 2)}, {vr(En + 2, 2)}')
for r in range(4, 16, 2):
    for X, Ep, En, t in tiles:
        A(f'v_pk_add_f32 {vr(t, 2)}, {vr(t, 2)}, {vr(Ep + r, 2)}')
        A(f'v_pk_add_f32 {vr(t + 2, 2)}, {vr(t + 2, 2)}, {vr(En + r, 2)}')
for X, Ep, En, t in tiles:
    A(f'v_add_f32 v{t}, v{t}, v{t + 1}')
    A(f'v_add_f32 v{t + 2}, v{t + 2}, v{t + 3}')
A(f'''
v_and_b32 v{vU}, 31, v{vL}
v_bfe_u32 v{vU + 1}, v{vL}, 1, 2
''')
for X, Ep, En, t in tiles:
    A(f'v_permlane32_swap_b32 v{t}, v{t + 2}')
for X, Ep, En, t in tiles:
    A(f'v_add_f32 v{t}, v{t}, v{t + 2}')
for X, Ep, En, t in tiles:
    A(f'v_rcp_f32 v{t}, v{t}')
A(f'v_lshlrev_b32 v{vU + 2}, 1, v{vH}')
for X, Ep, En, t in tiles:
    A(f'v_mov_b32 v{t + 2}, v{t}')
A(f'''
v_xor_b32 v{vU + 1}, v{vU + 1}, v{vU + 2}
v_lshlrev_b32 v{vU + 1}, 4, v{vU + 1}
''')
for X, Ep, En, t in tiles:
    A(f'v_permlane32_swap_b32 v{t}, v{t + 2}')
A(f'''
v_lshl_add_u32 v{vU}, v{vU}, 6, v{vU + 1}
s_lshl_b32 s{sT}, s{sH1}, 14
s_lshl_b32 s{sT + 1}, s{sRH}, 12
s_add_u32 s{sT}, s{sT}, s{sT + 1}
s_add_u32 s{sT}, s{sT}, {L_PHI}
v_add_u32 v{vU}, s{sT}, v{vU}
v_xor_b32 v{vU + 1}, 16, v{vU}
''')
for a, (X, Ep, En, t) in enumerate(tiles):
    for sg, (E, s_) in enumerate(((Ep, t), (En, t + 2))):
        for r in range(0, 16, 2):
            A(f'v_pk_mul_f32 {vr(E + r, 2)}, {vr(E + r, 2)}, {vr(s_, 2)} op_sel_hi:[1,0]')
        P = X + 8 * sg
        cvt8(P, E)
        A(f'ds_write_b128 v{vU}, {vr(P, 4)} offset:{8192 * sg + 2048 * a}')
        A(f'ds_write_b128 v{vU + 1}, {vr(P + 4, 4)} offset:{8192 * sg + 2048 * a}')
stamp('epi_done')
A('s_waitcnt lgkmcnt(0)')
A('s_barrier')
vQ, vO, vS, vPp, vK, vV, vIdx, vRd, vXw, vXr = 16, 208, 64, 96, 128, 144, 176, 177, 178, 179
sKeep = sKC
A(f'''
L_k0:
s_setprio 1
s_lshl_b32 s{sKeep}, s{sRH}, 1
s_add_u32 s{sKeep}, s{sKeep}, s{sH1}
s_lshl_b32 s{sT}, s{sKeep}, 11
s_add_u32 s{sT}, s{sT}, {L_Q}
v_add_u32 v{vT + 7}, s{sT}, v{vLin}
v_xor_b32 v{vT + 6}, 0x800, v{vT + 7}
s_lshl_b32 s{sT}, s{sH1}, 14
s_add_u32 s{sT}, s{sT}, 32768
v_add_u32 v{vRd}, s{sT}, v{vLin}
v_mov_b32 v{vIdx}, 0xdddddddd
s_lshl_b32 s{sT}, s{sWv}, 12
s_add_u32 s{sT}, s{sT}, {L_XCH}
v_add_u32 v{vXw}, s{sT}, v{vLin}
v_xor_b32 v{vXr}, 0x2000, v{vXw}
''')
o_addr(0, sKeep)
for r in range(32):
    A(f'v_mov_b32 v{vO + r}, 0')
A(f'''
s_mov_b32 s{sC}, 1
s_mov_b32 s{sSlot}, 1
s_waitcnt vmcnt(0)
s_barrier
''')
stamp('k0')


def tile_read(q, i):
    dst = vK + 8 * (i & 1) + 4 * q if q < 2 else vV + 8 * (i & 3) + 4 * (q - 2)
    A(f'ds_read_b128 {vr(dst, 4)}, v{vRd} offset:{(i & 3) * 4096 + q * 1024}')


def set_qpad(g, m, t):
    A(f'''
    v_and_b32 v{t}, 0xffff0000, v{m}
    v_sub_f32 v{m}, v{m}, v{t}
    v_lshrrev_b32 v{t}, 16, v{t}
    v_and_b32 v{t + 1}, 0xffff0000, v{m}
    v_sub_f32 v{m}, v{m}, v{t + 1}
    s_mov_b64 exec, {sr(sHi, 2)}
    v_or_b32 v{vQ + 8 * g + 6}, v{t}, v{t + 1}
    v_lshrrev_b32 v{vQ + 8 * g + 7}, 16, v{m}
    s_mov_b64 exec, -1
    ''')


def qk(S, K_, g, half):
    c = vr(S, 16) if half else '0'
    A(f'v_mfma_f32_32x32x16_bf16 {vr(S, 16)}, {vr(K_ + 4 * half, 4)}, {vr(vQ + 8 * g + 4 * half, 4)}, {c}')


def pv(V, g, half):
    A(f'v_smfmac_f32_32x32x32_bf16 {vr(vO + 16 * g, 16)}, {vr(V + 4 * half, 4)}, {vr(vPp + 16 * g + 8 * half, 8)}, v{vIdx}')


def step(g, i_qk, i_pv, gaps, wide=False):
    o = 1 - g
    for n in range(4):
        if n < 2 and i_qk is not None:
            qk(vS + 16 * o, vK + 8 * (i_qk & 1), o, n)
        if n >= 2 and i_pv is not None:
            pv(vV + 8 * (i_pv & 3), o, n - 2)
        for f in gaps[n]:
            f()
        for r in range(4 * n, 4 * n + 4):
            e64 = '_e64' if wide and r == 12 else ''
            A(f'v_exp_f32{e64} v{vPp + 16 * g + r}, v{vS + 16 * g + r}')


def rd(i, *qs):
    return [lambda q=q: tile_read(q, i) for q in qs]


vK0 = vV + 16
A(f'''
ds_read_b128 {vr(vQ, 4)}, v{vT + 6}
ds_read_b128 {vr(vK0, 4)}, v{vLin} offset:32768
ds_read_b128 {vr(vQ + 4, 4)}, v{vT + 6} offset:1024
ds_read_b128 {vr(vK0 + 4, 4)}, v{vLin} offset:{32768 + 1024}
ds_read_b128 {vr(vQ + 8, 4)}, v{vT + 7}
ds_read_b128 {vr(vQ + 12, 4)}, v{vT + 7} offset:1024
''')
for q in range(4):
    tile_read(q, 0)
A('s_waitcnt lgkmcnt(8)')
qk(vPp, vK0, 0, 0)
A('s_waitcnt lgkmcnt(6)')
qk(vPp, vK0, 0, 1)
A('s_waitcnt lgkmcnt(4)')
qk(vPp + 16, vK0, 1, 0)
qk(vPp + 16, vK0, 1, 1)
A('s_waitcnt lgkmcnt(0)')
qk(vS, vK, 0, 0)
MOFF = f32(-float(OPT['moff']) if not OPT['force_fb'] else 200.0)
for g in range(2):
    S = vPp + 16 * g
    A(f'v_max3_f32 v{vT}, v{S}, v{S + 1}, v{S + 2}')
    A(f'v_max3_f32 v{vT + 1}, v{S + 3}, v{S + 4}, v{S + 5}')
    A(f'v_max3_f32 v{vT}, v{vT}, v{S + 6}, v{S + 7}')
    A(f'v_max3_f32 v{vT + 1}, v{vT + 1}, v{S + 8}, v{S + 9}')
    A(f'v_max3_f32 v{vT}, v{vT}, v{S + 10}, v{S + 11}')
    A(f'v_max3_f32 v{vT + 1}, v{vT + 1}, v{S + 12}, v{S + 13}')
    A(f'v_max3_f32 v{vT}, v{vT}, v{S + 14}, v{S + 15}')
    A(f'''
    v_max_f32 v{vT}, v{vT}, v{vT + 1}
    v_mov_b32 v{vT + 1}, v{vT}
    v_permlane32_swap_b32 v{vT}, v{vT + 1}
    v_max_f32 v{vT}, v{vT}, v{vT + 1}
    v_sub_f32 v{vT}, {MOFF}, v{vT}
    ''')
    set_qpad(g, vT, vT + 1)
    if g == 0:
        qk(vS, vK, 0, 1)
A('.p2align 3')
step(0, 0, None, [rd(1, 0), rd(1, 1), rd(1, 2), rd(1, 3)], wide=True)


def iteration(i, reads, last=False, extra=()):
    A('s_waitcnt lgkmcnt(0)')
    body = [rd(i + 1, 0), rd(i + 1, 1), rd(i + 1, 2), rd(i + 1, 3)] if reads else [[], [], [], []]
    step(1, i, i - 1, body)
    step(0, i, i - 1, [list(extra), [], [], []], wide=not last)


adv = [lambda: A(f'''
    s_add_u32 s{sSlot}, s{sSlot}, 1
    s_cmp_eq_u32 s{sSlot}, 3
    s_cselect_b32 s{sSlot}, 0, s{sSlot}
    s_cselect_b32 s{sT}, -2, 1
    s_lshl_b32 s{sT}, s{sT}, 15
    v_add_u32 v{vRd}, s{sT}, v{vRd}
    ''')]
def advc(c):
    return [lambda: A(f'v_add_u32 v{vRd}, {32768 if (c + 1) % 3 else -65536 & 0xffffffff}, v{vRd}')]


if OPT['unroll']:
    iteration(1, True)
    iteration(2, True, last=True, extra=advc(1))
    for c in range(1, 8):
        if OPT['fine'] == 2:
            stamp(f'pre{c}')
        A('s_waitcnt lgkmcnt(0)')
        A('s_barrier')
        if OPT['fine'] == 2:
            stamp(f'bar{c}')
            A('.p2align 3')
        step(1, 3, 2, [rd(4, 0), rd(4, 1), rd(4, 2), rd(4, 3)])
        step(0, 3, 2, [[], [], [], []], wide=True)
        iteration(4, True)
        iteration(5, True)
        iteration(6, True, last=c < 7, extra=advc(c + 1) if c < 7 else [])
else:
    iteration(1, True)
    iteration(2, True, last=True, extra=adv)
    A('L_attloop:')


    def dstamp(pref):
        if OPT['fine'] != 2:
            return
        base = len(STAMPS)
        for c in range(1, 8):
            STAMPS.append(f'{pref}{c}')
        A(f'''
        s_memrealtime s[{sStamp}:{sStamp + 1}]
        s_memtime s[94:95]
        s_add_u32 m0, s{sC}, {base - 1}
        s_waitcnt lgkmcnt(0)
        v_writelane_b32 v255, s{sStamp}, m0
        s_add_u32 m0, m0, 32
        s_nop 0
        v_writelane_b32 v255, s94, m0
        .p2align 3
        ''')


    dstamp('pre')
    A('s_waitcnt lgkmcnt(0)')
    A('s_barrier')
    dstamp('bar')
    step(1, 3, 2, [rd(4, 0), rd(4, 1), rd(4, 2), rd(4, 3)])
    step(0, 3, 2, [[], [], [], []], wide=True)
    iteration(4, True)
    iteration(5, True)
    iteration(6, True, last=True, extra=adv + [lambda: A(f's_add_u32 s{sC}, s{sC}, 1'), lambda: A(f's_cmp_lt_u32 s{sC}, 8')])
    A('s_cbranch_scc1 L_attloop')
A('s_waitcnt lgkmcnt(0)')
A('.p2align 3')
A('s_barrier')
A('s_setprio 3')
step(1, 31, 30, [[], [], [], []])
step(0, 31, 30, [[], [], [], []])
S1, P1 = vS + 16, vPp + 16
for r in range(2):
    A(f'v_exp_f32 v{P1 + r}, v{S1 + r}')
pv(vV + 24, 0, 0)
for r in range(2, 6):
    A(f'v_exp_f32 v{P1 + r}, v{S1 + r}')
pv(vV + 24, 0, 1)
for r in range(6, 10):
    A(f'v_exp_f32 v{P1 + r}, v{S1 + r}')
pv(vV + 24, 1, 0)
for r in range(10, 16):
    A(f'v_exp_f32 v{P1 + r}, v{S1 + r}')
A(f's_lshl_b32 s{sT}, s{sWv}, 2')
A(f's_add_u32 s{sT}, s{sT}, {L_RELAY + 16}')
pv(vV + 24, 1, 1)
A(f'v_mov_b32 v{vT + 1}, s{sT}')
for q in range(4):
    A(f'ds_write_b128 v{vXw}, {vr(vO + 4 * q, 4)} offset:{1024 * q}')
A(f'ds_write_b32 v{vT + 1}, v{vOne}')
A(f'v_xor_b32 v{vT + 1}, 8, v{vT + 1}')
stamp('att_done')
O1 = vO + 16
A(f'''
s_mov_b32 s{sSpin}, {OPT['spin'] * 16}
L_xch:
ds_read_b32 v{vT}, v{vT + 1}
''')
for q in range(4):
    A(f'ds_read_b128 {vr(vS + 4 * q, 4)}, v{vXr} offset:{1024 * q}')
A(f'''
s_sub_u32 s{sSpin}, s{sSpin}, 1
s_cmp_eq_u32 s{sSpin}, 0
s_cbranch_scc1 L_xchx
s_waitcnt lgkmcnt(4)
v_cmp_ne_u32 vcc, 1, v{vT}
s_cbranch_vccnz L_xch
L_xchx:
''')
for q in range(4):
    A(f's_waitcnt lgkmcnt({3 - q})')
    A(f'v_pk_add_f32 {vr(O1 + 4 * q, 2)}, {vr(O1 + 4 * q, 2)}, {vr(vS + 4 * q, 2)}')
    A(f'v_pk_add_f32 {vr(O1 + 4 * q + 2, 2)}, {vr(O1 + 4 * q + 2, 2)}, {vr(vS + 4 * q + 2, 2)}')
A(f'v_add_f32_e64 v{vT}, abs(v{O1}), abs(v{O1 + 1})')
A(f'v_add_f32_e64 v{vT + 1}, abs(v{O1 + 2}), abs(v{O1 + 3})')
for r in range(4, 16, 2):
    A(f'v_add_f32_e64 v{vT}, v{vT}, abs(v{O1 + r})')
    A(f'v_add_f32_e64 v{vT + 1}, v{vT + 1}, abs(v{O1 + r + 1})')
vPk = 240
A(f'''
v_add_f32 v{vT}, v{vT}, v{vT + 1}
s_mov_b32 s{sT}, 0x7b800000
v_cmp_ngt_f32 vcc, s{sT}, v{vT}
s_cbranch_vccnz L_fallback
L_final:
v_rcp_f32 v{vT + 2}, v{O1 + 12}
v_rcp_f32 v{vT + 4}, v{O1 + 12}
v_permlane32_swap_b32 v{vT + 4}, v{vT + 2}
''')
for r in range(0, 16, 2):
    A(f'v_pk_mul_f32 {vr(O1 + r, 2)}, {vr(O1 + r, 2)}, {vr(vT + 2, 2)} op_sel_hi:[1,0]')
cvt8(vPk, O1)
A(f'''
s_mov_b64 exec, {sr(sHi, 2)}
v_mov_b32 v{vPk + 6}, 0
v_mov_b32 v{vPk + 7}, 0
s_mov_b64 exec, -1
buffer_store_dwordx4 {vr(vPk, 4)}, v{vOA}, {sr(sWS, 4)}, s{sT + 7} offen sc1
buffer_store_dwordx4 {vr(vPk + 4, 4)}, v{vOA}, {sr(sWS, 4)}, s{sT + 7} offen offset:512 sc1
''')
stamp('o_stored')
p3_addr(L_WOA)
for hd in range(NPRE // 2):
    wo_reads(hd)
A('s_waitcnt vmcnt(0)')
signal(f's{sT + 8}')
stamp('o_sig')
A(f'''
s_cmp_ge_u32 s{sJ}, 28
s_cbranch_scc1 L_fin
''')
for hd in range(NPRE // 2, NPRE):
    wo_reads(hd)
A(f'''
L_p3:
s_lshr_b32 s{sT}, s{sRT}, 1
s_lshl_b32 s{sT + 1}, s{sRB64}, 1
s_add_u32 s{sT}, s{sT}, s{sT + 1}
s_and_b32 s{sT + 1}, s{sT}, 7
s_lshl_b32 s{sT + 2}, s{sHH}, 3
s_add_u32 s{sT + 1}, s{sT + 1}, s{sT + 2}
s_lshl_b32 s{sT + 1}, s{sT + 1}, 11
s_add_u32 s{sT + 1}, s{sT + 1}, s{sFG}
s_add_u32 s{sT + 1}, s{sT + 1}, {F_O}
s_lshl_b32 s{sT + 2}, s{sHH}, 6
s_add_u32 s{sT}, s{sT}, s{sT + 2}
s_lshl_b32 s{sT}, s{sT}, 1
s_and_b32 s{sT + 2}, s{sCB}, {OPT['hrot']}
s_cselect_b32 s{sT + 4}, -1, 1
s_add_u32 s{sT}, s{sT}, s{sT + 2}
s_lshl_b32 s{sT}, s{sT}, 14
s_and_b32 s{sT + 2}, s{sRT}, 1
s_lshl_b32 s{sT + 2}, s{sT + 2}, 10
s_add_u32 s{sT}, s{sT}, s{sT + 2}
s_add_u32 s{sT}, s{sT}, {WS_O}
s_xor_b32 s{sT + 3}, s{sT}, 0x4000
s_mul_i32 s{sT + 4}, s{sT + 4}, {HROT}
''')
poll16('s3', f's{sT + 1}')
stamp('p3_flag')
for hd in range(16):
    s_ = sT if hd < 8 else sT + 3
    A(f'buffer_load_dwordx4 {vr(vOf + 4 * hd, 4)}, v{vLin}, {sr(sWS, 4)}, s{s_} offen offset:{2048 * (hd & 1)} sc1')
    if hd & 1 and hd not in (7, 15):
        A(f's_add_u32 s{s_}, s{s_}, 4096')


def b():
    A(f'''
    s_lshl_b32 s{sT}, s{sRT}, 2
    s_add_u32 s{sT}, s{sT}, {L_RELAY + 16}
    v_mov_b32 v{vT + 1}, s{sT}
    s_mov_b32 s{sSpin}, {OPT['spin'] * 16}
    L_w8:
    ds_read_b32 v{vT}, v{vT + 1}
    s_sub_u32 s{sSpin}, s{sSpin}, 1
    s_waitcnt lgkmcnt(0)
    s_cmp_eq_u32 s{sSpin}, 0
    s_cbranch_scc1 L_w8x
    v_cmp_ne_u32 vcc, 1, v{vT}
    s_cbranch_vccnz L_w8
    L_w8x:
    ''')
    if not OPT['pre']:
        for hd in range(NPRE):
            wo_reads(hd)


guard('b8', f's_cmp_eq_u32 s{sHH}, 1', b)
for i in range(8):
    A(f'v_add_u32 v{vWa + i}, s{sT + 4}, v{vWa + i}')
vSt, vLd, vOut = vT + 1, vT + 2, vT + 3
A(f'''
s_lshl_b32 s{sT}, s{sWv}, 11
s_add_u32 s{sT}, s{sT}, {L_STG}
v_and_b32 v{vT}, 15, v{vL}
v_lshrrev_b32 v{vT + 4}, 4, v{vL}
v_and_b32 v{vT + 5}, 7, v{vL}
v_lshlrev_b32 v{vSt}, 4, v{vT + 5}
v_lshl_add_u32 v{vSt}, v{vT}, 7, v{vSt}
v_lshlrev_b32 v{vT + 4}, 3, v{vT + 4}
v_xor_b32 v{vSt}, v{vSt}, v{vT + 4}
v_add_u32 v{vSt}, s{sT}, v{vSt}
v_lshrrev_b32 v{vT}, 3, v{vL}
v_xor_b32 v{vLd}, v{vT}, v{vT + 5}
v_lshlrev_b32 v{vLd}, 4, v{vLd}
v_lshl_add_u32 v{vLd}, v{vT}, 7, v{vLd}
v_add_u32 v{vLd}, s{sT}, v{vLd}
v_mul_u32_u24 v{vOut}, 1792, v{vT}
v_lshl_add_u32 v{vOut}, v{vT + 5}, 4, v{vOut}
v_xor_b32 v{vT + 4}, 32, v{vSt}
v_xor_b32 v{vT + 5}, 64, v{vSt}
v_xor_b32 v{vT + 6}, 0x60, v{vSt}
s_lshl_b32 s{sT}, s{sRB64}, 2
s_add_u32 s{sT}, s{sT}, s{sRT}
s_mul_i32 s{sT}, s{sT}, {16 * 1792}
s_mul_i32 s{sT + 1}, s{sHH}, 896
s_add_u32 s{sT}, s{sT}, s{sT + 1}
s_lshl_b32 s{sT + 1}, s{sCB}, 7
s_add_u32 s{sT}, s{sT}, s{sT + 1}
s_add_u32 s{sT + 1}, s{sT}, {8 * 1792}
''')
for hd in range(16):
    G = vWo + 16 * (hd % NPRE)
    lg = {0: ' lgkmcnt(0)', 8: ' lgkmcnt(14)', 14: ' lgkmcnt(8)', 15: ' lgkmcnt(0)'}.get(hd, '')
    A(f's_waitcnt vmcnt({15 - hd})' + lg)
    for ct in range(4):
        c = vr(vC + 4 * ct, 4) if hd else '0'
        A(f'v_mfma_f32_16x16x32_bf16 {vr(vC + 4 * ct, 4)}, {vr(G + 4 * ct, 4)}, {vr(vOf + 4 * hd, 4)}, {c}')
    if hd < 8:
        wo_reads(hd)
for ct in range(4):
    A(f'v_cvt_pk_bf16_f32 v{vOf + 2 * ct}, v{vC + 4 * ct}, v{vC + 4 * ct + 1}')
    A(f'v_cvt_pk_bf16_f32 v{vOf + 2 * ct + 1}, v{vC + 4 * ct + 2}, v{vC + 4 * ct + 3}')
    A(f'ds_write_b64 v{[vSt, vT + 4, vT + 5, vT + 6][ct]}, {vr(vOf + 2 * ct, 2)}')
OUTFL = ['', 'sc1', 'nt', 'sc0 sc1'][OPT['outfl']]
A(f'''
ds_read_b128 {vr(vOf + 8, 4)}, v{vLd}
ds_read_b128 {vr(vOf + 12, 4)}, v{vLd} offset:1024
s_waitcnt lgkmcnt(1)
buffer_store_dwordx4 {vr(vOf + 8, 4)}, v{vOut}, {sr(sOUT, 4)}, s{sT} offen {OUTFL}
s_waitcnt lgkmcnt(0)
buffer_store_dwordx4 {vr(vOf + 12, 4)}, v{vOut}, {sr(sOUT, 4)}, s{sT + 1} offen {OUTFL}
''')
stamp('p3_done')
A('L_fin:')
if PROBE:
    if 'px' in OPT:
        A(f's_cmp_eq_u32 s{sXc}, {OPT["px"]}')
        A('s_cbranch_scc0 L_end')
    if 'pb' in OPT:
        A(f's_cmp_eq_u32 s{sB}, {OPT["pb"]}')
        A('s_cbranch_scc0 L_end')
    A('''
    L_pad:
    s_memrealtime s[94:95]
    s_waitcnt lgkmcnt(0)
    s_sub_u32 s94, s94, s90
    s_cmp_lt_u32 s94, 3000
    s_cbranch_scc1 L_pad
    ''')
if OPT['stamps']:
    A('s_waitcnt vmcnt(0)')
    stamp('end')
    A(f'''
    s_lshl_b32 s{sT}, s2, 3
    s_add_u32 s{sT}, s{sT}, s{sWv}
    s_lshl_b32 s{sT}, s{sT}, 8
    s_add_u32 s{sT}, s{sT}, {WS_ST}
    v_lshlrev_b32 v{vT}, 2, v{vL}
    buffer_store_dword v255, v{vT}, {sr(sWS, 4)}, s{sT} offen
    ''')
A('s_endpgm')
A(f'''
L_fallback:
s_mov_b64 exec, {sr(sHi, 2)}
v_mov_b32 v{vQ + 14}, 0
v_mov_b32 v{vQ + 15}, 0
s_mov_b64 exec, -1
v_mov_b32 v{vT}, 0xff800000
s_lshl_b32 s{sT}, s{sH}, 18
s_add_u32 s{sT}, s{sT}, {WS_KV}
s_mov_b32 s{sT + 1}, 0
L_fb1:
buffer_load_dwordx4 {vr(vK, 4)}, v{vLin}, {sr(sWS, 4)}, s{sT} offen sc1
buffer_load_dwordx4 {vr(vK + 4, 4)}, v{vLin}, {sr(sWS, 4)}, s{sT} offen offset:1024 sc1
s_waitcnt vmcnt(0)
''')
qk(vS, vK, 1, 0)
qk(vS, vK, 1, 1)
for r in range(0, 16, 2):
    A(f'v_max3_f32 v{vT}, v{vT}, v{vS + r}, v{vS + r + 1}')
A(f'''
s_add_u32 s{sT}, s{sT}, 4096
s_add_u32 s{sT + 1}, s{sT + 1}, 1
s_cmp_lt_u32 s{sT + 1}, 64
s_cbranch_scc1 L_fb1
v_mov_b32 v{vT + 1}, v{vT}
v_permlane32_swap_b32 v{vT}, v{vT + 1}
v_max_f32 v{vT}, v{vT}, v{vT + 1}
v_sub_f32 v{vT}, 0, v{vT}
''')
set_qpad(1, vT, vT + 1)
for r in range(16):
    A(f'v_mov_b32 v{O1 + r}, 0')
A(f'''
s_lshl_b32 s{sT}, s{sH}, 18
s_add_u32 s{sT}, s{sT}, {WS_KV}
s_mov_b32 s{sT + 1}, 0
L_fb2:
''')
for q in range(4):
    A(f'buffer_load_dwordx4 {vr(vK + 4 * q, 4)}, v{vLin}, {sr(sWS, 4)}, s{sT} offen offset:{1024 * q} sc1')
A('s_waitcnt vmcnt(0)')
qk(vS, vK, 1, 0)
qk(vS, vK, 1, 1)
for r in range(16):
    A(f'v_exp_f32 v{P1 + r}, v{vS + r}')
pv(vK + 8, 1, 0)
pv(vK + 8, 1, 1)
A(f'''
s_add_u32 s{sT}, s{sT}, 4096
s_add_u32 s{sT + 1}, s{sT + 1}, 1
s_cmp_lt_u32 s{sT + 1}, 64
s_cbranch_scc1 L_fb2
s_nop 11
s_branch L_final
L_end:
s_endpgm
''')

n = A.fix_hazards(verbose=bool(OPT.get('v')))
hdr = open('cdna_kernels/' + NAME + '.s.ref').read().split('; Override launch')[0]
out = hdr + f'''; One persistent launch, 256 workgroups (one per CU); generated by the author's own script.
; @launch grid=(256,1,1) block=(512,1,1) lds=163840
.amdgcn_target "amdgcn-amd-amdhsa--gfx950"
.text
.globl {NAME}_kernel
.p2align 8
.type {NAME}_kernel,@function
{NAME}_kernel:
''' + A.text() + f'''.fill 256, 4, 0xbf800000
.section .rodata,"a"
.p2align 6
.amdhsa_kernel {NAME}_kernel
  .amdhsa_next_free_vgpr 256
  .amdhsa_next_free_sgpr 102
  .amdhsa_accum_offset 256
  .amdhsa_group_segment_fixed_size 0
  .amdhsa_kernarg_size 80
  .amdhsa_user_sgpr_count 2
  .amdhsa_user_sgpr_kernarg_segment_ptr 1
  .amdhsa_system_sgpr_workgroup_id_x 1
.end_amdhsa_kernel
'''
open(sys.argv[1], 'w').write(out)
if OPT['stamps']:
    open(sys.argv[1] + '.stamps', 'w').write('\n'.join(STAMPS + ['1']))
print('lines', len(A.lines), 'nops inserted', n)
```

```python
import sys, math, struct
from asmlib import Asm, vr, sr

NAME = 'concat_heads__softmax_full_mha__linear_kernel_hedgehog__prompt'
OPT = dict(stamps=0, force_fb=0, spin=1 << 16, moff=24, outfl=1, fine=0, pair=1, half=1, hrot=1, unroll=1, pre=1)
PROBE = None
for a in sys.argv[2:]:
    k, v = a.split('=')
    if k == 'probe':
        PROBE = v
    else:
        OPT[k] = int(v, 0)


def f32(x):
    return '0x%08x' % struct.unpack('<I', struct.pack('<f', x))[0]


LOG2E = 1.4426950408889634
QSCALE = LOG2E / math.sqrt(28.0)

WS_QA, WS_KV, WS_QB, WS_KVP, WS_O, WS_FL, WS_KVF, WS_ST, WS_END = (
    0, 0x200000, 0x600000, 0x800000, 0xA00000, 0xE00000, 0xE80000, 0xF00000, 0x1000000)
FGRP = 384 * 128
F_A, F_B, F_K, F_O = 0, 48 * 128, 64 * 128, 96 * 128
sX, sW, sWS, sDBG, sPHI, sWOA, sOUT, sWOB = 24, 28, 32, 36, 40, 44, 48, 96
sWv, sXc, sJ, sB, sRB1, sCG, sH, sRB = 52, 53, 54, 55, 56, 57, 58, 59
sT = 60
sC, sSlot, sFG, sKC, sXbase, sWbase, sXo, sWo = 70, 71, 72, 73, 74, 75, 76, 77
sL = 78
sRT, sHH, sSpin, sCB, sKVo, sRB64 = 80, 81, 82, 83, 84, 85
sHi = 86
sOnesM = 88
sStamp = 90
sM0, sRH, sH1, sJI = 92, 93, 3, 100
sPar = sRH
vL, vLin, vH = 1, 2, 3
vT = 4
vFl, vOne, vOA, vWoG = 12, 13, 14, 15
vFg = 248
SLOT = 40960
K = 1024
L_Q, L_PHI, L_V, L_WPHI, L_WPHI2, L_RELAY = 96 * K, 104 * K, 136 * K, 152 * K, 156 * K, 158 * K
L_WOA, L_WOB, L_XCH, L_STG = 0, 96 * K, 64 * K, 80 * K

A = Asm()
STAMPS = []


def stamp(name):
    if PROBE == name:
        A('s_memrealtime s[90:91]')
        A('s_waitcnt lgkmcnt(0)')
    if not OPT['stamps']:
        return
    if name not in STAMPS:
        STAMPS.append(name)
    i = STAMPS.index(name)
    A(f'''
    s_memrealtime s[{sStamp}:{sStamp + 1}]
    s_memtime s[94:95]
    s_waitcnt lgkmcnt(0)
    v_writelane_b32 v255, s{sStamp}, {i}
    v_writelane_b32 v255, s94, {i + 32}
    ''')


def spin(tag, srd_, addr, vaddr, vdst, preloaded=False):
    A(f's_mov_b32 s{sSpin}, {OPT["spin"]}')
    if preloaded:
        A(f's_branch L_chk_{tag}')
    A(f'''
    L_poll_{tag}:
    buffer_load_dword v{vdst}, v{vaddr}, {sr(srd_, 4)}, {addr} offen sc1
    s_sub_u32 s{sSpin}, s{sSpin}, 1
    s_waitcnt vmcnt(0)
    s_cmp_eq_u32 s{sSpin}, 0
    s_cbranch_scc1 L_pollx_{tag}
    L_chk_{tag}:
    v_cmp_ne_u32 vcc, 1, v{vdst}
    s_cbranch_vccnz L_poll_{tag}
    L_pollx_{tag}:
    ''')


def poll16(tag, addr):
    A('s_mov_b64 exec, 0xffff')
    spin(tag, sWS, addr, vFl, vFg)
    A('s_mov_b64 exec, -1')


def signal(addr):
    A(f'''
    s_mov_b64 exec, 1
    buffer_store_dword v{vOne}, v{vL}, {sr(sWS, 4)}, {addr} offen sc1
    s_mov_b64 exec, -1
    ''')


def guard(tag, cmp_, body):
    A(cmp_)
    A(f's_cbranch_scc0 L_g_{tag}')
    body()
    A(f'L_g_{tag}:')


def srd(d, base, nbytes):
    A(f'''
    s_mov_b32 s{d}, s{base}
    s_mov_b32 s{d + 1}, s{base + 1}
    s_mov_b32 s{d + 2}, {nbytes}
    s_mov_b32 s{d + 3}, 0x20000
    ''')


def cvt8(dst, src):
    for i in range(8):
        A(f'v_cvt_pk_bf16_f32 v{dst + i}, v{src + 2 * i}, v{src + 2 * i + 1}')


def features(tiles, part=3):
    if part & 1:
        A(f's_mov_b64 exec, {sr(sHi, 2)}')
        for X, Ep, En, t in tiles:
            for r in range(12, 16):
                A(f'v_mov_b32 v{X + r}, v{X + 11}')
        A('s_mov_b64 exec, -1')
        for X, Ep, En, t in tiles:
            A(f'v_max3_f32 v{t}, v{X}, v{X + 1}, v{X + 2}')
            A(f'v_max3_f32 v{t + 2}, -v{X}, -v{X + 1}, -v{X + 2}')
        for r in range(3, 15, 2):
            for X, Ep, En, t in tiles:
                A(f'v_max3_f32 v{t}, v{t}, v{X + r}, v{X + r + 1}')
                A(f'v_max3_f32 v{t + 2}, v{t + 2}, -v{X + r}, -v{X + r + 1}')
        for X, Ep, En, t in tiles:
            A(f'v_max_f32 v{t}, v{t}, v{X + 15}')
            A(f'v_max_f32_e64 v{t + 2}, v{t + 2}, -v{X + 15}')
        for X, Ep, En, t in tiles:
            A(f'v_permlane32_swap_b32 v{t}, v{t + 2}')
        for X, Ep, En, t in tiles:
            A(f'v_max_f32 v{t}, v{t}, v{t + 2}')
        for X, Ep, En, t in tiles:
            A(f'v_mul_f32_e64 v{t + 2}, -v{t}, s{sL}')
            A(f'v_mul_f32_e64 v{t}, -v{t}, s{sL}')
        for X, Ep, En, t in tiles:
            A(f'v_permlane32_swap_b32 v{t}, v{t + 2}')
        for X, Ep, En, t in tiles:
            for r in range(0, 16, 2):
                A(f'v_pk_fma_f32 {vr(Ep + r, 2)}, {vr(X + r, 2)}, {sr(sL, 2)}, {vr(t, 2)} op_sel_hi:[1,1,0]')
                A(f'v_pk_fma_f32 {vr(En + r, 2)}, {vr(X + r, 2)}, {sr(sL, 2)}, {vr(t + 2, 2)} op_sel_hi:[1,1,0] neg_lo:[1,0,0] neg_hi:[1,0,0]')
    if not part & 2:
        return
    for X, Ep, En, t in tiles:
        for r in range(16):
            A(f'v_exp_f32 v{Ep + r}, v{Ep + r}')
        for r in range(16):
            A(f'v_exp_f32 v{En + r}, v{En + r}')
    A(f's_mov_b64 exec, {sr(sHi, 2)}')
    for X, Ep, En, t in tiles:
        for r in range(12, 16):
            A(f'v_mov_b32 v{Ep + r}, 0')
            A(f'v_mov_b32 v{En + r}, 0')
    A('s_mov_b64 exec, -1')


def wphi_addr(d, t):
    A(f'''
    v_bfe_u32 v{t}, v{vL}, 2, 2
    v_lshl_add_u32 v{t}, v{vH}, 3, v{t}
    v_mul_u32_u24 v{d}, 56, v{t}
    v_bfe_u32 v{t}, v{vL}, 4, 1
    v_lshl_add_u32 v{d}, v{t}, 5, v{d}
    v_and_b32 v{t}, 3, v{vL}
    v_lshl_add_u32 v{d}, v{t}, 3, v{d}
    ''')


def common_setup():
    srd(sWS, 22, WS_END)
    srd(sDBG, 20, 256)
    srd(sPHI, 14, 16 * 1568)
    srd(sOUT, 18, 2048 * 1792)
    A(f'''
    s_mov_b32 s{sL}, {f32(LOG2E)}
    s_mov_b32 s{sL + 1}, {f32(LOG2E)}
    s_mov_b32 s{sHi}, 0
    s_mov_b32 s{sHi + 1}, -1
    s_lshr_b32 s{sH}, s{sJ}, 4
    s_lshl_b32 s{sT}, s{sXc}, 1
    s_add_u32 s{sH}, s{sH}, s{sT}
    s_and_b32 s{sRB}, s{sJ}, 15
    s_and_b32 s{sRT}, s{sWv}, 3
    s_lshr_b32 s{sHH}, s{sWv}, 2
    s_mul_i32 s{sFG}, s{sXc}, {FGRP}
    s_add_u32 s{sFG}, s{sFG}, {WS_FL}
    s_mul_i32 s{sT}, s{sJ}, 37
    s_lshr_b32 s{sT}, s{sT}, 8
    s_mul_i32 s{sT + 1}, s{sT}, 7
    s_sub_u32 s{sCB}, s{sJ}, s{sT + 1}
    s_lshl_b32 s{sRB64}, s{sXc}, 2
    s_add_u32 s{sRB64}, s{sRB64}, s{sT}
    v_lshlrev_b32 v{vLin}, 4, v{vL}
    v_lshrrev_b32 v{vH}, 5, v{vL}
    v_lshlrev_b32 v{vFl}, 7, v{vL}
    v_mov_b32 v{vOne}, 1
    ''')


def o_addr(br, s_rt):
    A(f'''
    v_bfe_u32 v{vT}, v{vL}, 4, 1
    v_and_b32 v{vOA}, 15, v{vL}
    v_lshlrev_b32 v{vOA}, 4, v{vOA}
    v_lshl_add_u32 v{vOA}, v{vT}, 10, v{vOA}
    v_lshl_add_u32 v{vOA}, v{vH}, 8, v{vOA}
    s_lshl_b32 s{sT + 6}, s{sRB}, 2
    s_add_u32 s{sT + 6}, s{sT + 6}, s{s_rt}
    s_lshl_b32 s{sT + 7}, s{sT + 6}, 4
    s_add_u32 s{sT + 7}, s{sT + 7}, s{sH}
    s_and_b32 s{sT + 8}, s{sT + 7}, 127
    s_lshl_b32 s{sT + 7}, s{sT + 7}, 11
    s_lshl_b32 s{sT + 8}, s{sT + 8}, 7
    s_lshr_b32 s{sT + 6}, s{sT + 6}, 3
    s_mul_i32 s{sT + 6}, s{sT + 6}, {FGRP}
    s_add_u32 s{sT + 8}, s{sT + 8}, s{sT + 6}
    s_add_u32 s{sT + 7}, s{sT + 7}, {WS_O + 0x200000 * br}
    s_add_u32 s{sT + 8}, s{sT + 8}, {WS_FL + F_O + 128 * 128 * br}
    ''')


vWa, vC, vOf, vWo, NPRE = 16, 24, 40, 104, 8
HROT = 8 * 28 * 128


def p3_addr(base):
    A(f'''
    v_bfe_u32 v{vT}, v{vL}, 2, 2                 ; r
    v_bfe_u32 v{vT + 1}, v{vL}, 4, 1             ; g&1
    v_and_b32 v{vT + 2}, 3, v{vL}
    v_lshlrev_b32 v{vT + 2}, 3, v{vT + 2}
    v_lshl_add_u32 v{vT + 2}, v{vT}, 7, v{vT + 2}
    v_lshl_add_u32 v{vT + 2}, v{vH}, 11, v{vT + 2}
    v_lshrrev_b32 v{vT}, 1, v{vT}
    v_lshl_add_u32 v{vT + 2}, v{vT}, 5, v{vT + 2}
    s_and_b32 s{sT}, s{sCB}, {OPT['hrot']}
    s_mul_i32 s{sT}, s{sT}, {HROT}
    s_add_u32 s{sT}, s{sT}, {base}
    v_add_u32 v{vT + 2}, s{sT}, v{vT + 2}
    v_mul_u32_u24 v{vT + 3}, 576, v{vT + 1}
    v_add_u32 v{vWa}, v{vT + 2}, v{vT + 3}
    v_mul_u32_u24 v{vT + 3}, v{vT + 3}, v{vH}
    v_sub_u32 v{vWa + 4}, v{vWa}, v{vT + 3}
    ''')
    for i in range(1, 4):
        A(f'v_xor_b32 v{vWa + i}, {32 * i}, v{vWa}')
        A(f'v_xor_b32 v{vWa + 4 + i}, {32 * i}, v{vWa + 4}')


def wo_reads(hd):
    G = vWo + 16 * hd
    for ct in range(4):
        for u in range(2):
            A(f'ds_read_b64_tr_b16 {vr(G + 4 * ct + 2 * u, 2)}, v{vWa + 4 * u + (ct ^ (2 * (hd & 1)))} offset:{(28 * hd + 8 * u) * 128}')


def wo_issue(srd_, lds_base, first, n):
    A(f's_mul_i32 s{sT + 3}, s{sRT}, {n * 1024}')
    A(f's_mul_i32 s{sT + 4}, s{sRT}, {n * 7168}')
    A(f's_lshl_b32 s{sT + 5}, s{sCB}, 7')
    A(f's_add_u32 s{sT + 4}, s{sT + 4}, s{sT + 5}')
    for i in range(n):
        if i % 4 == 0:
            A(f's_add_u32 m0, s{sT + 3}, {lds_base + (first + i) * 1024}')
        A(f's_add_u32 s{sT + 5}, s{sT + 4}, {(first + i) * 7168 - (i % 4) * 1024}')
        A(f'buffer_load_dwordx4 v{vWoG}, {sr(srd_, 4)}, s{sT + 5} offen offset:{(i % 4) * 1024} lds')


def kv_issue(c):
    for kh in range(2):
        A(f's_add_u32 m0, s{sM0}, {((c + 1) % 3) * 32768 + kh * 16384}')
        A(f's_add_u32 s{sT + 2}, s{sKVo}, {c * 16384 + kh * 131072}')
        for q in range(4):
            A(f'buffer_load_dwordx4 v{vLin}, {sr(sWS, 4)}, s{sT + 2} offen offset:{1024 * q} sc1 lds')


A(f'''
s_cmp_ge_u32 s2, 256
s_cbranch_scc1 L_end
s_load_dwordx16 s[4:19], s[0:1], 0
s_load_dwordx4 s[20:23], s[0:1], 64
''')
if OPT['stamps']:
    A('v_mov_b32 v255, 0')
if PROBE:
    A('s_memrealtime s[90:91]')
stamp('start')
A(f'''
v_lshrrev_b32 v{vT}, 6, v0
v_and_b32 v{vL}, 63, v0
v_readfirstlane_b32 s{sWv}, v{vT}
s_and_b32 s{sXc}, s2, 7
s_lshr_b32 s{sJ}, s2, 3
s_lshr_b32 s{sB}, s{sJ}, 4
s_and_b32 s{sT}, s{sXc}, 6
s_lshl_b32 s{sT}, s{sT}, 1
s_and_b32 s{sRB1}, s{sJ}, 3
s_add_u32 s{sRB1}, s{sRB1}, s{sT}
s_and_b32 s{sT}, s{sXc}, 1
s_cselect_b32 s{sJI}, 7, 4
s_lshl_b32 s{sT}, s{sT}, 2
s_bfe_u32 s{sCG}, s{sJ}, 0x20002
s_add_u32 s{sCG}, s{sCG}, s{sT}
s_lshr_b32 s{sT}, s{sJ}, 2
s_xor_b32 s{sJI}, s{sJI}, s{sT}
s_cmp_lt_u32 s{sWv}, 4
s_cbranch_scc1 L_comp
''')
vXg0, vXg1, vWg = 16, 17, 18
A(f'''
s_setprio 3
s_and_b32 s{sRT}, s{sWv}, 3
s_cmp_eq_u32 s{sB}, 0
s_cselect_b32 s{sT}, 3, 1
s_cselect_b32 s{sT + 1}, 1, 8
s_mul_i32 s{sT}, s{sT}, 112
s_mul_i32 s{sT + 1}, s{sT + 1}, 112
s_mul_i32 s{sWbase}, s{sCG}, s{sT}
v_lshrrev_b32 v{vT}, 3, v{vL}
v_mul_u32_u24 v{vT + 1}, 896, v{vT}
v_lshrrev_b32 v{vT + 2}, 4, v{vL}
v_and_b32 v{vT + 5}, 7, v{vL}
v_xor_b32 v{vT + 2}, v{vT + 2}, v{vT + 5}
v_lshl_add_u32 v{vXg0}, v{vT + 2}, 4, v{vT + 1}
v_xor_b32 v{vXg1}, 64, v{vXg0}
v_add_u32 v{vXg1}, {8 * 896 - 1024}, v{vXg1}
''')
for i in range(3):
    A(f'''
    v_add_u32 v{vT + 1}, {8 * i}, v{vT}
    v_mul_u32_u24 v{vT + 2}, 11, v{vT + 1}
    v_lshrrev_b32 v{vT + 2}, 5, v{vT + 2}
    v_mul_u32_u24 v{vT + 3}, 3, v{vT + 2}
    v_sub_u32 v{vT + 1}, v{vT + 1}, v{vT + 3}
    v_mul_u32_u24 v{vT + 1}, s{sT + 1}, v{vT + 1}
    v_bfrev_b32 v{vT + 3}, v{vT + 2}
    v_bfe_u32 v{vT + 3}, v{vT + 3}, 28, 3
    v_xor_b32 v{vT + 3}, v{vT + 3}, v{vT + 5}
    v_lshl_add_u32 v{vT + 1}, v{vT + 3}, 4, v{vT + 1}
    v_add_u32 v{vT + 3}, 1, v{vT + 3}
    v_and_b32 v{vT + 3}, 8, v{vT + 3}
    v_lshl_add_u32 v{vT + 1}, v{vT + 3}, 27, v{vT + 1}
    v_and_b32 v{vT + 3}, 4, v{vT + 2}
    v_add_u32 v{vT + 2}, v{vT + 2}, v{vT + 3}
    v_mul_u32_u24 v{vT + 2}, 2688, v{vT + 2}
    ''')
    if i:
        A(f'v_subrev_u32 v{vT + 2}, {1024 * i}, v{vT + 2}')
    A(f'v_add_u32 v{vWg + i}, v{vT + 2}, v{vT + 1}')
A(f'''
s_xor_b32 s{sPar}, s{sCG}, s{sRB1}
s_bfe_u32 s{sPar}, s{sPar}, {0x10001 if OPT['pair'] else 0x1001f}
{f's_andn2_b32 s{sPar}, s{sPar}, s{sB}' if OPT['pair'] == 2 else ''}
s_mov_b32 s{sKC}, s{sPar}
s_lshl_b32 s{sT + 4}, s{sRT}, 1
s_and_b32 s{sT}, s{sCG}, {OPT['half']}
s_cselect_b32 s{sT + 7}, -1, 1
s_add_u32 s{sT + 4}, s{sT + 4}, s{sT}
s_lshl_b32 s{sT}, s{sRB1}, 3
s_add_u32 s{sT}, s{sT}, s{sT + 4}
s_mul_i32 s{sXbase}, s{sT}, {16 * 896}
s_lshl_b32 s{sT + 4}, s{sT + 4}, 11
s_mul_i32 s{sT + 7}, s{sT + 7}, {16 * 896}
s_xor_b32 s{sT + 6}, s{sT + 4}, 2048
s_lshl_b32 s{sT + 5}, s{sRT}, 1
s_and_b32 s{sT}, s{sRB1}, {OPT['half']}
s_cselect_b32 s{sT + 8}, -1, 1
s_add_u32 s{sT + 5}, s{sT + 5}, s{sT}
s_lshl_b32 s{sT + 9}, s{sRT}, 2
s_add_u32 s{sT}, s{sT}, s{sT + 9}
s_mul_i32 s{sT}, s{sT}, {4 * 2688}
s_add_u32 s{sWbase}, s{sWbase}, s{sT}
s_add_u32 s{sT + 9}, s{sT + 5}, s{sT + 8}
s_mul_i32 s{sT + 8}, s{sT + 8}, {4 * 2688}
s_mul_i32 s{sT + 5}, s{sT + 5}, 3072
s_mul_i32 s{sT + 9}, s{sT + 9}, 3072
s_add_u32 s{sT + 5}, s{sT + 5}, 16384
s_add_u32 s{sT + 9}, s{sT + 9}, 16384
s_mov_b32 s{sSlot}, 0
s_mov_b32 s{sC}, 0
s_mov_b32 s{sX + 2}, {2048 * 896}
s_mov_b32 s{sX + 3}, 0x20000
s_mov_b32 s{sW + 2}, {448 * 2688}
s_mov_b32 s{sW + 3}, 0x20000
s_waitcnt lgkmcnt(0)
s_cmp_eq_u32 s{sB}, 0
s_cselect_b32 s{sX}, s4, s10
s_cselect_b32 s{sX + 1}, s5, s11
s_cselect_b32 s{sW}, s6, s12
s_cselect_b32 s{sW + 1}, s7, s13
s_cmp_eq_u32 s{sJI}, 0
s_cbranch_scc1 L_zero
L_ld:
s_lshl_b32 s{sXo}, s{sKC}, 7
s_add_u32 m0, s{sSlot}, s{sT + 4}
s_add_u32 s{sXo}, s{sXo}, s{sXbase}
buffer_load_dwordx4 v{vXg0}, {sr(sX, 4)}, s{sXo} offen lds
buffer_load_dwordx4 v{vXg1}, {sr(sX, 4)}, s{sXo} offen offset:1024 lds
s_mul_i32 s{sWo}, s{sKC}, {64 * 2688}
s_add_u32 m0, s{sSlot}, s{sT + 5}
s_add_u32 s{sWo}, s{sWo}, s{sWbase}
buffer_load_dwordx4 v{vWg}, {sr(sW, 4)}, s{sWo} offen lds
buffer_load_dwordx4 v{vWg + 1}, {sr(sW, 4)}, s{sWo} offen offset:1024 lds
buffer_load_dwordx4 v{vWg + 2}, {sr(sW, 4)}, s{sWo} offen offset:2048 lds
s_add_u32 m0, s{sSlot}, s{sT + 6}
s_add_u32 s{sXo}, s{sXo}, s{sT + 7}
buffer_load_dwordx4 v{vXg0}, {sr(sX, 4)}, s{sXo} offen lds
buffer_load_dwordx4 v{vXg1}, {sr(sX, 4)}, s{sXo} offen offset:1024 lds
s_add_u32 m0, s{sSlot}, s{sT + 9}
s_add_u32 s{sWo}, s{sWo}, s{sT + 8}
s_cmp_eq_u32 s{sC}, 0
s_cbranch_scc1 L_ldb
s_waitcnt vmcnt(7)
s_barrier
L_ldb:
buffer_load_dwordx4 v{vWg}, {sr(sW, 4)}, s{sWo} offen lds
buffer_load_dwordx4 v{vWg + 1}, {sr(sW, 4)}, s{sWo} offen offset:1024 lds
buffer_load_dwordx4 v{vWg + 2}, {sr(sW, 4)}, s{sWo} offen offset:2048 lds
s_add_u32 s{sSlot}, s{sSlot}, {SLOT}
s_cmp_eq_u32 s{sSlot}, {3 * SLOT}
s_cselect_b32 s{sSlot}, 0, s{sSlot}
s_add_u32 s{sC}, s{sC}, 1
s_xor_b32 s{sKC}, s{sC}, s{sPar}
s_min_u32 s{sKC}, s{sKC}, 6
s_cmp_lt_u32 s{sC}, 7
s_cbranch_scc1 L_ld
s_branch L_ld1
L_zero:
''')
srd(sWS, 22, WS_END)
A(f'''
s_mul_i32 s{sT}, s{sXc}, {FGRP}
s_and_b32 s{sT + 1}, s{sJ}, 3
s_lshl_b32 s{sT + 1}, s{sT + 1}, 2
s_add_u32 s{sT + 1}, s{sT + 1}, s{sRT}
s_mul_i32 s{sT + 1}, s{sT + 1}, 3072
s_add_u32 s{sT}, s{sT}, s{sT + 1}
s_add_u32 s{sT}, s{sT}, {WS_FL}
v_lshlrev_b32 v{vLin}, 4, v{vL}
v_mov_b32 v{vT}, 0
v_mov_b32 v{vT + 1}, 0
v_mov_b32 v{vT + 2}, 0
v_mov_b32 v{vT + 3}, 0
buffer_store_dwordx4 {vr(vT, 4)}, v{vLin}, {sr(sWS, 4)}, s{sT} offen sc1
buffer_store_dwordx4 {vr(vT, 4)}, v{vLin}, {sr(sWS, 4)}, s{sT} offen offset:1024 sc1
buffer_store_dwordx4 {vr(vT, 4)}, v{vLin}, {sr(sWS, 4)}, s{sT} offen offset:2048 sc1
s_branch L_ld
L_ld1:
''')
common_setup()
srd(sWOA, 8, 448 * 896)
srd(sWOB, 16, 448 * 896)
A(f'''
s_cmp_lt_u32 s{sRT}, 2
s_cbranch_scc0 L_ld2
s_lshl_b32 s{sT + 1}, s{sRT}, 10
s_add_u32 m0, s{sT + 1}, {L_WPHI2}
s_mul_i32 s{sT + 2}, s{sH}, 1568
s_add_u32 s{sT + 2}, s{sT + 2}, s{sT + 1}
buffer_load_dwordx4 v{vLin}, {sr(sPHI, 4)}, s{sT + 2} offen lds
s_cmp_eq_u32 s{sWv}, 4
s_cbranch_scc0 L_ld2
v_lshlrev_b32 v{vT + 1}, 2, v{vL}
s_mov_b32 exec_hi, 0
''')
spin('init', sDBG, '0', vT + 1, vT)
A(f'''
s_mov_b64 exec, -1
L_ld2:
s_waitcnt vmcnt(0)
s_barrier
s_lshr_b32 s{sT}, s{sRT}, 1
s_lshl_b32 s{sT + 1}, s{sJ}, 1
s_add_u32 s{sT}, s{sT}, s{sT + 1}
s_mul_i32 s{sT}, s{sT}, {49 * 128}
s_mov_b32 exec_hi, 0x1ffff
s_bitcmp1_b32 s{sRT}, 0
s_cbranch_scc1 L_wpf1
buffer_load_dword v{vFg}, v{vFl}, {sr(sWOA, 4)}, s{sT} offen
s_branch L_wpf2
L_wpf1:
buffer_load_dword v{vFg}, v{vFl}, {sr(sWOB, 4)}, s{sT} offen
L_wpf2:
s_mov_b32 exec_hi, -1
v_lshrrev_b32 v{vT}, 3, v{vL}
v_mul_u32_u24 v{vT}, 896, v{vT}
v_lshrrev_b32 v{vT + 1}, 4, v{vL}
v_lshlrev_b32 v{vT + 1}, 1, v{vT + 1}
v_and_b32 v{vT + 2}, 7, v{vL}
v_xor_b32 v{vT + 1}, v{vT + 1}, v{vT + 2}
v_lshl_add_u32 v{vWoG}, v{vT + 1}, 4, v{vT}
s_lshl_b32 s{sT}, s{sH}, 6
s_add_u32 s{sT}, s{sT}, s{sRT}
s_lshl_b32 s{sKVo}, s{sT}, 12
s_add_u32 s{sKVo}, s{sKVo}, {WS_KV}
s_lshl_b32 s{sT + 1}, s{sRB}, 2
s_add_u32 s{sT + 9}, s{sT + 1}, s{sT}
s_lshl_b32 s{sT + 9}, s{sT + 9}, 11
s_lshl_b32 s{sM0}, s{sRT}, 12
''')
vEp, vEn, vNp, vNn, vQB, vWF2, vKVF, vSl, vSlA, vIdxS = 32, 48, 64, 80, 96, 24, 104, 120, 249, 250
vX2 = 152
vKa, vKb, vKc = 128, 160, 192
p3_addr(L_WOB)
o_addr(1, sRT)
wphi_addr(vT + 4, vT + 3)
A(f'''
v_add_u32 v{vT + 4}, {L_WPHI2}, v{vT + 4}
v_bfe_u32 v{vT}, v{vL}, 1, 1
v_and_b32 v{vT + 1}, 1, v{vL}
v_lshrrev_b32 v{vSlA}, 2, v{vL}
v_lshlrev_b32 v{vSlA}, 4, v{vSlA}
v_lshl_add_u32 v{vSlA}, v{vT}, 10, v{vSlA}
v_lshl_add_u32 v{vSlA}, v{vT + 1}, 3, v{vSlA}
v_mov_b32 v{vIdxS}, 0xdddddddd
v_bfe_u32 v{vT}, v{vL}, 2, 2
v_lshl_add_u32 v{vT + 1}, v{vH}, 3, v{vT}      ; 8h + r
v_lshrrev_b32 v{vT + 2}, 1, v{vT}              ; r>>1
v_bfe_u32 v{vT + 3}, v{vL}, 4, 1
v_and_b32 v{vT}, 2, v{vL}
v_or_b32 v{vT + 3}, v{vT + 3}, v{vT}           ; 2*a1 + a2
v_xor_b32 v{vT + 2}, v{vT + 2}, v{vT + 3}
v_lshlrev_b32 v{vT + 2}, 4, v{vT + 2}
v_lshl_add_u32 v{vT + 1}, v{vT + 1}, 6, v{vT + 2}
v_and_b32 v{vT}, 1, v{vL}
v_lshl_add_u32 v{vT + 1}, v{vT}, 3, v{vT + 1}
s_lshl_b32 s{sT}, s{sRT}, 13
s_add_u32 s{sT}, s{sT}, {L_PHI}
v_add_u32 v{vT + 1}, s{sT}, v{vT + 1}
s_lshr_b32 s{sT + 2}, s{sRT}, 1
s_lshl_b32 s{sT}, s{sT + 2}, 13
s_add_u32 s{sT}, s{sT}, {L_V}
v_add_u32 v{vT + 2}, s{sT}, v{vLin}
v_xor_b32 v{vT + 3}, 32, v{vT + 1}
''')
for r in range(32):
    A(f'v_mov_b32 v{vNp + r}, 0')
for q in range(4):
    A(f'ds_read_b64_tr_b16 {vr(vWF2 + 2 * q, 2)}, v{vT + 4} offset:{(16 * (q & 1) + 4 * (q >> 1)) * 56}')
A('''
s_barrier
s_waitcnt lgkmcnt(0)
s_barrier
''')


def kv_reads(st):
    row = 32 * (st >> 1) + 4 * (st & 1)
    A(f'ds_read_b64_tr_b16 {vr(vKa + 4 * st, 2)}, v{vT + 1 + 2 * (st & 1)} offset:{row * 64}')
    A(f'ds_read_b64_tr_b16 {vr(vKa + 4 * st + 2, 2)}, v{vT + 1 + 2 * (st & 1)} offset:{(row + 16) * 64}')
    A(f'ds_read_b128 {vr(vKb + 4 * st, 4)}, v{vT + 2} offset:{st * 1024}')


def b():
    for st in range(4):
        kv_reads(st)
    for st in range(8):
        A(f's_waitcnt lgkmcnt({min(9, 3 * (7 - st))})')
        A(f'v_mfma_f32_32x32x16_bf16 {vr(vKc, 16)}, {vr(vKa + 4 * st, 4)}, {vr(vKb + 4 * st, 4)}, {vr(vKc, 16) if st else 0}')
        if st + 4 < 8:
            kv_reads(st + 4)
    A(f'''
    s_lshl_b32 s{sT}, s{sCG}, 1
    s_add_u32 s{sT}, s{sT}, s{sT + 2}
    s_lshl_b32 s{sT}, s{sT}, 4
    s_add_u32 s{sT}, s{sT}, s{sRB1}
    s_lshl_b32 s{sT}, s{sT}, 1
    s_and_b32 s{sT + 1}, s{sRT}, 1
    s_add_u32 s{sT}, s{sT}, s{sT + 1}
    s_lshl_b32 s{sT}, s{sT}, 12
    s_add_u32 s{sT}, s{sT}, {WS_KVP}
    ''')
    for q in range(4):
        A(f'buffer_store_dwordx4 {vr(vKc + 4 * q, 4)}, v{vLin}, {sr(sWS, 4)}, s{sT} offen offset:{1024 * q} sc1')


guard('kvst', f's_cmp_eq_u32 s{sB}, 1', b)
A(f'''
v_mov_b32 v{vT + 1}, {L_RELAY}
s_cmp_eq_u32 s{sWv}, 4
s_cbranch_scc0 L_relay
s_lshl_b32 s{sT + 1}, 1, s{sRB}
s_or_b32 exec_lo, s{sT + 1}, 0xffff0000
s_mov_b32 exec_hi, 0xffff
''')
spin('s1', sWS, f's{sFG}', vFl, vT)
A(f'''
s_mov_b64 exec, -1
ds_write_b32 v{vT + 1}, v{vOne}
s_branch L_go
L_relay:
s_mov_b32 s{sSpin}, {OPT['spin'] * 16}
L_relay1:
ds_read_b32 v{vT}, v{vT + 1}
s_sub_u32 s{sSpin}, s{sSpin}, 1
s_waitcnt lgkmcnt(0)
s_cmp_eq_u32 s{sSpin}, 0
s_cbranch_scc1 L_go
v_cmp_ne_u32 vcc, 1, v{vT}
s_cbranch_vccnz L_relay1
L_go:
''')
stamp('s1_seen')
A(f'''
s_lshl_b32 s{sT}, s{sRT}, 11
s_add_u32 m0, s{sT}, {L_Q}
s_nop 0
buffer_load_dwordx4 v{vLin}, {sr(sWS, 4)}, s{sT + 9} offen sc1 lds
buffer_load_dwordx4 v{vLin}, {sr(sWS, 4)}, s{sT + 9} offen offset:1024 sc1 lds
''')
kv_issue(0)
kv_issue(1)
A(f'''
s_waitcnt vmcnt(8)
s_barrier
''')


def fs(name):
    if OPT['fine'] == 3:
        stamp(name)


def nxt(k):
    fs(f'{k - 1}z')
    A('s_barrier')
    fs(f'{k}a')
    A('s_waitcnt vmcnt(0)')


W4 = f's_cmp_eq_u32 s{sRT}, 0'


def b():
    A(f'''
    s_mul_i32 s{sT}, s{sCG}, {FGRP}
    s_lshl_b32 s{sT + 1}, s{sRB1}, 7
    s_add_u32 s{sT}, s{sT}, s{sT + 1}
    s_add_u32 s{sT}, s{sT}, {WS_FL + F_B}
    ''')
    signal(f's{sT}')


guard('sfb', f's_cmp_lt_u32 s{sRT}, s{sB}', b)
kv_issue(2)
wo_issue(sWOB, L_WOB, 28, 7)
A('s_waitcnt vmcnt(15)')
nxt(1)
kv_issue(3)
A(f's_add_u32 s{sT}, s{sFG}, {F_B}')
poll16('fb', f's{sT}')
A(f'''
s_add_u32 s{sT}, s{sT + 9}, {WS_QB}
buffer_load_dwordx4 {vr(vQB, 4)}, v{vLin}, {sr(sWS, 4)}, s{sT} offen sc1
buffer_load_dwordx4 {vr(vQB + 4, 4)}, v{vLin}, {sr(sWS, 4)}, s{sT} offen offset:1024 sc1
''')


def b():
    A(f'''
    s_lshr_b32 s{sT}, s{sRB}, 2
    s_lshl_b32 s{sT}, s{sT}, 11
    s_and_b32 s{sT + 1}, s{sRB}, 3
    s_lshl_b32 s{sT + 1}, s{sT + 1}, 8
    s_add_u32 s{sT}, s{sT}, s{sT + 1}
    s_lshl_b32 s{sT + 1}, s{sH}, 17
    s_add_u32 s{sT}, s{sT}, s{sT + 1}
    s_add_u32 s{sT}, s{sT}, {WS_KVP}
    ''')
    for p in range(16):
        A(f'buffer_load_dwordx2 {vr(vSl + 2 * p, 2)}, v{vSlA}, {sr(sWS, 4)}, s{sT} offen sc1')
        if p < 15:
            A(f's_add_u32 s{sT}, s{sT}, 8192')


guard('sl1', W4, b)
nxt(2)
A(f'v_mfma_f32_32x32x16_bf16 {vr(vX2, 16)}, {vr(vWF2, 4)}, {vr(vQB, 4)}, 0')
A(f'v_mfma_f32_32x32x16_bf16 {vr(vX2, 16)}, {vr(vWF2 + 4, 4)}, {vr(vQB + 4, 4)}, {vr(vX2, 16)}')


def b():
    n = 8
    while n:
        for p in range(n):
            A(f'v_pk_add_f32 {vr(vSl + 2 * p, 2)}, {vr(vSl + 2 * p, 2)}, {vr(vSl + 2 * (p + n), 2)}')
        n //= 2
    A(f'''
    s_lshl_b32 s{sT}, s{sH}, 4
    s_add_u32 s{sT}, s{sT}, s{sRB}
    s_lshl_b32 s{sT}, s{sT}, 8
    s_add_u32 s{sT}, s{sT}, {WS_KVF}
    v_cvt_pk_bf16_f32 v{vSl}, v{vSl}, v{vSl + 1}
    v_lshlrev_b32 v{vSlA}, 2, v{vL}
    s_bitcmp1_b32 s{sRB}, 0
    s_cselect_b32 exec_hi, 0x00f00000, 0
    s_mov_b32 exec_lo, 0
    v_mov_b32 v{vSl}, 0x3f803f80
    s_mov_b64 exec, -1
    buffer_store_dword v{vSl}, v{vSlA}, {sr(sWS, 4)}, s{sT} offen sc1
    ''')


guard('sl2', W4, b)
kv_issue(4)
nxt(3)


def b():
    A(f'''
    s_lshl_b32 s{sT}, s{sJ}, 7
    s_add_u32 s{sT}, s{sT}, s{sFG}
    s_add_u32 s{sT}, s{sT}, {F_K}
    ''')
    signal(f's{sT}')


guard('sfk', W4, b)
kv_issue(5)
features([(vX2, vEp, vEn, vT + 4)], 1)
wo_issue(sWOB, L_WOB, 0, 7)
nxt(4)
kv_issue(6)
A(f'''
s_and_b32 s{sT}, s{sJ}, 16
s_lshl_b32 s{sT}, s{sT}, 7
s_add_u32 s{sT}, s{sT}, s{sFG}
s_add_u32 s{sT}, s{sT}, {F_K}
s_mov_b64 exec, 0xffff
buffer_load_dword v{vFg}, v{vFl}, {sr(sWS, 4)}, s{sT} offen sc1
s_mov_b64 exec, -1
''')
features([(vX2, vEp, vEn, vT + 4)], 2)
A('s_waitcnt vmcnt(0)')
A('s_mov_b64 exec, 0xffff')
spin('fk', sWS, f's{sT}', vFl, vFg, preloaded=True)
A('s_mov_b64 exec, -1')
A(f's_lshl_b32 s{sT}, s{sH}, 12')
A(f's_add_u32 s{sT}, s{sT}, {WS_KVF}')
for q in range(4):
    A(f'buffer_load_dwordx4 {vr(vKVF + 4 * q, 4)}, v{vLin}, {sr(sWS, 4)}, s{sT} offen offset:{1024 * q} sc1')
nxt(5)
for m in range(2):
    A(f'v_smfmac_f32_32x32x32_bf16 {vr(vNp, 16)}, {vr(vKVF + 4 * m, 4)}, {vr(vEp + 8 * m, 8)}, v{vIdxS}')
for m in range(2):
    A(f'v_smfmac_f32_32x32x32_bf16 {vr(vNn, 16)}, {vr(vKVF + 8 + 4 * m, 4)}, {vr(vEn + 8 * m, 8)}, v{vIdxS}')
kv_issue(7)
ap, an = vT + 4, vT + 6
A(f'''
v_mov_b32 v{vT}, {f32(1e-6)}
v_rcp_f32 v{ap}, v{vNp + 13}
v_rcp_f32 v{an}, v{vNn + 13}
v_fmac_f32 v{vT}, v{vNp + 12}, v{ap}
v_fmac_f32 v{vT}, v{vNn + 12}, v{an}
v_rcp_f32 v{vT}, v{vT}
v_mul_f32 v{ap}, v{ap}, v{vT}
v_mul_f32 v{an}, v{an}, v{vT}
v_mov_b32 v{vT}, v{ap}
v_mov_b32 v{vT + 1}, v{an}
v_permlane32_swap_b32 v{vT}, v{ap}
v_permlane32_swap_b32 v{vT + 1}, v{an}
''')
for r in range(0, 16, 2):
    A(f'v_pk_mul_f32 {vr(vNp + r, 2)}, {vr(vNp + r, 2)}, {vr(ap, 2)} op_sel_hi:[1,0]')
for r in range(0, 16, 2):
    A(f'v_pk_fma_f32 {vr(vNp + r, 2)}, {vr(vNn + r, 2)}, {vr(an, 2)}, {vr(vNp + r, 2)} op_sel_hi:[1,0,1]')
cvt8(vEn, vNp)
A(f'''
s_mov_b64 exec, {sr(sHi, 2)}
v_mov_b32 v{vEn + 6}, 0
v_mov_b32 v{vEn + 7}, 0
s_mov_b64 exec, -1
buffer_store_dwordx4 {vr(vEn, 4)}, v{vOA}, {sr(sWS, 4)}, s{sT + 7} offen sc1
buffer_store_dwordx4 {vr(vEn + 4, 4)}, v{vOA}, {sr(sWS, 4)}, s{sT + 7} offen offset:512 sc1
''')
nxt(6)
signal(f's{sT + 8}')
stamp('o_sig')
wo_issue(sWOA, L_WOA, 0, 8)
A('s_setprio 0')
if OPT['pre']:
    for hd in range(NPRE // 2):
        wo_reads(hd)
        A('s_waitcnt lgkmcnt(0)')
nxt(7)
wo_issue(sWOA, L_WOA, 32, 6)
if OPT['pre']:
    for hd in range(NPRE // 2, NPRE):
        wo_reads(hd)
        A('s_waitcnt lgkmcnt(0)')
A(f'''
s_waitcnt vmcnt(0)
s_barrier
s_cmp_lt_u32 s{sJ}, 28
s_cbranch_scc1 L_p3
s_branch L_fin
''')

if OPT.get('pad'):
    A(f'.fill {OPT["pad"] // 4}, 4, 0xbf800000')
vXl, vWl = 16, 18
vFA, vFB = 24, 160
vAcc = 64
A(f'''
L_comp:
s_and_b32 s{sRH}, s{sWv}, 1
s_lshr_b32 s{sH1}, s{sWv}, 1
s_mov_b32 s{sOnesM}, 0x10001000
s_mov_b32 s{sOnesM + 1}, 0x10001000
s_waitcnt lgkmcnt(0)
''')
common_setup()
A(f'''
s_cmp_eq_u32 s{sB}, 0
s_cbranch_scc1 L_nophi
s_lshl_b32 s{sT}, s{sWv}, 10
s_add_u32 m0, s{sT}, {L_WPHI}
s_mul_i32 s{sT + 1}, s{sCG}, 3136
s_add_u32 s{sT}, s{sT}, s{sT + 1}
buffer_load_dwordx4 v{vLin}, {sr(sPHI, 4)}, s{sT} offen lds
L_nophi:
s_cmp_eq_u32 s{sWv}, 1
s_cbranch_scc0 L_nopf
s_getpc_b64 s[{sT}:{sT + 1}]
L_pc:
s_sub_u32 s{sT}, s{sT}, L_pc-L_ld
s_subb_u32 s{sT + 1}, s{sT + 1}, 0
s_lshl_b32 s{sT + 2}, s{sJ}, 10
s_cmp_lt_u32 s{sT + 2}, L_end-L_ld
s_cbranch_scc0 L_nopf
s_add_u32 s{sT}, s{sT}, s{sT + 2}
s_addc_u32 s{sT + 1}, s{sT + 1}, 0
global_load_dword v{vFg}, v{vLin}, s[{sT}:{sT + 1}]
L_nopf:
s_cmp_eq_u32 s{sWv}, 0
s_cbranch_scc0 L_noinit
v_mov_b32 v{vT}, 0
v_lshlrev_b32 v{vT + 1}, 2, v{vL}
v_add_u32 v{vT + 1}, {L_RELAY}, v{vT + 1}
ds_write_b32 v{vT + 1}, v{vT}
L_noinit:
v_and_b32 v{vT}, 15, v{vL}
v_lshrrev_b32 v{vT + 4}, 4, v{vL}              ; g
v_bfe_u32 v{vT + 1}, v{vL}, 1, 3
v_xor_b32 v{vT + 1}, v{vT + 1}, v{vT + 4}
v_lshlrev_b32 v{vT + 1}, 4, v{vT + 1}
s_lshl_b32 s{sT}, s{sRH}, 6
v_add_u32 v{vT}, s{sT}, v{vT}
v_lshl_add_u32 v{vXl}, v{vT}, 7, v{vT + 1}
v_xor_b32 v{vXl + 1}, 64, v{vXl}
v_bfe_u32 v{vT}, v{vL}, 2, 3                   ; 4*(g&1) + r
v_lshl_add_u32 v{vT + 1}, v{vH}, 4, v{vT}
v_mul_u32_u24 v{vT + 1}, 384, v{vT + 1}
v_and_b32 v{vT + 2}, 8, v{vL}                  ; 8*(r>>1)
v_and_b32 v{vT}, 4, v{vT}
v_or_b32 v{vT}, v{vT}, v{vT + 2}
v_and_b32 v{vT + 2}, 3, v{vL}                  ; c
v_add_u32 v{vT + 5}, 5, v{vT + 2}
v_and_b32 v{vT + 5}, 8, v{vT + 5}
''')
for i in range(3):
    A(f'''
    s_mul_i32 s{sT}, s{sH1}, 3
    s_add_u32 s{sT}, s{sT}, {i}
    s_add_u32 s{sT + 1}, s{sH1}, {2 * i}
    s_cmp_eq_u32 s{sB}, 0
    s_cselect_b32 s{sT}, s{sT}, s{sT + 1}
    s_and_b32 s{sT + 1}, s{sT}, 1
    s_lshr_b32 s{sT}, s{sT}, 1
    s_lshl_b32 s{sT}, s{sT}, 7
    s_add_u32 s{sT}, s{sT}, 16384
    s_xor_b32 s{sT + 2}, s{sT + 1}, 1
    s_mul_i32 s{sT + 1}, s{sT + 1}, 7
    v_add_u32 v{vT + 6}, s{sT}, v{vT + 1}
    v_add_u32 v{vT + 3}, s{sT + 1}, v{vT + 2}
    v_mad_u32_u24 v{vT + 4}, v{vT + 5}, s{sT + 2}, v{vT + 3}
    v_add_u32 v{vT + 4}, 4, v{vT + 4}
    v_xor_b32 v{vT + 3}, v{vT + 3}, v{vT}
    v_xor_b32 v{vT + 4}, v{vT + 4}, v{vT}
    v_lshl_add_u32 v{vWl + 2 * i}, v{vT + 3}, 3, v{vT + 6}
    v_lshl_add_u32 v{vWl + 2 * i + 1}, v{vT + 4}, 3, v{vT + 6}
    ''')
A(f'''
s_lshl_b32 s{sT + 8}, s{sCG}, 1
s_add_u32 s{sT + 8}, s{sT + 8}, s{sH1}
''')
for i in range(3):
    A(f'''
    s_mul_i32 s{sT}, s{sT + 8}, 3
    s_add_u32 s{sT}, s{sT}, {i}
    s_lshr_b32 s{sT}, s{sT}, 4
    s_cmp_eq_u32 s{sB}, 0
    s_cselect_b32 s{sT}, s{sT}, {i & 2}
    v_mov_b32 v{vT}, 0
    v_mov_b32 v{vT + 1}, 0
    s_cmp_eq_u32 s{sT}, 2
    s_cselect_b64 exec, {sr(sOnesM, 2)}, 0
    v_mov_b32 v{vT}, 1.0
    s_cmp_eq_u32 s{sT}, 1
    s_cselect_b32 exec_hi, 0xffff0000, 0
    s_mov_b32 exec_lo, 0
    v_mov_b32 v{vT + 1}, 1.0
    s_mov_b64 exec, -1
    v_or_b32 v{vT + 2}, v{vT}, v{vT + 1}
    ''')
    for r in range(32):
        quad, e = (r >> 2) & 3, r & 3
        src = ['0', f'v{vT + 1}' if e < 3 else '0', f'v{vT}', f'v{vT + 2}' if e < 3 else f'v{vT}'][quad]
        A(f'v_mov_b32 v{vAcc + 32 * i + r}, {src}')


def p1_read_list(s, F):
    x = [f'ds_read_b128 {vr(F + 4 * rg, 4)}, v{vXl + s} offset:{2048 * rg}' for rg in range(4)]
    w = [f'ds_read_b64_tr_b16 {vr(F + 16 + 4 * i + 2 * u, 2)}, v{vWl + i} offset:{(32 * s + 8 * u) * 384}'
         for i in range(6) for u in range(2)]
    return w[:2] + x + w[2:]


def p1_step(F, var, reads, extra=()):
    fill = [[r] for r in reads]
    extra = list(extra)
    fill += [extra[i:i + 2] for i in range(0, len(extra), 2)]
    n = 0
    for i in range(3):
        for ch in range(2):
            for rg in range(4):
                w, x = vr(F + 16 + 8 * i + 4 * ch, 4), vr(F + 4 * rg, 4)
                quad = 2 * (rg & 1) + ch if var[i] == 'T' else 2 * ch + (rg & 1)
                acc = vr(vAcc + 32 * i + 16 * (rg >> 1) + 4 * quad, 4)
                p, q = (w, x) if var[i] == 'T' else (x, w)
                A(f'v_mfma_f32_16x16x32_bf16 {acc}, {p}, {q}, {acc}')
                if n < len(fill):
                    for r in fill[n]:
                        A(r)
                n += 1


A(f'''
s_mov_b32 s{sC}, 0
s_mov_b32 s{sSlot}, 0
s_cmp_eq_u32 s{sB}, 0
s_cselect_b32 s{sT + 4}, s{sT + 8}, 10
s_mov_b32 s{sT}, {SLOT}
s_mov_b32 s{sT + 2}, {SLOT}
s_mov_b32 s{sT + 3}, {-2 * SLOT & 0xffffffff}
s_waitcnt lgkmcnt(0)
s_barrier
''')
stamp('p1_first')
for r in p1_read_list(0, vFA):
    A(r)
A(f'''
s_or_b32 s{sT + 1}, s{sJI}, s{sWv}
s_cbranch_scc1 L_nosig0
s_and_b32 s{sT + 1}, s2, 31
s_lshl_b32 s{sT + 1}, s{sT + 1}, 2
s_mov_b64 exec, 1
buffer_store_dword v{vOne}, v{vL}, {sr(sDBG, 4)}, s{sT + 1} offen sc1
s_mov_b64 exec, -1
L_nosig0:
s_cmp_eq_u32 s{sT + 4}, 10
s_cbranch_scc1 L_p1_TTN
s_cmp_gt_u32 s{sT + 4}, 10
s_cbranch_scc1 L_p1_NNN
''')
for var in ('TTT', 'TTN', 'NNN'):
    A('.p2align 3')
    A(f'L_p1_{var}:')
    if OPT['fine'] == 4:
        if 'c0' not in STAMPS:
            STAMPS.extend(f'c{c}' for c in range(7))
        A(f'''
        s_memrealtime s[{sStamp}:{sStamp + 1}]
        s_memtime s[94:95]
        s_add_u32 m0, s{sC}, {STAMPS.index('c0')}
        s_waitcnt lgkmcnt(0)
        v_writelane_b32 v255, s{sStamp}, m0
        s_add_u32 m0, m0, 32
        s_nop 0
        v_writelane_b32 v255, s94, m0
        .p2align 3
        ''')
    A('s_waitcnt lgkmcnt(0)')
    A(f's_add_u32 s{sC}, s{sC}, 1')
    p1_step(vFA, var, p1_read_list(1, vFB), [f'v_add_u32 v{vXl + i}, s{sT}, v{vXl + i}' for i in range(8)])
    A('s_waitcnt lgkmcnt(0)')
    A('s_barrier')
    p1_step(vFB, var, p1_read_list(0, vFA),
            [f's_add_u32 s{sSlot}, s{sSlot}, 1', f's_cmp_eq_u32 s{sSlot}, 2', f's_cselect_b32 s{sSlot}, -1, s{sSlot}',
             f's_cselect_b32 s{sT}, s{sT + 3}, s{sT + 2}'])
    A(f's_cmp_eq_u32 s{sC}, 4')
    A(f's_cbranch_scc1 L_p1h_{var}')
    A(f's_cmp_lt_u32 s{sC}, 7')
    A(f's_cbranch_scc1 L_p1_{var}')
    A('s_branch L_p1_done')
    A(f'''
    L_p1h_{var}:
    s_waitcnt vmcnt(0)
    s_branch L_p1_{var}
    ''')
vU = 200
vUn = vU + 6
A('L_p1_done:')
stamp('p1_done')
A(f'''
s_lshl_b32 s{sT + 4}, s{sRB1}, 1
s_add_u32 s{sT + 4}, s{sT + 4}, s{sRH}
s_lshl_b32 s{sT + 4}, s{sT + 4}, 1
v_and_b32 v{vU + 6}, 15, v{vL}
v_lshlrev_b32 v{vU + 6}, 4, v{vU + 6}
v_bfe_u32 v{vU + 7}, v{vL}, 4, 1
v_lshl_add_u32 v{vU + 6}, v{vU + 7}, 10, v{vU + 6}
v_lshl_add_u32 v{vU + 6}, v{vH}, 9, v{vU + 6}
s_waitcnt lgkmcnt(0)
s_cmp_eq_u32 s{sB}, 0
s_cbranch_scc0 L_epiB
''')
vP = 16
A(f'''
s_mov_b32 s{sT + 6}, {f32(QSCALE)}
s_mov_b32 s{sT + 7}, {f32(QSCALE)}
s_mul_i32 s{sT + 8}, s{sT + 8}, 3
''')
for i in range(3):
    acc, P = vAcc + 32 * i, vP + 16 * i
    A(f'''
    s_add_u32 s{sT}, s{sT + 8}, {i}
    s_and_b32 s{sT + 1}, s{sT}, 15
    s_lshl_b32 s{sT + 1}, s{sT + 1}, 6
    s_add_u32 s{sT + 1}, s{sT + 1}, s{sT + 4}
    s_lshr_b32 s{sT}, s{sT}, 4
    s_cmp_eq_u32 s{sT}, 0
    s_cbranch_scc0 L_eA_kv{i}
    s_lshl_b32 s{sT + 1}, s{sT + 1}, 11
    s_add_u32 s{sT + 2}, s{sT + 1}, 2048
    ''')
    for r in range(0, 32, 2):
        A(f'v_pk_mul_f32 {vr(acc + r, 2)}, {vr(acc + r, 2)}, {sr(sT + 6, 2)}')
    A(f'''
    s_branch L_eA_n{i}
    L_eA_kv{i}:
    s_lshl_b32 s{sT + 1}, s{sT + 1}, 1
    s_add_u32 s{sT + 1}, s{sT + 1}, s{sT}
    s_lshl_b32 s{sT + 1}, s{sT + 1}, 11
    s_add_u32 s{sT + 2}, s{sT + 1}, {WS_KV - 2048 + 4096}
    s_add_u32 s{sT + 1}, s{sT + 1}, {WS_KV - 2048}
    L_eA_n{i}:
    ''')
    cvt8(P, acc)
    cvt8(P + 8, acc + 16)

    def b():
        for q in range(4):
            for e in range(2):
                A(f'v_permlane16_swap_b32 v{P + 4 * q + e}, v{P + 4 * q + 2 + e}')
    guard(f'vsw{i}', f's_cmp_eq_u32 s{sT}, 2', b)
    for q in range(4):
        A(f'buffer_store_dwordx4 {vr(P + 4 * q, 4)}, v{vUn}, {sr(sWS, 4)}, s{sT + 1 + (q >> 1)} offen offset:{256 * (q & 1)} sc1')
stamp('epi_done')
A(f'''
s_mul_i32 s{sT}, s{sCG}, 3
v_add_u32 v{vT}, s{sT}, v{vL}
v_and_b32 v{vT + 1}, 7, v{vT}
v_lshrrev_b32 v{vT}, 3, v{vT}
v_mul_u32_u24 v{vT + 1}, {FGRP}, v{vT + 1}
v_lshl_add_u32 v{vT + 2}, v{vT}, 11, v{vT + 1}
s_lshl_b32 s{sT}, s{sRB1}, 7
s_add_u32 s{sT}, s{sT}, {WS_FL + F_A}
s_waitcnt vmcnt(0)
s_barrier
s_cmp_eq_u32 s{sWv}, 0
s_cbranch_scc0 L_k0
s_mov_b64 exec, 7
buffer_store_dword v{vOne}, v{vT + 2}, {sr(sWS, 4)}, s{sT} offen sc1
s_mov_b64 exec, -1
''')
stamp('sigA')
A('s_branch L_k0')
pK, pQ, pV, vWF, vX = 16, 32, 48, 160, 168
A('L_epiB:')
wphi_addr(vU, vU + 1)
A(f'''
s_mul_i32 s{sT}, s{sH1}, 1568
s_add_u32 s{sT}, s{sT}, {L_WPHI}
v_add_u32 v{vU}, s{sT}, v{vU}
''')
for q in range(4):
    A(f'ds_read_b64_tr_b16 {vr(vWF + 2 * q, 2)}, v{vU} offset:{(16 * (q & 1) + 4 * (q >> 1)) * 56}')
cvt8(pK, vAcc + 32)
cvt8(pK + 8, vAcc + 48)
for a in range(2):
    for e in range(4):
        A(f'v_permlane16_swap_b32 v{pK + 8 * a + e}, v{pK + 8 * a + 4 + e}')
A(f'''
s_lshl_b32 s{sT + 1}, s{sT + 8}, 6
s_add_u32 s{sT + 1}, s{sT + 1}, s{sT + 4}
s_lshl_b32 s{sT + 1}, s{sT + 1}, 11
s_add_u32 s{sT + 1}, s{sT + 1}, {WS_QB}
s_waitcnt lgkmcnt(0)
''')
for a in range(2):
    A(f'v_mfma_f32_32x32x16_bf16 {vr(vX + 16 * a, 16)}, {vr(vWF, 4)}, {vr(pK + 8 * a, 4)}, 0')
    for i in range(4):
        A(f'v_cvt_pk_bf16_f32 v{pV + 8 * a + i}, v{vAcc + 64 + 16 * a + 2 * i}, v{vAcc + 64 + 16 * a + 2 * i + 1}')
    A(f'v_mfma_f32_32x32x16_bf16 {vr(vX + 16 * a, 16)}, {vr(vWF + 4, 4)}, {vr(pK + 8 * a + 4, 4)}, {vr(vX + 16 * a, 16)}')
    for i in range(4, 8):
        A(f'v_cvt_pk_bf16_f32 v{pV + 8 * a + i}, v{vAcc + 64 + 16 * a + 2 * i}, v{vAcc + 64 + 16 * a + 2 * i + 1}')
cvt8(pQ, vAcc)
cvt8(pQ + 8, vAcc + 16)
A(f'''
s_lshl_b32 s{sT}, s{sWv}, 12
s_add_u32 s{sT}, s{sT}, {L_V}
v_add_u32 v{vU}, s{sT}, v{vUn}
''')
for q in range(4):
    A(f'ds_write_b128 v{vU}, {vr(pV + 4 * q, 4)} offset:{2048 * (q >> 1) + 256 * (q & 1)}')
tiles = [(vX + 16 * a, vAcc + 16 * a, vAcc + 32 + 16 * a, vT + 4 * a) for a in range(2)]
features(tiles)
for q in range(4):
    A(f'buffer_store_dwordx4 {vr(pQ + 4 * q, 4)}, v{vUn}, {sr(sWS, 4)}, s{sT + 1} offen offset:{2048 * (q >> 1) + 256 * (q & 1)} sc1')
for X, Ep, En, t in tiles:
    A(f'v_pk_add_f32 {vr(t, 2)}, {vr(Ep, 2)}, {vr(Ep + 2, 2)}')
    A(f'v_pk_add_f32 {vr(t + 2, 2)}, {vr(En, 2)}, {vr(En + 2, 2)}')
for r in range(4, 16, 2):
    for X, Ep, En, t in tiles:
        A(f'v_pk_add_f32 {vr(t, 2)}, {vr(t, 2)}, {vr(Ep + r, 2)}')
        A(f'v_pk_add_f32 {vr(t + 2, 2)}, {vr(t + 2, 2)}, {vr(En + r, 2)}')
for X, Ep, En, t in tiles:
    A(f'v_add_f32 v{t}, v{t}, v{t + 1}')
    A(f'v_add_f32 v{t + 2}, v{t + 2}, v{t + 3}')
A(f'''
v_and_b32 v{vU}, 31, v{vL}
v_bfe_u32 v{vU + 1}, v{vL}, 1, 2
''')
for X, Ep, En, t in tiles:
    A(f'v_permlane32_swap_b32 v{t}, v{t + 2}')
for X, Ep, En, t in tiles:
    A(f'v_add_f32 v{t}, v{t}, v{t + 2}')
for X, Ep, En, t in tiles:
    A(f'v_rcp_f32 v{t}, v{t}')
A(f'v_lshlrev_b32 v{vU + 2}, 1, v{vH}')
for X, Ep, En, t in tiles:
    A(f'v_mov_b32 v{t + 2}, v{t}')
A(f'''
v_xor_b32 v{vU + 1}, v{vU + 1}, v{vU + 2}
v_lshlrev_b32 v{vU + 1}, 4, v{vU + 1}
''')
for X, Ep, En, t in tiles:
    A(f'v_permlane32_swap_b32 v{t}, v{t + 2}')
A(f'''
v_lshl_add_u32 v{vU}, v{vU}, 6, v{vU + 1}
s_lshl_b32 s{sT}, s{sH1}, 14
s_lshl_b32 s{sT + 1}, s{sRH}, 12
s_add_u32 s{sT}, s{sT}, s{sT + 1}
s_add_u32 s{sT}, s{sT}, {L_PHI}
v_add_u32 v{vU}, s{sT}, v{vU}
v_xor_b32 v{vU + 1}, 16, v{vU}
''')
for a, (X, Ep, En, t) in enumerate(tiles):
    for sg, (E, s_) in enumerate(((Ep, t), (En, t + 2))):
        for r in range(0, 16, 2):
            A(f'v_pk_mul_f32 {vr(E + r, 2)}, {vr(E + r, 2)}, {vr(s_, 2)} op_sel_hi:[1,0]')
        P = X + 8 * sg
        cvt8(P, E)
        A(f'ds_write_b128 v{vU}, {vr(P, 4)} offset:{8192 * sg + 2048 * a}')
        A(f'ds_write_b128 v{vU + 1}, {vr(P + 4, 4)} offset:{8192 * sg + 2048 * a}')
stamp('epi_done')
A('s_waitcnt lgkmcnt(0)')
A('s_barrier')
vQ, vO, vS, vPp, vK, vV, vIdx, vRd, vXw, vXr = 16, 208, 64, 96, 128, 144, 176, 177, 178, 179
sKeep = sKC
A(f'''
L_k0:
s_setprio 1
s_lshl_b32 s{sKeep}, s{sRH}, 1
s_add_u32 s{sKeep}, s{sKeep}, s{sH1}
s_lshl_b32 s{sT}, s{sKeep}, 11
s_add_u32 s{sT}, s{sT}, {L_Q}
v_add_u32 v{vT + 7}, s{sT}, v{vLin}
v_xor_b32 v{vT + 6}, 0x800, v{vT + 7}
s_lshl_b32 s{sT}, s{sH1}, 14
s_add_u32 s{sT}, s{sT}, 32768
v_add_u32 v{vRd}, s{sT}, v{vLin}
v_mov_b32 v{vIdx}, 0xdddddddd
s_lshl_b32 s{sT}, s{sWv}, 12
s_add_u32 s{sT}, s{sT}, {L_XCH}
v_add_u32 v{vXw}, s{sT}, v{vLin}
v_xor_b32 v{vXr}, 0x2000, v{vXw}
''')
o_addr(0, sKeep)
for r in range(32):
    A(f'v_mov_b32 v{vO + r}, 0')
A(f'''
s_mov_b32 s{sC}, 1
s_mov_b32 s{sSlot}, 1
s_waitcnt vmcnt(0)
s_barrier
''')
stamp('k0')


def tile_read(q, i):
    dst = vK + 8 * (i & 1) + 4 * q if q < 2 else vV + 8 * (i & 3) + 4 * (q - 2)
    A(f'ds_read_b128 {vr(dst, 4)}, v{vRd} offset:{(i & 3) * 4096 + q * 1024}')


def set_qpad(g, m, t):
    A(f'''
    v_and_b32 v{t}, 0xffff0000, v{m}
    v_sub_f32 v{m}, v{m}, v{t}
    v_lshrrev_b32 v{t}, 16, v{t}
    v_and_b32 v{t + 1}, 0xffff0000, v{m}
    v_sub_f32 v{m}, v{m}, v{t + 1}
    s_mov_b64 exec, {sr(sHi, 2)}
    v_or_b32 v{vQ + 8 * g + 6}, v{t}, v{t + 1}
    v_lshrrev_b32 v{vQ + 8 * g + 7}, 16, v{m}
    s_mov_b64 exec, -1
    ''')


def qk(S, K_, g, half):
    c = vr(S, 16) if half else '0'
    A(f'v_mfma_f32_32x32x16_bf16 {vr(S, 16)}, {vr(K_ + 4 * half, 4)}, {vr(vQ + 8 * g + 4 * half, 4)}, {c}')


def pv(V, g, half):
    A(f'v_smfmac_f32_32x32x32_bf16 {vr(vO + 16 * g, 16)}, {vr(V + 4 * half, 4)}, {vr(vPp + 16 * g + 8 * half, 8)}, v{vIdx}')


def step(g, i_qk, i_pv, gaps, wide=False):
    o = 1 - g
    for n in range(4):
        if n < 2 and i_qk is not None:
            qk(vS + 16 * o, vK + 8 * (i_qk & 1), o, n)
        if n >= 2 and i_pv is not None:
            pv(vV + 8 * (i_pv & 3), o, n - 2)
        for f in gaps[n]:
            f()
        for r in range(4 * n, 4 * n + 4):
            e64 = '_e64' if wide and r == 12 else ''
            A(f'v_exp_f32{e64} v{vPp + 16 * g + r}, v{vS + 16 * g + r}')


def rd(i, *qs):
    return [lambda q=q: tile_read(q, i) for q in qs]


vK0 = vV + 16
A(f'''
ds_read_b128 {vr(vQ, 4)}, v{vT + 6}
ds_read_b128 {vr(vK0, 4)}, v{vLin} offset:32768
ds_read_b128 {vr(vQ + 4, 4)}, v{vT + 6} offset:1024
ds_read_b128 {vr(vK0 + 4, 4)}, v{vLin} offset:{32768 + 1024}
ds_read_b128 {vr(vQ + 8, 4)}, v{vT + 7}
ds_read_b128 {vr(vQ + 12, 4)}, v{vT + 7} offset:1024
''')
for q in range(4):
    tile_read(q, 0)
A('s_waitcnt lgkmcnt(8)')
qk(vPp, vK0, 0, 0)
A('s_waitcnt lgkmcnt(6)')
qk(vPp, vK0, 0, 1)
A('s_waitcnt lgkmcnt(4)')
qk(vPp + 16, vK0, 1, 0)
qk(vPp + 16, vK0, 1, 1)
A('s_waitcnt lgkmcnt(0)')
qk(vS, vK, 0, 0)
MOFF = f32(-float(OPT['moff']) if not OPT['force_fb'] else 200.0)
for g in range(2):
    S = vPp + 16 * g
    A(f'v_max3_f32 v{vT}, v{S}, v{S + 1}, v{S + 2}')
    A(f'v_max3_f32 v{vT + 1}, v{S + 3}, v{S + 4}, v{S + 5}')
    A(f'v_max3_f32 v{vT}, v{vT}, v{S + 6}, v{S + 7}')
    A(f'v_max3_f32 v{vT + 1}, v{vT + 1}, v{S + 8}, v{S + 9}')
    A(f'v_max3_f32 v{vT}, v{vT}, v{S + 10}, v{S + 11}')
    A(f'v_max3_f32 v{vT + 1}, v{vT + 1}, v{S + 12}, v{S + 13}')
    A(f'v_max3_f32 v{vT}, v{vT}, v{S + 14}, v{S + 15}')
    A(f'''
    v_max_f32 v{vT}, v{vT}, v{vT + 1}
    v_mov_b32 v{vT + 1}, v{vT}
    v_permlane32_swap_b32 v{vT}, v{vT + 1}
    v_max_f32 v{vT}, v{vT}, v{vT + 1}
    v_sub_f32 v{vT}, {MOFF}, v{vT}
    ''')
    set_qpad(g, vT, vT + 1)
    if g == 0:
        qk(vS, vK, 0, 1)
A('.p2align 3')
step(0, 0, None, [rd(1, 0), rd(1, 1), rd(1, 2), rd(1, 3)], wide=True)


def iteration(i, reads, last=False, extra=()):
    A('s_waitcnt lgkmcnt(0)')
    body = [rd(i + 1, 0), rd(i + 1, 1), rd(i + 1, 2), rd(i + 1, 3)] if reads else [[], [], [], []]
    step(1, i, i - 1, body)
    step(0, i, i - 1, [list(extra), [], [], []], wide=not last)


adv = [lambda: A(f'''
    s_add_u32 s{sSlot}, s{sSlot}, 1
    s_cmp_eq_u32 s{sSlot}, 3
    s_cselect_b32 s{sSlot}, 0, s{sSlot}
    s_cselect_b32 s{sT}, -2, 1
    s_lshl_b32 s{sT}, s{sT}, 15
    v_add_u32 v{vRd}, s{sT}, v{vRd}
    ''')]
def advc(c):
    return [lambda: A(f'v_add_u32 v{vRd}, {32768 if (c + 1) % 3 else -65536 & 0xffffffff}, v{vRd}')]


if OPT['unroll']:
    iteration(1, True)
    iteration(2, True, last=True, extra=advc(1))
    for c in range(1, 8):
        if OPT['fine'] == 2:
            stamp(f'pre{c}')
        A('s_waitcnt lgkmcnt(0)')
        A('s_barrier')
        if OPT['fine'] == 2:
            stamp(f'bar{c}')
            A('.p2align 3')
        step(1, 3, 2, [rd(4, 0), rd(4, 1), rd(4, 2), rd(4, 3)])
        step(0, 3, 2, [[], [], [], []], wide=True)
        iteration(4, True)
        iteration(5, True)
        iteration(6, True, last=c < 7, extra=advc(c + 1) if c < 7 else [])
else:
    iteration(1, True)
    iteration(2, True, last=True, extra=adv)
    A('L_attloop:')


    def dstamp(pref):
        if OPT['fine'] != 2:
            return
        base = len(STAMPS)
        for c in range(1, 8):
            STAMPS.append(f'{pref}{c}')
        A(f'''
        s_memrealtime s[{sStamp}:{sStamp + 1}]
        s_memtime s[94:95]
        s_add_u32 m0, s{sC}, {base - 1}
        s_waitcnt lgkmcnt(0)
        v_writelane_b32 v255, s{sStamp}, m0
        s_add_u32 m0, m0, 32
        s_nop 0
        v_writelane_b32 v255, s94, m0
        .p2align 3
        ''')


    dstamp('pre')
    A('s_waitcnt lgkmcnt(0)')
    A('s_barrier')
    dstamp('bar')
    step(1, 3, 2, [rd(4, 0), rd(4, 1), rd(4, 2), rd(4, 3)])
    step(0, 3, 2, [[], [], [], []], wide=True)
    iteration(4, True)
    iteration(5, True)
    iteration(6, True, last=True, extra=adv + [lambda: A(f's_add_u32 s{sC}, s{sC}, 1'), lambda: A(f's_cmp_lt_u32 s{sC}, 8')])
    A('s_cbranch_scc1 L_attloop')
A('s_waitcnt lgkmcnt(0)')
A('.p2align 3')
A('s_barrier')
A('s_setprio 3')
step(1, 31, 30, [[], [], [], []])
step(0, 31, 30, [[], [], [], []])
S1, P1 = vS + 16, vPp + 16
for r in range(2):
    A(f'v_exp_f32 v{P1 + r}, v{S1 + r}')
pv(vV + 24, 0, 0)
for r in range(2, 6):
    A(f'v_exp_f32 v{P1 + r}, v{S1 + r}')
pv(vV + 24, 0, 1)
for r in range(6, 10):
    A(f'v_exp_f32 v{P1 + r}, v{S1 + r}')
pv(vV + 24, 1, 0)
for r in range(10, 16):
    A(f'v_exp_f32 v{P1 + r}, v{S1 + r}')
A(f's_lshl_b32 s{sT}, s{sWv}, 2')
A(f's_add_u32 s{sT}, s{sT}, {L_RELAY + 16}')
pv(vV + 24, 1, 1)
A(f'v_mov_b32 v{vT + 1}, s{sT}')
for q in range(4):
    A(f'ds_write_b128 v{vXw}, {vr(vO + 4 * q, 4)} offset:{1024 * q}')
A(f'ds_write_b32 v{vT + 1}, v{vOne}')
A(f'v_xor_b32 v{vT + 1}, 8, v{vT + 1}')
stamp('att_done')
O1 = vO + 16
A(f'''
s_mov_b32 s{sSpin}, {OPT['spin'] * 16}
L_xch:
ds_read_b32 v{vT}, v{vT + 1}
''')
for q in range(4):
    A(f'ds_read_b128 {vr(vS + 4 * q, 4)}, v{vXr} offset:{1024 * q}')
A(f'''
s_sub_u32 s{sSpin}, s{sSpin}, 1
s_cmp_eq_u32 s{sSpin}, 0
s_cbranch_scc1 L_xchx
s_waitcnt lgkmcnt(4)
v_cmp_ne_u32 vcc, 1, v{vT}
s_cbranch_vccnz L_xch
L_xchx:
''')
for q in range(4):
    A(f's_waitcnt lgkmcnt({3 - q})')
    A(f'v_pk_add_f32 {vr(O1 + 4 * q, 2)}, {vr(O1 + 4 * q, 2)}, {vr(vS + 4 * q, 2)}')
    A(f'v_pk_add_f32 {vr(O1 + 4 * q + 2, 2)}, {vr(O1 + 4 * q + 2, 2)}, {vr(vS + 4 * q + 2, 2)}')
A(f'v_add_f32_e64 v{vT}, abs(v{O1}), abs(v{O1 + 1})')
A(f'v_add_f32_e64 v{vT + 1}, abs(v{O1 + 2}), abs(v{O1 + 3})')
for r in range(4, 16, 2):
    A(f'v_add_f32_e64 v{vT}, v{vT}, abs(v{O1 + r})')
    A(f'v_add_f32_e64 v{vT + 1}, v{vT + 1}, abs(v{O1 + r + 1})')
vPk = 240
A(f'''
v_add_f32 v{vT}, v{vT}, v{vT + 1}
s_mov_b32 s{sT}, 0x7b800000
v_cmp_ngt_f32 vcc, s{sT}, v{vT}
s_cbranch_vccnz L_fallback
L_final:
v_rcp_f32 v{vT + 2}, v{O1 + 12}
v_rcp_f32 v{vT + 4}, v{O1 + 12}
v_permlane32_swap_b32 v{vT + 4}, v{vT + 2}
''')
for r in range(0, 16, 2):
    A(f'v_pk_mul_f32 {vr(O1 + r, 2)}, {vr(O1 + r, 2)}, {vr(vT + 2, 2)} op_sel_hi:[1,0]')
cvt8(vPk, O1)
A(f'''
s_mov_b64 exec, {sr(sHi, 2)}
v_mov_b32 v{vPk + 6}, 0
v_mov_b32 v{vPk + 7}, 0
s_mov_b64 exec, -1
buffer_store_dwordx4 {vr(vPk, 4)}, v{vOA}, {sr(sWS, 4)}, s{sT + 7} offen sc1
buffer_store_dwordx4 {vr(vPk + 4, 4)}, v{vOA}, {sr(sWS, 4)}, s{sT + 7} offen offset:512 sc1
''')
stamp('o_stored')
p3_addr(L_WOA)
for hd in range(NPRE // 2):
    wo_reads(hd)
A('s_waitcnt vmcnt(0)')
signal(f's{sT + 8}')
stamp('o_sig')
A(f'''
s_cmp_ge_u32 s{sJ}, 28
s_cbranch_scc1 L_fin
''')
for hd in range(NPRE // 2, NPRE):
    wo_reads(hd)
A(f'''
L_p3:
s_lshr_b32 s{sT}, s{sRT}, 1
s_lshl_b32 s{sT + 1}, s{sRB64}, 1
s_add_u32 s{sT}, s{sT}, s{sT + 1}
s_and_b32 s{sT + 1}, s{sT}, 7
s_lshl_b32 s{sT + 2}, s{sHH}, 3
s_add_u32 s{sT + 1}, s{sT + 1}, s{sT + 2}
s_lshl_b32 s{sT + 1}, s{sT + 1}, 11
s_add_u32 s{sT + 1}, s{sT + 1}, s{sFG}
s_add_u32 s{sT + 1}, s{sT + 1}, {F_O}
s_lshl_b32 s{sT + 2}, s{sHH}, 6
s_add_u32 s{sT}, s{sT}, s{sT + 2}
s_lshl_b32 s{sT}, s{sT}, 1
s_and_b32 s{sT + 2}, s{sCB}, {OPT['hrot']}
s_cselect_b32 s{sT + 4}, -1, 1
s_add_u32 s{sT}, s{sT}, s{sT + 2}
s_lshl_b32 s{sT}, s{sT}, 14
s_and_b32 s{sT + 2}, s{sRT}, 1
s_lshl_b32 s{sT + 2}, s{sT + 2}, 10
s_add_u32 s{sT}, s{sT}, s{sT + 2}
s_add_u32 s{sT}, s{sT}, {WS_O}
s_xor_b32 s{sT + 3}, s{sT}, 0x4000
s_mul_i32 s{sT + 4}, s{sT + 4}, {HROT}
''')
poll16('s3', f's{sT + 1}')
stamp('p3_flag')
for hd in range(16):
    s_ = sT if hd < 8 else sT + 3
    A(f'buffer_load_dwordx4 {vr(vOf + 4 * hd, 4)}, v{vLin}, {sr(sWS, 4)}, s{s_} offen offset:{2048 * (hd & 1)} sc1')
    if hd & 1 and hd not in (7, 15):
        A(f's_add_u32 s{s_}, s{s_}, 4096')


def b():
    A(f'''
    s_lshl_b32 s{sT}, s{sRT}, 2
    s_add_u32 s{sT}, s{sT}, {L_RELAY + 16}
    v_mov_b32 v{vT + 1}, s{sT}
    s_mov_b32 s{sSpin}, {OPT['spin'] * 16}
    L_w8:
    ds_read_b32 v{vT}, v{vT + 1}
    s_sub_u32 s{sSpin}, s{sSpin}, 1
    s_waitcnt lgkmcnt(0)
    s_cmp_eq_u32 s{sSpin}, 0
    s_cbranch_scc1 L_w8x
    v_cmp_ne_u32 vcc, 1, v{vT}
    s_cbranch_vccnz L_w8
    L_w8x:
    ''')
    if not OPT['pre']:
        for hd in range(NPRE):
            wo_reads(hd)


guard('b8', f's_cmp_eq_u32 s{sHH}, 1', b)
for i in range(8):
    A(f'v_add_u32 v{vWa + i}, s{sT + 4}, v{vWa + i}')
vSt, vLd, vOut = vT + 1, vT + 2, vT + 3
A(f'''
s_lshl_b32 s{sT}, s{sWv}, 11
s_add_u32 s{sT}, s{sT}, {L_STG}
v_and_b32 v{vT}, 15, v{vL}
v_lshrrev_b32 v{vT + 4}, 4, v{vL}
v_and_b32 v{vT + 5}, 7, v{vL}
v_lshlrev_b32 v{vSt}, 4, v{vT + 5}
v_lshl_add_u32 v{vSt}, v{vT}, 7, v{vSt}
v_lshlrev_b32 v{vT + 4}, 3, v{vT + 4}
v_xor_b32 v{vSt}, v{vSt}, v{vT + 4}
v_add_u32 v{vSt}, s{sT}, v{vSt}
v_lshrrev_b32 v{vT}, 3, v{vL}
v_xor_b32 v{vLd}, v{vT}, v{vT + 5}
v_lshlrev_b32 v{vLd}, 4, v{vLd}
v_lshl_add_u32 v{vLd}, v{vT}, 7, v{vLd}
v_add_u32 v{vLd}, s{sT}, v{vLd}
v_mul_u32_u24 v{vOut}, 1792, v{vT}
v_lshl_add_u32 v{vOut}, v{vT + 5}, 4, v{vOut}
v_xor_b32 v{vT + 4}, 32, v{vSt}
v_xor_b32 v{vT + 5}, 64, v{vSt}
v_xor_b32 v{vT + 6}, 0x60, v{vSt}
s_lshl_b32 s{sT}, s{sRB64}, 2
s_add_u32 s{sT}, s{sT}, s{sRT}
s_mul_i32 s{sT}, s{sT}, {16 * 1792}
s_mul_i32 s{sT + 1}, s{sHH}, 896
s_add_u32 s{sT}, s{sT}, s{sT + 1}
s_lshl_b32 s{sT + 1}, s{sCB}, 7
s_add_u32 s{sT}, s{sT}, s{sT + 1}
s_add_u32 s{sT + 1}, s{sT}, {8 * 1792}
''')
for hd in range(16):
    G = vWo + 16 * (hd % NPRE)
    lg = {0: ' lgkmcnt(0)', 8: ' lgkmcnt(14)', 14: ' lgkmcnt(8)', 15: ' lgkmcnt(0)'}.get(hd, '')
    A(f's_waitcnt vmcnt({15 - hd})' + lg)
    for ct in range(4):
        c = vr(vC + 4 * ct, 4) if hd else '0'
        A(f'v_mfma_f32_16x16x32_bf16 {vr(vC + 4 * ct, 4)}, {vr(G + 4 * ct, 4)}, {vr(vOf + 4 * hd, 4)}, {c}')
    if hd < 8:
        wo_reads(hd)
for ct in range(4):
    A(f'v_cvt_pk_bf16_f32 v{vOf + 2 * ct}, v{vC + 4 * ct}, v{vC + 4 * ct + 1}')
    A(f'v_cvt_pk_bf16_f32 v{vOf + 2 * ct + 1}, v{vC + 4 * ct + 2}, v{vC + 4 * ct + 3}')
    A(f'ds_write_b64 v{[vSt, vT + 4, vT + 5, vT + 6][ct]}, {vr(vOf + 2 * ct, 2)}')
OUTFL = ['', 'sc1', 'nt', 'sc0 sc1'][OPT['outfl']]
A(f'''
ds_read_b128 {vr(vOf + 8, 4)}, v{vLd}
ds_read_b128 {vr(vOf + 12, 4)}, v{vLd} offset:1024
s_waitcnt lgkmcnt(1)
buffer_store_dwordx4 {vr(vOf + 8, 4)}, v{vOut}, {sr(sOUT, 4)}, s{sT} offen {OUTFL}
s_waitcnt lgkmcnt(0)
buffer_store_dwordx4 {vr(vOf + 12, 4)}, v{vOut}, {sr(sOUT, 4)}, s{sT + 1} offen {OUTFL}
''')
stamp('p3_done')
A('L_fin:')
if PROBE:
    if 'px' in OPT:
        A(f's_cmp_eq_u32 s{sXc}, {OPT["px"]}')
        A('s_cbranch_scc0 L_end')
    if 'pb' in OPT:
        A(f's_cmp_eq_u32 s{sB}, {OPT["pb"]}')
        A('s_cbranch_scc0 L_end')
    A('''
    L_pad:
    s_memrealtime s[94:95]
    s_waitcnt lgkmcnt(0)
    s_sub_u32 s94, s94, s90
    s_cmp_lt_u32 s94, 3000
    s_cbranch_scc1 L_pad
    ''')
if OPT['stamps']:
    A('s_waitcnt vmcnt(0)')
    stamp('end')
    A('s_getreg_b32 s94, hwreg(HW_REG_XCC_ID)')
    A('v_writelane_b32 v255, s94, 31')
    A(f'''
    s_lshl_b32 s{sT}, s2, 3
    s_add_u32 s{sT}, s{sT}, s{sWv}
    s_lshl_b32 s{sT}, s{sT}, 8
    s_add_u32 s{sT}, s{sT}, {WS_ST}
    v_lshlrev_b32 v{vT}, 2, v{vL}
    buffer_store_dword v255, v{vT}, {sr(sWS, 4)}, s{sT} offen
    ''')
A('s_endpgm')
A(f'''
L_fallback:
s_mov_b64 exec, {sr(sHi, 2)}
v_mov_b32 v{vQ + 14}, 0
v_mov_b32 v{vQ + 15}, 0
s_mov_b64 exec, -1
v_mov_b32 v{vT}, 0xff800000
s_lshl_b32 s{sT}, s{sH}, 18
s_add_u32 s{sT}, s{sT}, {WS_KV}
s_mov_b32 s{sT + 1}, 0
L_fb1:
buffer_load_dwordx4 {vr(vK, 4)}, v{vLin}, {sr(sWS, 4)}, s{sT} offen sc1
buffer_load_dwordx4 {vr(vK + 4, 4)}, v{vLin}, {sr(sWS, 4)}, s{sT} offen offset:1024 sc1
s_waitcnt vmcnt(0)
''')
qk(vS, vK, 1, 0)
qk(vS, vK, 1, 1)
for r in range(0, 16, 2):
    A(f'v_max3_f32 v{vT}, v{vT}, v{vS + r}, v{vS + r + 1}')
A(f'''
s_add_u32 s{sT}, s{sT}, 4096
s_add_u32 s{sT + 1}, s{sT + 1}, 1
s_cmp_lt_u32 s{sT + 1}, 64
s_cbranch_scc1 L_fb1
v_mov_b32 v{vT + 1}, v{vT}
v_permlane32_swap_b32 v{vT}, v{vT + 1}
v_max_f32 v{vT}, v{vT}, v{vT + 1}
v_sub_f32 v{vT}, 0, v{vT}
''')
set_qpad(1, vT, vT + 1)
for r in range(16):
    A(f'v_mov_b32 v{O1 + r}, 0')
A(f'''
s_lshl_b32 s{sT}, s{sH}, 18
s_add_u32 s{sT}, s{sT}, {WS_KV}
s_mov_b32 s{sT + 1}, 0
L_fb2:
''')
for q in range(4):
    A(f'buffer_load_dwordx4 {vr(vK + 4 * q, 4)}, v{vLin}, {sr(sWS, 4)}, s{sT} offen offset:{1024 * q} sc1')
A('s_waitcnt vmcnt(0)')
qk(vS, vK, 1, 0)
qk(vS, vK, 1, 1)
for r in range(16):
    A(f'v_exp_f32 v{P1 + r}, v{vS + r}')
pv(vK + 8, 1, 0)
pv(vK + 8, 1, 1)
A(f'''
s_add_u32 s{sT}, s{sT}, 4096
s_add_u32 s{sT + 1}, s{sT + 1}, 1
s_cmp_lt_u32 s{sT + 1}, 64
s_cbranch_scc1 L_fb2
s_nop 11
s_branch L_final
L_end:
s_endpgm
''')

n = A.fix_hazards(verbose=bool(OPT.get('v')))
hdr = open('cdna_kernels/' + NAME + '.s.ref').read().split('; Override launch')[0]
out = hdr + f'''; One persistent launch, 256 workgroups (one per CU); generated by the author's own script.
; @launch grid=(256,1,1) block=(512,1,1) lds=163840
.amdgcn_target "amdgcn-amd-amdhsa--gfx950"
.text
.globl {NAME}_kernel
.p2align 8
.type {NAME}_kernel,@function
{NAME}_kernel:
''' + A.text() + f'''.fill 256, 4, 0xbf800000
.section .rodata,"a"
.p2align 6
.amdhsa_kernel {NAME}_kernel
  .amdhsa_next_free_vgpr 256
  .amdhsa_next_free_sgpr 102
  .amdhsa_accum_offset 256
  .amdhsa_group_segment_fixed_size 0
  .amdhsa_kernarg_size 80
  .amdhsa_user_sgpr_count 2
  .amdhsa_user_sgpr_kernarg_segment_ptr 1
  .amdhsa_system_sgpr_workgroup_id_x 1
.end_amdhsa_kernel
'''
open(sys.argv[1], 'w').write(out)
if OPT['stamps']:
    open(sys.argv[1] + '.stamps', 'w').write('\n'.join(STAMPS + ['1']))
print('lines', len(A.lines), 'nops inserted', n)
```
